```python
import torch

def _softmax(x, axis=-1):
    return torch.softmax(x, dim=axis)
def _gelu(x):
    return torch.nn.functional.gelu(x, approximate="tanh")
def _silu(x):
    return torch.nn.functional.silu(x)
def _sigmoid(x):
    return torch.sigmoid(x)
def _layernorm(x, axis=-1, eps=1e-5):
    m = x.mean(dim=axis, keepdim=True)
    v = x.var(dim=axis, keepdim=True, unbiased=False)
    return (x - m) / torch.sqrt(v + eps)
def _scatter_add(tgt, idx, src, axis=0):
    return tgt.clone().index_add_(axis, idx, src)
def _segment_sum(src, seg, n):
    out = torch.zeros((n,) + src.shape[1:], dtype=src.dtype)
    return out.index_add_(0, seg, src)
def _pad(x, pw):
    flat = tuple(v for pair in reversed(pw) for v in pair)
    return torch.nn.functional.pad(x, flat)

kernel_name = 'gated_mix__mha_block__dense_activation_squared_relu__prompt'

def setup_inputs():

    _w = (lambda a: (lambda t: t.to(torch.bfloat16) if t.is_floating_point() else t)(torch.as_tensor(a)))
    def _A_setup():
        B, S, D, H = 1, 2048, 512, 32
        return {
            "x": _w((lambda *s: torch.randn(*s, dtype=torch.bfloat16) * 0.05)(B, S, D)),
            "wqkv": _w((lambda *s: torch.randn(*s, dtype=torch.bfloat16) * 0.8)(D, 3 * D)),
            "wo": _w((lambda *s: torch.randn(*s, dtype=torch.bfloat16) * 0.1)(D, D)),
        }
    _A_in = _A_setup()

    def _B_setup():
        B, S, D, F = 1, 2048, 512, 1792
        return {
            "x": _w((lambda *s: torch.randn(*s, dtype=torch.bfloat16) * 0.05)(B, S, D)),
            "w1": _w((lambda *s: torch.randn(*s, dtype=torch.bfloat16) * 0.1)(D, F)),
            "b1": _w((lambda *s: torch.randn(*s, dtype=torch.bfloat16) * 0.05)(F)),
            "w2": _w((lambda *s: torch.randn(*s, dtype=torch.bfloat16) * 0.05)(F, D)),
            "b2": _w((lambda *s: torch.randn(*s, dtype=torch.bfloat16) * 0.05)(D)),
        }
    _B_in = _B_setup()

    return {
        "A_x": _A_in["x"],
        "A_wqkv": _A_in["wqkv"],
        "A_wo": _A_in["wo"],
        "B_x": _B_in["x"],
        "B_w1": _B_in["w1"],
        "B_b1": _B_in["b1"],
        "B_w2": _B_in["w2"],
        "B_b2": _B_in["b2"],
        "gate_w": _w((lambda *s: torch.randn(*s, dtype=torch.bfloat16) * 0.05)(512) * 16.0),
    }

def reference(A_x, A_wqkv, A_wo, B_x, B_w1, B_b1, B_w2, B_b2, gate_w):
    def _A_ref(x, wqkv, wo):
        B, S, D = x.shape
        H = 32
        Dh = D // H
        qkv = (lambda x, *d: x.permute(*d))((x @ wqkv).reshape(B, S, 3, H, Dh), 2, 0, 3, 1, 4)
        q, k, v = qkv[0], qkv[1], qkv[2]
        scores = torch.einsum("bhqd,bhkd->bhqk", q, k) * (Dh ** -0.5)
        p = _softmax(scores, axis=-1)
        o = torch.einsum("bhqk,bhkd->bhqd", p, v)
        return (lambda x, *d: x.permute(*d))(o, 0, 2, 1, 3).reshape(B, S, D) @ wo

    def _B_ref(x, w1, b1, w2, b2):
        h = torch.einsum("bsd,df->bsf", x, w1) + b1
        zero = torch.zeros_like(h)
        r = torch.where(h > zero, h, zero)
        h = r * r
        out = torch.einsum("bsf,fd->bsd", h, w2) + b2
        return out

    x = A_x
    g = _sigmoid((x * gate_w).sum(-1, keepdims=True))
    a = _A_ref(x, A_wqkv, A_wo)
    b = _B_ref(x, B_w1, B_b1, B_w2, B_b2)
    return g * a + (1 - g) * b
```

```python
import struct, math, sys

NAME = "gated_mix__mha_block__dense_activation_squared_relu__prompt"

WS_QF = 0x000000
WS_KV = 0x200000
WS_OF = 0x600000
WS_HF = 0x800000
WS_WF = 0xF00000
WS_BP = 0x1200000
WS_KN = 0x1600000
WS_G = 0x1610000
WS_SIZE = 0x1620000

QSCALE = 0.25 * math.log2(math.e)
LOG2E = math.log2(math.e)


def f32(x):
    return "0x%08x" % struct.unpack("<I", struct.pack("<f", x))[0]


class Asm:
    def __init__(self):
        self.lines = []

    def __call__(self, s):
        for l in s.strip("\n").split("\n"):
            self.lines.append("    " + l.strip())

    def label(self, l):
        self.lines.append(l + ":")

    def raw(self, s):
        self.lines.append(s)

    def text(self):
        return "\n".join(self.lines) + "\n"


def vr(b, n):
    return f"v[{b}:{b+n-1}]" if n > 1 else f"v{b}"


def srd(a, d, base, size):
    a(f"s_mov_b32 s{d}, s{base}")
    a(f"s_and_b32 s{d+1}, s{base+1}, 0xffff")
    a(f"s_mov_b32 s{d+2}, {size}")
    a(f"s_mov_b32 s{d+3}, 0x00020000")


MFMA = "v_mfma_f32_32x32x16_bf16"

K1_GATE_LDS = 147456
K1_LDS = 147456 + 1024


def gen_k1(a):
    a.raw(".p2align 8")
    a.label("k1_kernel")
    a("s_cmp_ge_u32 s2, 256")
    a("s_cbranch_scc1 k1_exit")
    a("s_load_dwordx4 s[40:43], s[0:1], 0      ; x, wqkv")
    a("s_load_dwordx2 s[44:45], s[0:1], 16     ; wo")
    a("s_load_dwordx4 s[48:51], s[0:1], 32     ; w1, b1")
    a("s_load_dwordx2 s[52:53], s[0:1], 48     ; w2")
    a("s_load_dwordx2 s[54:55], s[0:1], 64     ; gate_w")
    a("s_load_dwordx2 s[56:57], s[0:1], 88     ; ws")
    a("v_and_b32 v1, 63, v0                    ; lane")
    a("v_lshrrev_b32 v2, 6, v0                 ; wave")
    a("s_and_b32 s28, s2, 7")
    a("v_readfirstlane_b32 s30, v2")
    a("s_lshr_b32 s29, s2, 3                   ; idx")
    a("s_waitcnt lgkmcnt(0)")
    srd(a, 4, 40, 2097152)
    srd(a, 12, 56, WS_SIZE)
    a("s_cmp_ge_u32 s29, 30")
    a("s_cbranch_scc1 k1_typeC")
    a("s_cmp_ge_u32 s29, 14")
    a("s_cbranch_scc1 k1_typeA")
    gen_k1_gemm(a, "B")
    a.label("k1_typeA")
    gen_k1_gemm(a, "A")
    a.label("k1_typeC")
    gen_k1_relayout(a)
    a.label("k1_exit")
    a("s_endpgm")


def gen_k1_gemm(a, T):
    isA = T == "A"
    ncbw = 3 if isA else 4
    ncb = 2 * ncbw
    pitch = 3072 if isA else 3584
    stage_bytes = 16384 + ncb * 4096
    ndma = 4 + ncb
    L = f"k1{T}"
    a("s_and_b32 s33, s28, 1")
    a("s_lshr_b32 s34, s28, 1                   ; b")
    if isA:
        a("s_sub_u32 s35, s29, 14                   ; 0..15")
        a("s_and_b32 s31, s35, 7")
        a("s_lshr_b32 s35, s35, 3")
        a("s_lshl_b32 s32, s34, 1")
        a("s_add_u32 s32, s32, s35                  ; hg = 2b + (i>>3)")
        srd(a, 8, 42, 1572864)
        srd(a, 16, 54, 1024)
    else:
        a("s_mul_i32 s35, s34, 14")
        a("s_add_u32 s35, s35, s29                  ; 0..55")
        a("s_and_b32 s31, s35, 7")
        a("s_lshr_b32 s32, s35, 3                   ; fg 0..6")
        srd(a, 8, 48, 1835008)
        srd(a, 16, 50, 3584)
    a("s_lshl_b32 s33, s33, 3")
    a("s_add_u32 s31, s31, s33                  ; rg")
    a("s_and_b32 s36, s30, 1                    ; tbp")
    a("s_lshr_b32 s37, s30, 1                   ; ch")
    a("s_lshl_b32 s38, s31, 17")
    a("s_lshl_b32 s20, s30, 13")
    a("s_add_u32 s38, s38, s20")
    a(f"s_mul_i32 s39, s30, {16*pitch}")
    a(f"s_mul_i32 s20, s32, {128 if isA else 512}")
    a("s_add_u32 s39, s39, s20")
    a("s_lshl_b32 s21, s30, 10")
    a("v_lshrrev_b32 v4, 3, v1")
    a("v_lshrrev_b32 v5, 1, v4")
    a("s_lshl_b32 s20, s36, 2")
    a("v_add_u32 v5, s20, v5")
    a("v_and_b32 v6, 7, v1")
    a("v_xor_b32 v5, v5, v6")
    a("v_lshlrev_b32 v5, 4, v5")
    a("v_lshl_add_u32 v3, v4, 10, v5")
    a("v_lshrrev_b32 v5, 2, v1")
    a(f"v_mul_u32_u24 v5, {pitch}, v5")
    a("v_and_b32 v6, 3, v1")
    a("v_lshl_add_u32 v4, v6, 4, v5")
    a("v_and_b32 v5, 31, v1                     ; t")
    a("v_lshrrev_b32 v6, 5, v1                  ; hh")
    a("v_bfe_u32 v7, v1, 1, 3                   ; (t>>1)&7")
    a("s_lshl_b32 s20, s36, 13")
    a("v_lshl_add_u32 v12, v5, 7, s20")
    for s in range(4):
        a(f"v_add_u32 v13, {2*s}, v6")
        a("v_xor_b32 v13, v13, v7")
        a(f"v_lshl_add_u32 v{8+s}, v13, 4, v12")
    a("v_bfe_u32 v13, v1, 2, 2                  ; r")
    a("v_lshl_add_u32 v13, v6, 3, v13           ; 8hh + r")
    a("v_lshlrev_b32 v13, 6, v13")
    a("v_bfe_u32 v14, v1, 4, 1                  ; colhalf")
    a("v_lshl_add_u32 v13, v14, 5, v13")
    a("v_and_b32 v14, 3, v1")
    a("v_lshl_add_u32 v13, v14, 3, v13")
    a(f"s_mul_i32 s20, s37, {ncbw*4096}")
    a("s_add_u32 s20, s20, 16384")
    a("v_add_u32 v12, s20, v13")
    if isA:
        a(f"v_lshlrev_b32 v19, 4, v6")
        a(f"v_add_u32 v19, {K1_GATE_LDS}, v19")
    ACC = 128 if not isA else 128
    FA, FB = 24, 24 + 28
    def xf(S, tbl): return S + 4 * tbl
    def wf(S, c): return S + 8 + 4 * c
    def gf(S): return S + 24
    def acc(tbl, c): return ACC + 16 * (tbl * ncbw + c)
    GACC = ACC + 16 * 6

    def colbyte(cb):
        if isA:
            ch, kind = divmod(cb, 3)
            return ch * 64 + kind * 1024
        return cb * 64

    def dma_list(stage_sreg):
        out = []
        for ii in range(4):
            out.append([f"s_add_u32 m0, s{stage_sreg}, {ii*4096}",
                        f"s_add_u32 s20, s38, {ii*32768}",
                        f"buffer_load_dwordx4 v3, s[4:7], s20 offen lds"])
        for cb in range(ncb):
            out.append([f"s_add_u32 m0, s{stage_sreg}, {16384 + cb*4096}",
                        f"s_add_u32 s20, s39, {colbyte(cb)}",
                        f"buffer_load_dwordx4 v4, s[8:11], s20 offen lds"])
        return out

    def dma_advance():
        a("s_add_u32 s38, s38, 128")
        a(f"s_add_u32 s39, s39, {64*pitch}")

    if isA:
        a(f"s_mov_b32 m0, {K1_GATE_LDS}")
        a("v_lshlrev_b32 v20, 4, v1")
        a("buffer_load_dwordx4 v20, s[16:19], 0 offen lds")
    else:
        a("s_lshl_b32 s20, s32, 9")
        a("s_lshl_b32 s22, s37, 8")
        a("s_add_u32 s20, s20, s22")
        a("v_lshlrev_b32 v20, 3, v6")
        for c in range(4):
            for q in range(4):
                d = FA + 2 * (c * 4 + q)
                a(f"buffer_load_dwordx2 v[{d}:{d+1}], v20, s[16:19], s20 offen offset:{c*64 + q*16}")
    for st in range(3):
        a(f"s_add_u32 s22, s21, {st*stage_bytes}")
        for g in dma_list(22):
            for l in g:
                a(l)
        dma_advance()
    if isA:
        for r in range(ACC, ACC + 7 * 16):
            a(f"v_mov_b32 v{r}, 0")
    else:
        a(f"s_waitcnt vmcnt({3*ndma})")
        for c in range(4):
            for q in range(4):
                d = FA + 2 * (c * 4 + q)
                for tbl in range(2):
                    r = acc(tbl, c) + 4 * q
                    a(f"v_lshlrev_b32 v{r}, 16, v{d}")
                    a(f"v_and_b32 v{r+1}, 0xffff0000, v{d}")
                    a(f"v_lshlrev_b32 v{r+2}, 16, v{d+1}")
                    a(f"v_and_b32 v{r+3}, 0xffff0000, v{d+1}")

    def reads(S, s):
        out = []
        for tbl in range(2):
            out.append(f"ds_read_b128 {vr(xf(S, tbl), 4)}, v{14+s} offset:{tbl*4096}")
        for c in range(ncbw):
            b = wf(S, c)
            out.append(f"ds_read_b64_tr_b16 {vr(b, 2)}, v18 offset:{c*4096 + s*1024}")
            out.append(f"ds_read_b64_tr_b16 {vr(b+2, 2)}, v18 offset:{c*4096 + s*1024 + 256}")
        if isA:
            out.append(f"ds_read_b128 {vr(gf(S), 4)}, v19 offset:{s*32}")
        return out
    nrd = 2 + 2 * ncbw + (1 if isA else 0)

    def mfmas(S):
        out = []
        for c in range(ncbw):
            for tbl in range(2):
                d = vr(acc(tbl, c), 16)
                if isA and c == 2:
                    out.append(f"{MFMA} {d}, {vr(xf(S, tbl), 4)}, {vr(wf(S, c), 4)}, {d}")
                else:
                    out.append(f"{MFMA} {d}, {vr(wf(S, c), 4)}, {vr(xf(S, tbl), 4)}, {d}")
        return out

    def gate_mfma(S):
        pass

    def set_stage_addrs():
        for s in range(4):
            a(f"v_add_u32 v{14+s}, s23, v{8+s}")
        a("v_add_u32 v18, s23, v12")

    GACC2 = GACC + 16
    if isA:
        for r in range(GACC2, GACC2 + 16):
            a(f"v_mov_b32 v{r}, 0")

    def all_mfmas(S):
        out = mfmas(S)
        if isA:
            out.append(f"{MFMA} {vr(GACC, 16)}, {vr(gf(S), 4)}, {vr(xf(S, 0), 4)}, {vr(GACC, 16)}")
            out.append(f"{MFMA} {vr(GACC2, 16)}, {vr(gf(S), 4)}, {vr(xf(S, 1), 4)}, {vr(GACC2, 16)}")
        return out

    def interleave(ms, others):
        n = len(ms)
        k = len(others)
        j = 0
        for i, m in enumerate(ms):
            a(m)
            while j < k and j * n < (i + 1) * k:
                for l in (others[j] if isinstance(others[j], list) else [others[j]]):
                    a(l)
                j += 1

    a("s_mov_b32 s23, 0")
    a("s_mov_b32 s24, 0")
    set_stage_addrs()
    a(f"s_waitcnt vmcnt({2*ndma})")
    a("s_barrier")
    for l in reads(FA, 0):
        a(l)

    def body(with_dma):
        for l in reads(FB, 1):
            a(l)
        a(f"s_waitcnt lgkmcnt({nrd})")
        interleave(all_mfmas(FA), [])
        for l in reads(FA, 2):
            a(l)
        a(f"s_waitcnt lgkmcnt({nrd})")
        interleave(all_mfmas(FB), [])
        for l in reads(FB, 3):
            a(l)
        a(f"s_waitcnt lgkmcnt({nrd})")
        interleave(all_mfmas(FA), [])
        a("s_add_u32 s22, s21, s23")
        a(f"s_add_u32 s23, s23, {stage_bytes}")
        a(f"s_cmp_eq_u32 s23, {3*stage_bytes}")
        a("s_cselect_b32 s23, 0, s23")
        if isA:
            a("v_add_u32 v19, 128, v19")
        if with_dma:
            a(f"s_waitcnt vmcnt({ndma}) lgkmcnt(0)")
        else:
            a("s_waitcnt vmcnt(0) lgkmcnt(0)")
        set_stage_addrs()
        a("s_barrier")
        for l in reads(FA, 0):
            a(l)
        interleave(all_mfmas(FB), dma_list(22) if with_dma else [])
        if with_dma:
            dma_advance()
        a("s_add_u32 s24, s24, 1")

    a.label(f"{L}_loop1")
    body(True)
    a("s_cmp_lt_u32 s24, 5")
    a(f"s_cbranch_scc1 {L}_loop1")
    a.label(f"{L}_loop2")
    body(False)
    a("s_cmp_lt_u32 s24, 8")
    a(f"s_cbranch_scc1 {L}_loop2")
    a("s_waitcnt lgkmcnt(0)")
    a("s_nop 15")
    a("s_lshl_b32 s25, s31, 2")
    a("s_lshl_b32 s20, s36, 1")
    a("s_add_u32 s25, s25, s20")
    a("v_lshlrev_b32 v20, 4, v1                 ; lane*16")
    P = FA
    if isA:
        a("s_lshl_b32 s26, s32, 2")
        a("s_lshl_b32 s20, s37, 1")
        a("s_add_u32 s26, s26, s20                  ; h0")
        a(f"s_mov_b32 s27, {f32(QSCALE)}")
        for tbl in range(2):
            b = acc(tbl, 0)
            for r in range(16):
                a(f"v_mul_f32 v{b+r}, s27, v{b+r}")
            for u in range(2):
                p = P + 8 * tbl + 4 * u
                for j in range(4):
                    a(f"v_cvt_pk_bf16_f32 v{p+j}, v{b+8*u+2*j}, v{b+8*u+2*j+1}")
                a(f"s_add_u32 s20, s26, {u}")
                a("s_lshl_b32 s20, s20, 6")
                a("s_add_u32 s20, s20, s25")
                a(f"s_add_u32 s20, s20, {tbl}")
                a("s_lshl_b32 s20, s20, 10")
                a(f"s_add_u32 s20, s20, {WS_QF}")
                a(f"buffer_store_dwordx4 {vr(p, 4)}, v20, s[12:15], s20 offen")
        P2 = P + 16
        for tbl in range(2):
            b = acc(tbl, 1)
            for u in range(2):
                p = P2 + 8 * tbl + 4 * u
                for j in range(4):
                    a(f"v_cvt_pk_bf16_f32 v{p+j}, v{b+8*u+2*j}, v{b+8*u+2*j+1}")
                a(f"s_add_u32 s20, s26, {u}")
                a("s_lshl_b32 s20, s20, 7")
                a("s_add_u32 s20, s20, s25")
                a(f"s_add_u32 s20, s20, {tbl}")
                a("s_lshl_b32 s20, s20, 10")
                a(f"s_add_u32 s20, s20, {WS_KV}")
                a(f"buffer_store_dwordx4 {vr(p, 4)}, v20, s[12:15], s20 offen")
            for u in range(2):
                n = 21 + u
                a(f"v_mul_f32 v{n}, v{b+8*u}, v{b+8*u}")
                for r in range(1, 8):
                    a(f"v_fmac_f32 v{n}, v{b+8*u+r}, v{b+8*u+r}")
            a("s_nop 1")
            a("v_permlane32_swap_b32 v21, v22")
            a("s_nop 1")
            a("v_add_f32 v21, v21, v22")
            for sh in (8, 4, 2, 1):
                a("s_nop 1")
                a(f"v_max_f32_dpp v21, v21, v21 row_ror:{sh} row_mask:0xf bank_mask:0xf")
            a("s_nop 0")
            a("v_mov_b32 v22, v21")
            a("s_nop 1")
            a("v_permlane16_swap_b32 v21, v22")
            a("s_nop 1")
            a("v_max_f32 v21, v21, v22")
            a("v_lshlrev_b32 v23, 8, v6")
            a("s_lshl_b32 s20, s26, 6")
            a("s_add_u32 s20, s20, s25")
            a(f"s_add_u32 s20, s20, {tbl}")
            a("s_lshl_b32 s20, s20, 2")
            a(f"s_add_u32 s20, s20, {WS_KN}")
            a("s_mov_b32 exec_lo, 1")
            a("s_mov_b32 exec_hi, 1")
            a("buffer_store_dword v21, v23, s[12:15], s20 offen")
            a("s_mov_b64 exec, -1")
        a("v_bfe_u32 v21, v1, 4, 1")
        a("v_lshlrev_b32 v21, 17, v21")
        a("v_lshl_add_u32 v21, v6, 8, v21")
        a("v_and_b32 v22, 15, v1")
        a("v_lshl_add_u32 v21, v22, 4, v21")
        P3 = P + 32
        for tbl in range(2):
            b = acc(tbl, 2)
            a("s_lshl_b32 s20, s26, 7")
            a("s_add_u32 s20, s20, s25")
            a(f"s_add_u32 s20, s20, {tbl}")
            a("s_lshl_b32 s20, s20, 10")
            a(f"s_add_u32 s20, s20, {WS_KV + 65536}")
            for t in range(2):
                p = P3 + 8 * tbl + 4 * t
                for j in range(4):
                    a(f"v_cvt_pk_bf16_f32 v{p+j}, v{b+8*t+2*j}, v{b+8*t+2*j+1}")
                a(f"buffer_store_dwordx4 {vr(p, 4)}, v21, s[12:15], s20 offen offset:{t*512}")
        a("s_or_b32 s20, s32, s37")
        a("s_cmp_lg_u32 s20, 0")
        a(f"s_cbranch_scc1 {L}_done")
        a("v_lshlrev_b32 v22, 2, v1")
        a("s_lshl_b32 s20, s25, 7")
        a(f"s_add_u32 s20, s20, {WS_G}")
        a("s_mov_b32 exec_hi, 0")
        a(f"buffer_store_dword v{GACC}, v22, s[12:15], s20 offen")
        a(f"buffer_store_dword v{GACC2}, v22, s[12:15], s20 offen offset:128")
        a("s_mov_b64 exec, -1")
        a.label(f"{L}_done")
    else:
        a("s_lshl_b32 s26, s32, 4")
        a("s_lshl_b32 s20, s37, 3")
        a("s_add_u32 s26, s26, s20")
        k = 0
        for tbl in range(2):
            a(f"s_add_u32 s20, s25, {tbl}")
            a("s_mul_i32 s20, s20, 112")
            a("s_add_u32 s20, s20, s26")
            a("s_lshl_b32 s20, s20, 10")
            a(f"s_add_u32 s20, s20, {WS_HF}")
            a("s_add_u32 s27, s20, 4096")
            for c in range(4):
                b = acc(tbl, c)
                for r in range(16):
                    a(f"v_max_f32 v{b+r}, 0, v{b+r}")
                for r in range(16):
                    a(f"v_mul_f32 v{b+r}, v{b+r}, v{b+r}")
                for u in range(2):
                    p = P + 4 * (k % 12)
                    k += 1
                    for j in range(4):
                        a(f"v_cvt_pk_bf16_f32 v{p+j}, v{b+8*u+2*j}, v{b+8*u+2*j+1}")
                    so = "s20" if c < 2 else "s27"
                    a(f"buffer_store_dwordx4 {vr(p, 4)}, v20, s[12:15], {so} offen offset:{((c % 2)*2 + u)*1024}")
    a("s_endpgm")


def gen_k1_relayout(a):
    srd(a, 8, 44, 524288)
    srd(a, 16, 52, 1835008)
    a("s_sub_u32 s31, s29, 30")
    a("s_lshl_b32 s20, s28, 1")
    a("s_add_u32 s31, s31, s20                  ; i")
    a("s_mul_i32 s31, s31, 9                    ; ks0")
    a("v_lshrrev_b32 v5, 2, v1")
    a("v_and_b32 v6, 3, v1")
    a("v_lshlrev_b32 v5, 10, v5")
    a("v_lshl_add_u32 v4, v6, 4, v5")
    a("s_mul_i32 s21, s30, 36864")
    a("s_lshl_b32 s22, s30, 8")
    for kk in range(9):
        a(f"s_add_u32 s23, s31, {kk}")
        a("s_cmp_ge_u32 s23, 32")
        a(f"s_cbranch_scc1 k1C_w2_{kk}")
        a("s_lshl_b32 s24, s23, 14")
        a("s_add_u32 s24, s24, s22")
        for c in range(4):
            a(f"s_add_u32 m0, s21, {(kk*4 + c)*1024}")
            a(f"s_add_u32 s20, s24, {c*64}")
            a("buffer_load_dwordx4 v4, s[8:11], s20 offen lds")
        a(f"s_branch k1C_n_{kk}")
        a.label(f"k1C_w2_{kk}")
        a("s_sub_u32 s24, s23, 32")
        a("s_lshl_b32 s24, s24, 14")
        a("s_add_u32 s24, s24, s22")
        for c in range(4):
            a(f"s_add_u32 m0, s21, {(kk*4 + c)*1024}")
            a(f"s_add_u32 s20, s24, {c*64}")
            a("buffer_load_dwordx4 v4, s[16:19], s20 offen lds")
        a.label(f"k1C_n_{kk}")
    a("v_lshrrev_b32 v6, 5, v1")
    a("v_bfe_u32 v13, v1, 2, 2")
    a("v_lshl_add_u32 v13, v6, 2, v13")
    a("v_lshlrev_b32 v13, 6, v13")
    a("v_bfe_u32 v14, v1, 4, 1")
    a("v_lshl_add_u32 v13, v14, 5, v13")
    a("v_and_b32 v14, 3, v1")
    a("v_lshl_add_u32 v13, v14, 3, v13")
    a("v_add_u32 v13, s21, v13")
    a("v_lshlrev_b32 v20, 4, v1")
    a("s_mul_i32 s24, s30, 576")
    a("s_add_u32 s24, s24, s31")
    a("s_lshl_b32 s24, s24, 10")
    a(f"s_add_u32 s24, s24, {WS_WF}")
    a("s_waitcnt vmcnt(0)")
    for kk in range(9):
        for c in range(4):
            d = 24 + 4 * ((kk * 4 + c))
            a(f"ds_read_b64_tr_b16 {vr(d, 2)}, v13 offset:{(kk*4+c)*1024}")
            a(f"ds_read_b64_tr_b16 {vr(d+2, 2)}, v13 offset:{(kk*4+c)*1024 + 512}")
        a("s_waitcnt lgkmcnt(0)")
        for c in range(4):
            d = 24 + 4 * ((kk * 4 + c))
            a(f"s_add_u32 s20, s24, {(c*144 + kk)*1024}")
            a(f"buffer_store_dwordx4 {vr(d, 4)}, v20, s[12:15], s20 offen")
    a("s_endpgm")


K2_R = 131072
K2_FLAGS = 147456
K2_LDS = 147456 + 64


def gen_k2(a):
    a.raw(".p2align 8")
    a.label("k2_kernel")
    a("s_cmp_ge_u32 s2, 256")
    a("s_cbranch_scc1 k2_exit")
    a("s_load_dwordx2 s[56:57], s[0:1], 88     ; ws")
    a("v_and_b32 v1, 63, v0                    ; lane")
    a("v_lshrrev_b32 v2, 6, v0                 ; wave")
    a("s_and_b32 s28, s2, 7")
    a("v_readfirstlane_b32 s30, v2")
    a("s_lshr_b32 s29, s2, 3                   ; idx")
    a("v_lshlrev_b32 v3, 4, v1                 ; lane*16")
    a("s_waitcnt lgkmcnt(0)")
    srd(a, 12, 56, WS_SIZE)
    a("s_cmp_ge_u32 s30, 8")
    a("s_cbranch_scc1 k2_ffn")
    gen_k2_attn(a)
    a.label("k2_ffn")
    gen_k2_ffn(a)
    a.label("k2_exit")
    a("s_endpgm")


def gen_k2_attn(a):
    a("s_lshl_b32 s31, s28, 2")
    a("s_lshr_b32 s20, s29, 3")
    a("s_add_u32 s31, s31, s20                  ; h")
    a("s_and_b32 s32, s29, 7                    ; q chunk")
    a("s_lshl_b32 s21, s30, 13                  ; w*8192")
    a("s_lshl_b32 s22, s31, 17")
    a(f"s_add_u32 s22, s22, {WS_KV}")
    a("s_add_u32 s22, s22, s21")
    for part in range(4):
        off = (part & 1) * 4096 + (part >> 1) * 65536
        a(f"s_add_u32 m0, s21, {off}")
        a(f"s_add_u32 s20, s22, {off}")
        for i in range(4):
            a(f"buffer_load_dwordx4 v3, s[12:15], s20 offen offset:{i*1024} lds")
    Q, NM, S0, S1, P, O, K0, K1, V0, V1 = 8, 12, 28, 44, 60, 68, 84, 88, 92, 100
    KA, KAN, VA, VAN = 108, 109, 110, 111
    a("s_lshl_b32 s33, s32, 3")
    a("s_add_u32 s33, s33, s30                  ; tb")
    a("s_lshl_b32 s20, s31, 6")
    a("s_add_u32 s20, s20, s33")
    a("s_lshl_b32 s20, s20, 10")
    a(f"s_add_u32 s20, s20, {WS_QF}")
    a(f"buffer_load_dwordx4 {vr(Q, 4)}, v3, s[12:15], s20 offen")
    a("v_lshlrev_b32 v4, 2, v1")
    a("s_lshl_b32 s20, s31, 8")
    a(f"s_add_u32 s20, s20, {WS_KN}")
    a("buffer_load_dword v5, v4, s[12:15], s20 offen")
    a("s_barrier")
    a("v_and_b32 v6, 31, v1                     ; m")
    a("v_and_b32 v7, 27, v1                     ; m & ~4")
    a("v_cmp_eq_u32 vcc, 16, v7")
    a("v_mov_b32 v4, 0x3f803f80")
    a("s_nop 0")
    a("v_cndmask_b32 v4, 0, v4, vcc")
    for r in range(V0, V0 + 16):
        a(f"v_mov_b32 v{r}, v4")
    a(f"v_add_u32 v{KA}, s21, v3")
    a("v_lshrrev_b32 v7, 5, v1")
    a("v_lshlrev_b32 v7, 8, v7")
    a("v_lshl_add_u32 v7, v6, 4, v7")
    a("s_add_u32 s20, s21, 65536")
    a(f"v_add_u32 v{VA}, s20, v7")
    a("s_mov_b32 s34, 0xffff")
    a("s_mov_b32 s35, 0xffff")
    a("s_mov_b32 s36, 0")
    a("s_waitcnt vmcnt(0)")
    a(f"v_mov_b32 v4, {K2_FLAGS}")
    a("v_mov_b32 v6, 1")
    a("s_mov_b64 exec, 1")
    a("ds_add_u32 v4, v6")
    a("s_mov_b64 exec, -1")
    for sh in (8, 4, 2, 1):
        a("s_nop 1")
        a(f"v_max_f32_dpp v5, v5, v5 row_ror:{sh} row_mask:0xf bank_mask:0xf")
    a("s_nop 0")
    a("v_mov_b32 v6, v5")
    a("s_nop 1")
    a("v_permlane16_swap_b32 v5, v6")
    a("s_nop 1")
    a("v_max_f32 v5, v5, v6")
    a("v_mov_b32 v6, v5")
    a("s_nop 1")
    a("v_permlane32_swap_b32 v5, v6")
    a("s_nop 1")
    a("v_max_f32 v5, v5, v6                     ; max |k|^2")
    a("v_mov_b32 v6, 0")
    for j in range(4):
        a(f"v_lshlrev_b32 v7, 16, v{Q+j}")
        a("v_fmac_f32 v6, v7, v7")
        a(f"v_and_b32 v7, 0xffff0000, v{Q+j}")
        a("v_fmac_f32 v6, v7, v7")
    a("v_mov_b32 v7, v6")
    a("s_nop 1")
    a("v_permlane32_swap_b32 v6, v7")
    a("s_nop 1")
    a("v_add_f32 v6, v6, v7")
    a("v_mul_f32 v6, v6, v5")
    a("v_sqrt_f32 v6, v6")
    a("s_nop 0")
    a(f"v_mul_f32 v6, {f32(-1.02)}, v6")
    for r in range(16):
        a(f"v_mov_b32 v{NM+r}, v6")

    a.label("k2a_start")
    for r in range(16):
        a(f"v_mov_b32 v{O+r}, 0")
    a("s_mov_b32 s37, 0")
    def next_addrs():
        a(f"v_add_u32 v{KAN}, 0x2000, v{KA}")
        a(f"v_and_b32 v{KAN}, 0xffff, v{KAN}")
        a(f"v_add_u32 v{VAN}, 0x2000, v{VA}")
        a(f"v_and_b32 v{VAN}, 0xffff, v{VAN}")
        a(f"v_or_b32 v{VAN}, 0x10000, v{VAN}")
    next_addrs()
    Kb = [K0, K1]
    Vb = [V0, V1]
    Sb = [S0, S1]
    a(f"ds_read_b128 {vr(K0, 4)}, v{KA}")
    a(f"ds_read_b128 {vr(K1, 4)}, v{KA} offset:1024")
    a("s_mov_b64 exec, s[34:35]")
    a(f"ds_read_b128 {vr(V0, 4)}, v{VA}")
    a(f"ds_read_b128 {vr(V0+4, 4)}, v{VA} offset:512")
    a("s_mov_b64 exec, -1")
    a("s_waitcnt lgkmcnt(3)")
    a(f"{MFMA} {vr(S0, 16)}, {vr(K0, 4)}, {vr(Q, 4)}, {vr(NM, 16)}")
    a("s_nop 7")
    a.raw(".p2align 6")
    a.label("k2a_loop")
    for u in range(8):
        cur, nxt = u & 1, (u + 1) & 1
        if u == 6:
            a("s_cmp_lg_u32 s37, 0")
            a("s_cbranch_scc1 k2a_ready")
            a(f"v_mov_b32 v4, {K2_FLAGS}")
            a.label("k2a_poll")
            a("ds_read_b32 v5, v4")
            a("s_waitcnt lgkmcnt(0)")
            a("v_readfirstlane_b32 s20, v5")
            a("s_nop 3")
            a("s_cmp_ge_u32 s20, 8")
            a("s_cbranch_scc1 k2a_ready")
            a("s_sleep 1")
            a("s_branch k2a_poll")
            a.label("k2a_ready")
        a("s_waitcnt lgkmcnt(2)")
        a(f"{MFMA} {vr(Sb[nxt], 16)}, {vr(Kb[nxt], 4)}, {vr(Q, 4)}, {vr(NM, 16)}")
        if u + 2 < 8:
            a(f"ds_read_b128 {vr(Kb[cur], 4)}, v{KA} offset:{(u+2)*1024}")
        else:
            a(f"ds_read_b128 {vr(Kb[cur], 4)}, v{KAN} offset:{(u+2-8)*1024}")
        a("s_mov_b64 exec, s[34:35]")
        va, vo = (VA, (u + 1) * 1024) if u + 1 < 8 else (VAN, 0)
        a(f"ds_read_b128 {vr(Vb[nxt], 4)}, v{va} offset:{vo}")
        a(f"ds_read_b128 {vr(Vb[nxt]+4, 4)}, v{va} offset:{vo+512}")
        a("s_mov_b64 exec, -1")
        S = Sb[cur]
        for r in range(8):
            a(f"v_exp_f32 v{S+r}, v{S+r}")
        for j in range(4):
            a(f"v_cvt_pk_bf16_f32 v{P+j}, v{S+2*j}, v{S+2*j+1}")
        for r in range(8, 10):
            a(f"v_exp_f32 v{S+r}, v{S+r}")
        a("s_waitcnt lgkmcnt(3)")
        a(f"{MFMA} {vr(O, 16)}, {vr(Vb[cur], 4)}, {vr(P, 4)}, {vr(O, 16)}")
        for r in range(10, 16):
            a(f"v_exp_f32 v{S+r}, v{S+r}")
        for j in range(4, 8):
            a(f"v_cvt_pk_bf16_f32 v{P+j}, v{S+2*j}, v{S+2*j+1}")
        if u == 7:
            a(f"v_mov_b32 v{KA}, v{KAN}")
            a(f"v_mov_b32 v{VA}, v{VAN}")
        else:
            a("s_nop 1")
        a(f"{MFMA} {vr(O, 16)}, {vr(Vb[cur]+4, 4)}, {vr(P+4, 4)}, {vr(O, 16)}")
    next_addrs()
    a("s_add_u32 s37, s37, 1")
    a("s_cmp_lt_u32 s37, 8")
    a("s_cbranch_scc1 k2a_loop")
    a("s_waitcnt lgkmcnt(0)")
    a("s_nop 15")
    a("s_cmp_lg_u32 s36, 0")
    a("s_cbranch_scc1 k2a_fin")
    a(f"v_cmp_gt_f32 vcc, {f32(2.0**-60)}, v{O+8}")
    a("s_nop 4")
    a("s_cbranch_vccz k2a_fin")
    a("s_mov_b32 s36, 1")
    a(f"v_mov_b32 v6, {f32(-3.0e38)}")
    a("s_mov_b32 s37, 0")
    a("v_mov_b32 v7, v3")
    a.label("k2a_mx")
    a(f"ds_read_b128 {vr(K0, 4)}, v7")
    a("s_waitcnt lgkmcnt(0)")
    a(f"{MFMA} {vr(S0, 16)}, {vr(K0, 4)}, {vr(Q, 4)}, 0")
    a("s_nop 15")
    for r in range(0, 16, 2):
        a(f"v_max3_f32 v6, v6, v{S0+r}, v{S0+r+1}")
    a("v_add_u32 v7, 1024, v7")
    a("s_add_u32 s37, s37, 1")
    a("s_cmp_lt_u32 s37, 64")
    a("s_cbranch_scc1 k2a_mx")
    a("v_mov_b32 v7, v6")
    a("s_nop 1")
    a("v_permlane32_swap_b32 v6, v7")
    a("s_nop 1")
    a("v_max_f32 v6, v6, v7")
    a("v_sub_f32 v6, 0, v6")
    for r in range(16):
        a(f"v_mov_b32 v{NM+r}, v6")
    a("s_branch k2a_start")
    a.label("k2a_fin")
    a(f"v_rcp_f32 v6, v{O+8}")
    a("s_nop 0")
    for r in range(8):
        a(f"v_mul_f32 v{O+r}, v{O+r}, v6")
    for j in range(4):
        a(f"v_cvt_pk_bf16_f32 v{P+j}, v{O+2*j}, v{O+2*j+1}")
    a("s_lshl_b32 s20, s33, 5")
    a("s_add_u32 s20, s20, s31")
    a("s_lshl_b32 s20, s20, 10")
    a(f"s_add_u32 s20, s20, {WS_OF}")
    a(f"buffer_store_dwordx4 {vr(P, 4)}, v3, s[12:15], s20 offen")
    a("s_endpgm")


def gen_k2_ffn(a):
    a("s_setprio 2")
    a("s_sub_u32 s30, s30, 8                    ; j")
    a("s_lshl_b32 s31, s28, 2")
    a("s_lshr_b32 s20, s29, 3")
    a("s_add_u32 s31, s31, s20                  ; rb")
    a("s_and_b32 s32, s29, 7                    ; cp")
    a(f"v_lshlrev_b32 v4, 2, v1")
    a(f"v_add_u32 v4, {K2_FLAGS}, v4")
    a("v_mov_b32 v5, 0")
    a("s_mov_b64 exec, 0xffff")
    a("ds_write_b32 v4, v5")
    a("s_mov_b64 exec, -1")
    a("s_mul_i32 s21, s30, 28")
    a("s_mul_i32 s22, s31, 224")
    a("s_add_u32 s22, s22, s21")
    a("s_lshl_b32 s22, s22, 10")
    a(f"s_add_u32 s22, s22, {WS_HF}")
    a(f"s_add_u32 s23, s22, {112*1024}")
    a("s_mul_i32 s24, s32, 288")
    a("s_add_u32 s24, s24, s21")
    a("s_lshl_b32 s24, s24, 10")
    a(f"s_add_u32 s24, s24, {WS_WF + 32*1024}")
    a(f"s_add_u32 s25, s24, {144*1024}")
    ACC = 8
    F = 72
    def ld(u):
        b = F + 16 * u
        for i, s in enumerate((22, 23, 24, 25)):
            a(f"buffer_load_dwordx4 {vr(b+4*i, 4)}, v3, s[12:15], s{s} offen offset:{u*1024}")
    def adv():
        for s in (22, 23, 24, 25):
            a(f"s_add_u32 s{s}, s{s}, 4096")
    for u in range(4):
        ld(u)
    adv()
    a("s_waitcnt lgkmcnt(0)")
    a("s_barrier")
    for r in range(ACC, ACC + 64):
        a(f"v_mov_b32 v{r}, 0")
    a("s_mov_b32 s37, 0")
    a.label("k2f_loop")
    for u in range(4):
        b = F + 16 * u
        a("s_waitcnt vmcnt(12)")
        for cbl in range(2):
            for tbl in range(2):
                d = vr(ACC + 16 * (tbl * 2 + cbl), 16)
                a(f"{MFMA} {d}, {vr(b + 8 + 4*cbl, 4)}, {vr(b + 4*tbl, 4)}, {d}")
        ld(u)
    adv()
    a("s_add_u32 s37, s37, 1")
    a("s_cmp_lt_u32 s37, 7")
    a("s_cbranch_scc1 k2f_loop")
    a("s_waitcnt vmcnt(0)")
    a("s_nop 15")
    a(f"v_add_u32 v4, {K2_R}, v3                 ; R + lane*16")
    a("s_cmp_eq_u32 s30, 3")
    a("s_cbranch_scc1 k2f_put")
    a("s_lshl_b32 s20, s30, 2")
    a(f"s_add_u32 s20, s20, {K2_FLAGS + 16}")
    a("v_mov_b32 v5, s20")
    a.label("k2f_poll")
    a("ds_read_b32 v6, v5")
    a("s_waitcnt lgkmcnt(0)")
    a("v_readfirstlane_b32 s20, v6")
    a("s_nop 3")
    a("s_cmp_lg_u32 s20, 0")
    a("s_cbranch_scc1 k2f_got")
    a("s_sleep 2")
    a("s_branch k2f_poll")
    a.label("k2f_got")
    for q in range(16):
        a(f"ds_read_b128 {vr(F + 4*q, 4)}, v4 offset:{q*1024}")
    a("s_waitcnt lgkmcnt(0)")
    for r in range(64):
        a(f"v_add_f32 v{ACC+r}, v{ACC+r}, v{F+r}")
    a("s_cmp_eq_u32 s30, 0")
    a("s_cbranch_scc1 k2f_out")
    a.label("k2f_put")
    for q in range(16):
        a(f"ds_write_b128 v4, {vr(ACC + 4*q, 4)} offset:{q*1024}")
    a("s_lshl_b32 s20, s30, 2")
    a(f"s_add_u32 s20, s20, {K2_FLAGS + 12}")
    a("v_mov_b32 v5, s20")
    a("v_mov_b32 v6, 1")
    a("s_waitcnt lgkmcnt(0)")
    a("ds_write_b32 v5, v6")
    a("s_waitcnt lgkmcnt(0)")
    a("s_endpgm")
    a.label("k2f_out")
    for tbl in range(2):
        a("s_lshl_b32 s20, s31, 1")
        a(f"s_add_u32 s20, s20, {tbl}")
        a("s_lshl_b32 s20, s20, 4")
        a("s_lshl_b32 s21, s32, 1")
        a("s_add_u32 s20, s20, s21")
        a("s_lshl_b32 s20, s20, 12")
        a(f"s_add_u32 s20, s20, {WS_BP}")
        a("s_add_u32 s21, s20, 4096")
        for cbl in range(2):
            for q in range(4):
                b = ACC + 16 * (tbl * 2 + cbl) + 4 * q
                a(f"buffer_store_dwordx4 {vr(b, 4)}, v3, s[12:15], s{20+cbl} offen offset:{q*1024}")
    a("s_endpgm")


K3_LDS = 65536


def gen_k3(a):
    a.raw(".p2align 8")
    a.label("k3_kernel")
    a("s_cmp_ge_u32 s2, 256")
    a("s_cbranch_scc1 k3_exit")
    a("s_load_dwordx2 s[52:53], s[0:1], 56     ; b2")
    a("s_load_dwordx2 s[54:55], s[0:1], 72     ; out")
    a("s_load_dwordx2 s[56:57], s[0:1], 88     ; ws")
    a("v_and_b32 v1, 63, v0                    ; lane")
    a("v_lshrrev_b32 v2, 6, v0                 ; wave")
    a("s_and_b32 s28, s2, 7")
    a("v_readfirstlane_b32 s30, v2")
    a("s_lshr_b32 s29, s2, 3")
    a("v_lshlrev_b32 v3, 4, v1                 ; lane*16")
    a("s_lshl_b32 s31, s28, 2")
    a("s_lshr_b32 s20, s29, 3")
    a("s_add_u32 s31, s31, s20                  ; rb")
    a("s_and_b32 s32, s29, 7                    ; cp")
    a("s_waitcnt lgkmcnt(0)")
    srd(a, 12, 56, WS_SIZE)
    srd(a, 4, 52, 1024)
    srd(a, 8, 54, 2097152)
    a("s_lshl_b32 s21, s30, 3")
    a("s_lshl_b32 s22, s31, 6")
    a("s_add_u32 s22, s22, s21")
    a("s_lshl_b32 s22, s22, 10")
    a(f"s_add_u32 s22, s22, {WS_OF}")
    a(f"s_add_u32 s23, s22, {32*1024}")
    a("s_mul_i32 s24, s32, 288")
    a("s_add_u32 s24, s24, s21")
    a("s_lshl_b32 s24, s24, 10")
    a(f"s_add_u32 s24, s24, {WS_WF}")
    a(f"s_add_u32 s25, s24, {144*1024}")
    ACC = 8
    F = 72
    X = 200
    for half in range(2):
        for u in range(4):
            b = F + 16 * (half * 4 + u)
            for i, s in enumerate((22, 23, 24, 25)):
                a(f"buffer_load_dwordx4 {vr(b+4*i, 4)}, v3, s[12:15], s{s} offen offset:{u*1024}")
        if half == 0:
            for s in (22, 23, 24, 25):
                a(f"s_add_u32 s{s}, s{s}, 4096")
    a("s_and_b32 s33, s30, 1")
    a("s_lshr_b32 s34, s30, 1")
    a("s_lshl_b32 s35, s31, 1")
    a("s_add_u32 s35, s35, s34                  ; tb")
    a("s_lshl_b32 s36, s32, 1")
    a("s_add_u32 s36, s36, s33                  ; cb")
    a("s_lshl_b32 s20, s35, 4")
    a("s_add_u32 s20, s20, s36")
    a("s_lshl_b32 s20, s20, 12")
    a(f"s_add_u32 s20, s20, {WS_BP}")
    for q in range(4):
        a(f"buffer_load_dwordx4 {vr(X+4*q, 4)}, v3, s[12:15], s20 offen offset:{q*1024}")
    a("v_lshrrev_b32 v6, 5, v1                  ; hh")
    a("v_and_b32 v5, 31, v1                     ; t")
    a("v_lshlrev_b32 v7, 3, v6")
    a("s_lshl_b32 s20, s36, 6")
    for q in range(4):
        a(f"buffer_load_dwordx2 {vr(X+16+2*q, 2)}, v7, s[4:7], s20 offen offset:{q*16}")
    a("v_lshlrev_b32 v7, 2, v5")
    a("s_lshl_b32 s20, s35, 7")
    a(f"s_add_u32 s20, s20, {WS_G}")
    a(f"buffer_load_dword v{X+24}, v7, s[12:15], s20 offen")
    for r in range(ACC, ACC + 64):
        a(f"v_mov_b32 v{r}, 0")
    for k in range(8):
        b = F + 16 * k
        a(f"s_waitcnt vmcnt({9 + 4*(7-k)})")
        for cbl in range(2):
            for tbl in range(2):
                d = vr(ACC + 16 * (tbl * 2 + cbl), 16)
                a(f"{MFMA} {d}, {vr(b + 8 + 4*cbl, 4)}, {vr(b + 4*tbl, 4)}, {d}")
    a("s_nop 15")
    a("s_lshl_b32 s20, s30, 12")
    a("v_add_u32 v4, s20, v3")
    for t in range(4):
        for q in range(4):
            a(f"ds_write_b128 v4, {vr(ACC + 16*t + 4*q, 4)} offset:{t*16384 + q*1024}")
    a("s_lshl_b32 s20, s30, 14")
    a("v_add_u32 v4, s20, v3")
    a("s_waitcnt lgkmcnt(0)")
    a("s_barrier")
    for w in range(4):
        for q in range(4):
            a(f"ds_read_b128 {vr(F + 16*w + 4*q, 4)}, v4 offset:{w*4096 + q*1024}")
    a("s_waitcnt vmcnt(0)")
    G = X + 24
    a(f"v_mul_f32 v{G}, {f32(-LOG2E)}, v{G}")
    a(f"v_exp_f32 v{G}, v{G}")
    a("s_nop 0")
    a(f"v_add_f32 v{G}, 1.0, v{G}")
    a(f"v_rcp_f32 v{G}, v{G}")
    a("s_nop 0")
    a(f"v_sub_f32 v{G+1}, 1.0, v{G}")
    for q in range(4):
        d = X + 16 + 2 * q
        a(f"v_lshlrev_b32 v{G+2}, 16, v{d}")
        a(f"v_add_f32 v{X+4*q}, v{X+4*q}, v{G+2}")
        a(f"v_and_b32 v{G+2}, 0xffff0000, v{d}")
        a(f"v_add_f32 v{X+4*q+1}, v{X+4*q+1}, v{G+2}")
        a(f"v_lshlrev_b32 v{G+2}, 16, v{d+1}")
        a(f"v_add_f32 v{X+4*q+2}, v{X+4*q+2}, v{G+2}")
        a(f"v_and_b32 v{G+2}, 0xffff0000, v{d+1}")
        a(f"v_add_f32 v{X+4*q+3}, v{X+4*q+3}, v{G+2}")
    for r in range(16):
        a(f"v_mul_f32 v{X+r}, v{X+r}, v{G+1}")
    a("s_waitcnt lgkmcnt(0)")
    for r in range(16):
        a(f"v_add_f32 v{F+r}, v{F+r}, v{F+16+r}")
        a(f"v_add_f32 v{F+32+r}, v{F+32+r}, v{F+48+r}")
    for r in range(16):
        a(f"v_add_f32 v{F+r}, v{F+r}, v{F+32+r}")
    for r in range(16):
        a(f"v_fma_f32 v{X+r}, v{F+r}, v{G}, v{X+r}")
    P = ACC
    for j in range(8):
        a(f"v_cvt_pk_bf16_f32 v{P+j}, v{X+2*j}, v{X+2*j+1}")
    a("s_nop 1")
    for pa in (0, 2):
        a(f"v_permlane32_swap_b32 v{P+2*pa}, v{P+2*pa+2}")
        a(f"v_permlane32_swap_b32 v{P+2*pa+1}, v{P+2*pa+3}")
    a("v_lshlrev_b32 v7, 10, v5")
    a("v_lshl_add_u32 v7, v6, 4, v7")
    a("s_lshl_b32 s20, s35, 15")
    a("s_lshl_b32 s21, s36, 6")
    a("s_add_u32 s20, s20, s21")
    a("s_nop 0")
    a(f"buffer_store_dwordx4 {vr(P, 4)}, v7, s[8:11], s20 offen")
    a(f"buffer_store_dwordx4 {vr(P+4, 4)}, v7, s[8:11], s20 offen offset:32")
    a.label("k3_exit")
    a("s_endpgm")


def kd(name, vgpr, sgpr=102):
    acc = (vgpr + 3) // 4 * 4
    return f""".amdhsa_kernel {name}
  .amdhsa_next_free_vgpr {vgpr}
  .amdhsa_next_free_sgpr {sgpr}
  .amdhsa_accum_offset {acc}
  .amdhsa_group_segment_fixed_size 0
  .amdhsa_kernarg_size 96
  .amdhsa_user_sgpr_count 2
  .amdhsa_user_sgpr_kernarg_segment_ptr 1
  .amdhsa_system_sgpr_workgroup_id_x 1
.end_amdhsa_kernel
"""


def main(path):
    a = Asm()
    hdr = f"""; gated_mix: MHA block + squared-relu FFN, gated mix.  Generated by gen/gen1.py
; @launch kernel=k1_kernel grid=(256,1,1) block=(256,1,1) lds={K1_LDS}
; @launch kernel=k2_kernel grid=(256,1,1) block=(768,1,1) lds={K2_LDS}
; @launch kernel=k3_kernel grid=(256,1,1) block=(256,1,1) lds={K3_LDS}
.amdgcn_target "amdgcn-amd-amdhsa--gfx950"
.text
"""
    gen_k1(a)
    gen_k2(a)
    gen_k3(a)
    tail = '.section .rodata,"a"\n.p2align 6\n' + kd("k1_kernel", 256) + ".p2align 6\n" + kd("k2_kernel", 136) + ".p2align 6\n" + kd("k3_kernel", 232)
    open(path, "w").write(hdr + a.text() + tail)


if __name__ == "__main__":
    main(sys.argv[1] if len(sys.argv) > 1 else f"cdna_kernels/{NAME}.s")
```

```python
import struct, math, sys, os

NAME = "gated_mix__mha_block__dense_activation_squared_relu__prompt"

WS_QF = 0x000000
WS_KV = 0x200000
WS_OF = 0x600000
WS_HF = 0x800000
WS_G = 0xF02000
WS_FL = 0xF04000
WS_FKV = WS_FL
WS_FH = WS_FL + 16384
WS_SIZE = 0xF0C000
NRESET = 32

QSCALE = 0.25 * math.log2(math.e)
LOG2E = math.log2(math.e)
PROF = int(os.environ.get("PROF", "0"))
WS_PROF = 0x2000000
if PROF:
    WS_SIZE = 0x2400000
SPIN_MAX = 1 << 15
MFMA = "v_mfma_f32_32x32x16_bf16"

STG = 28672
L_FLAGS = 143360
L_F7 = 147456
LDS_BYTES = 163840
def g_stage(j):
    return (131072, 131072 + 6144, 147456, 147456 + 6144)[j]


def f32(x):
    return "0x%08x" % struct.unpack("<I", struct.pack("<f", x))[0]


class Asm:
    def __init__(self):
        self.lines = []

    def __call__(self, s):
        for l in s.strip("\n").split("\n"):
            self.lines.append("    " + l.strip())

    def label(self, l):
        self.lines.append(l + ":")

    def raw(self, s):
        self.lines.append(s)

    def text(self):
        return "\n".join(self.lines) + "\n"


class VM:
    def __init__(self, cnt="vmcnt", mx=63):
        self.q = []
        self.cnt, self.mx = cnt, mx

    def op(self, tag, n=1):
        self.q += [tag] * n

    def wait(self, a, *tags):
        idx = [i for i, t in enumerate(self.q) if t in tags]
        if not idx:
            return
        n = len(self.q) - 1 - max(idx)
        a(f"s_waitcnt {self.cnt}({min(n, self.mx)})")
        self.q = self.q[max(idx) + 1:]

    def clear(self):
        self.q = []


L_BIAS = L_FLAGS + 256
W1_PAGES = {8: (21, 22, 23, 24), 9: (25, 26, 27, 28), 10: (29, 30, 31, 32), 11: (33, 34, 0, 1),
            12: (2, 3, 4, 5), 13: (6, 7, 8, 9), 14: (10, 11, 12, 13), 15: (36, 37, 38, 39)}
PLANS = {
    "a": {-1: [0, 1], 0: [2], 1: [3], 2: [4], 3: [5], 4: [6], 5: [7], 6: [8], 7: [9, "b", "c"], 8: [10, 11, 12, 13, 14, 15]},
    "b": {-1: [0, 1], 0: [2], 1: [3], 2: [4], 3: [5], 4: [6], 5: [7], 6: [8], 7: [9, "b", "c", 10, 11], 8: [12, 13, 14, 15]},
    "c": {-1: [0, 1], 0: [2], 1: [3], 2: [4], 3: [5], 4: [6], 5: [7], 6: [8, 9], 7: ["b", "c", 10, 11, 12], 8: [13, 14, 15]},
}
PLAN = PLANS[os.environ.get("PLAN", "a")]
NEED = {8: (8, 9, "b", "c")}
KV_PAGE = (14, 0, 18, 4, 22, 8, 26, 30)
KV_TBL_LO = sum(KV_PAGE[i] << (8 * i) for i in range(4))
KV_TBL_HI = sum(KV_PAGE[4 + i] << (8 * i) for i in range(4))
F_KVL, F_F7, F_C10, F_C14, F_FULL, F_ACK, F_AD, F_W1, F_ST, F_HS, F_W1B = 0, 4, 8, 12, 16, 32, 48, 52, 56, 60, 64
PSLEEP = int(os.environ.get("PSLEEP", "6"))
HSLEEP = int(os.environ.get("HSLEEP", "24"))
WARM2 = int(os.environ.get("WARM2", "1"))
ADN = int(os.environ.get("ADN", "4"))
PDELAY = int(os.environ.get("PDELAY", "0"))
HDELAY = int(os.environ.get("HDELAY", "1"))


PK = os.environ.get("PK", "abcd")
def vadd16(a, dst, src, tag):
    if tag in PK:
        for i in range(0, 16, 2):
            a(f"v_pk_add_f32 {vr(dst+i, 2)}, {vr(dst+i, 2)}, {vr(src+i, 2)}")
    else:
        for i in range(16):
            a(f"v_add_f32 v{dst+i}, v{dst+i}, v{src+i}")


def vscale16(a, dst, sreg, tag):
    if tag in PK:
        a(f"v_mov_b32 v{sreg+1}, v{sreg}")
        for i in range(0, 16, 2):
            a(f"v_pk_mul_f32 {vr(dst+i, 2)}, {vr(dst+i, 2)}, {vr(sreg, 2)}")
    else:
        for i in range(16):
            a(f"v_mul_f32 v{dst+i}, v{dst+i}, v{sreg}")


def vr(b, n):
    return f"v[{b}:{b+n-1}]" if n > 1 else f"v{b}"


def srd(a, d, base, size):
    a(f"s_mov_b32 s{d}, s{base}")
    a(f"s_and_b32 s{d+1}, s{base+1}, 0xffff")
    a(f"s_mov_b32 s{d+2}, {size}")
    a(f"s_mov_b32 s{d+3}, 0x00020000")


TIMER = "s_memtime" if os.environ.get("CYC") else "s_memrealtime"
NSTAMP = 14
def stamp(a, slot, mode=1):
    if not PROF or (mode != PROF and slot not in (1, NSTAMP - 1)):
        return
    a(f"{TIMER} s[92:93]")
    a("s_waitcnt lgkmcnt(0)")
    a(f"s_mov_b32 s{64+slot}, s92")


def init_stamps(a):
    if not PROF:
        return
    a("s_memtime s[94:95]")
    a(f"{TIMER} s[92:93]")
    a("s_waitcnt lgkmcnt(0)")
    a("s_mov_b32 s78, s94")
    for i in range(NSTAMP):
        a(f"s_mov_b32 s{64+i}, s92")


def dump_stamps(a):
    if not PROF:
        return
    a("s_memtime s[94:95]")
    stamp(a, NSTAMP - 1)
    a("s_mov_b32 s79, s94")
    a("v_lshrrev_b32 v2, 6, v0")
    a("v_lshlrev_b32 v2, 6, v2")
    a("s_lshl_b32 s20, s2, 10")
    a(f"s_add_u32 s20, s20, {WS_PROF}")
    a("s_mov_b64 exec, 1")
    for i in range(0, 16, 2):
        a(f"v_mov_b32 v4, s{64+i}")
        a(f"v_mov_b32 v5, s{65+i}")
        a(f"buffer_store_dwordx2 v[4:5], v2, s[12:15], s20 offen offset:{4*i}")
        a("s_nop 1")
    a("s_mov_b64 exec, -1")


P_X, P_WQKV, P_WO, P_BX, P_W1, P_B1, P_W2, P_B2, P_GATE, P_OUT, P_DBG, P_WS = [40 + 2 * i for i in range(12)]


def half_max(a, v, t):
    for sh in (8, 4, 2, 1):
        a("s_nop 1")
        a(f"v_max_f32_dpp v{v}, v{v}, v{v} row_ror:{sh} row_mask:0xf bank_mask:0xf")
    a("s_nop 0")
    a(f"v_mov_b32 v{t}, v{v}")
    a("s_nop 1")
    a(f"v_permlane16_swap_b32 v{v}, v{t}")
    a("s_nop 1")
    a(f"v_max_f32 v{v}, v{v}, v{t}")


def wave_max(a, v, t):
    half_max(a, v, t)
    a(f"v_mov_b32 v{t}, v{v}")
    a("s_nop 1")
    a(f"v_permlane32_swap_b32 v{v}, v{t}")
    a("s_nop 1")
    a(f"v_max_f32 v{v}, v{v}, v{t}")


def poll_global(a, name, voff, srdn, soff, want, vtmp, sleep, first_loaded=False, two=False):
    a("s_mov_b32 s96, 0")
    if first_loaded:
        a(f"s_branch {name}_chk")
    a.label(f"{name}_ld")
    if two:
        a(f"buffer_load_dwordx2 v[{vtmp}:{vtmp+1}], v{voff}, s[{srdn}:{srdn+3}], {soff} offen sc1")
        a("s_waitcnt vmcnt(0)")
        a(f"v_and_b32 v{vtmp}, v{vtmp}, v{vtmp+1}")
    else:
        a(f"buffer_load_dword v{vtmp}, v{voff}, s[{srdn}:{srdn+3}], {soff} offen sc1")
        a("s_waitcnt vmcnt(0)")
    a.label(f"{name}_chk")
    a(f"v_cmp_ne_u32 vcc, {want}, v{vtmp}")
    a("s_nop 4")
    a(f"s_cbranch_vccz {name}_ok")
    a("s_add_u32 s96, s96, 1")
    a(f"s_cmp_gt_u32 s96, {SPIN_MAX}")
    a(f"s_cbranch_scc1 {name}_ok")
    a(f"s_sleep {sleep}")
    a(f"s_branch {name}_ld")
    a.label(f"{name}_ok")


def poll_lds(a, name, vaddr, vtmp, cmp_instr, sleep=1):
    a("s_mov_b32 s97, 0")
    a.label(f"{name}_ld")
    a(f"ds_read_b32 v{vtmp}, v{vaddr}")
    a("s_waitcnt lgkmcnt(0)")
    a(f"v_readfirstlane_b32 s20, v{vtmp}")
    a("s_nop 3")
    a(cmp_instr)
    a(f"s_cbranch_scc1 {name}_ok")
    a("s_add_u32 s97, s97, 1")
    a(f"s_cmp_gt_u32 s97, {SPIN_MAX * 8}")
    a(f"s_cbranch_scc1 {name}_ok")
    a(f"s_sleep {sleep}")
    a(f"s_branch {name}_ld")
    a.label(f"{name}_ok")


def gen(a):
    a.raw(".p2align 8")
    a.label(f"{NAME}_kernel")
    a("s_cmp_ge_u32 s2, 256")
    a("s_cbranch_scc1 k_exit")
    init_stamps(a)
    a("s_load_dwordx16 s[40:55], s[0:1], 0")
    a("s_load_dwordx8 s[56:63], s[0:1], 64")
    a("v_and_b32 v1, 63, v0                    ; lane")
    a("v_lshrrev_b32 v2, 6, v0                 ; wave")
    a("s_and_b32 s28, s2, 7")
    a("v_readfirstlane_b32 s30, v2")
    a("s_lshr_b32 s29, s2, 3                   ; idx")
    a("v_lshlrev_b32 v3, 4, v1                 ; lane*16")
    a("s_and_b32 s20, s28, 1")
    a("s_lshl_b32 s20, s20, 3")
    a("s_and_b32 s21, s29, 7")
    a("s_add_u32 s31, s20, s21                 ; rg")
    a("s_lshr_b32 s20, s28, 1")
    a("s_lshl_b32 s20, s20, 2")
    a("s_lshr_b32 s22, s29, 3")
    a("s_add_u32 s32, s20, s22")
    a("s_lshl_b32 s22, s22, 1")
    a("s_add_u32 s33, s21, s22")
    a("s_and_b32 s33, s33, 7                   ; rot")
    a("s_waitcnt lgkmcnt(0)")
    stamp(a, 1)
    srd(a, 12, P_WS, WS_SIZE)
    srd(a, 24, P_DBG, 256)
    a("s_cmp_ge_u32 s30, 4")
    a("s_cbranch_scc1 k_g")
    gen_a(a)
    a.label("k_g")
    gen_g(a)
    a.label("k_exit")
    a("s_endpgm")


def gen_a(a):
    srd(a, 4, P_X, 2097152)
    srd(a, 8, P_WQKV, 1572864)
    srd(a, 16, P_W1, 1835008)
    a("v_lshrrev_b32 v8, 3, v1")
    a("v_lshrrev_b32 v5, 1, v8")
    a("s_and_b32 s20, s30, 1")
    a("s_lshl_b32 s20, s20, 2")
    a("v_add_u32 v5, s20, v5")
    a("v_and_b32 v6, 7, v1")
    a("v_xor_b32 v5, v5, v6")
    a("v_lshlrev_b32 v5, 4, v5")
    a("v_lshl_add_u32 v4, v8, 10, v5")
    a("v_lshrrev_b32 v8, 2, v1")
    a("v_and_b32 v9, 3, v1")
    a("v_lshlrev_b32 v9, 4, v9")
    a("v_mul_u32_u24 v5, 3072, v8")
    a("v_add_u32 v5, v5, v9")
    a("v_mul_u32_u24 v6, 3584, v8")
    a("v_add_u32 v6, v6, v9")
    a("s_lshl_b32 s34, s31, 17")
    a("s_lshl_b32 s20, s30, 13")
    a("s_add_u32 s34, s34, s20")
    a(f"s_mul_i32 s35, s30, {16*3072}")
    a("s_lshl_b32 s20, s32, 6")
    a("s_add_u32 s37, s35, s20                  ; q pair j")
    a("s_lshr_b32 s20, s32, 1")
    a("s_lshl_b32 s20, s20, 7")
    a("s_add_u32 s35, s35, s20")
    a("s_and_b32 s20, s32, 1")
    a("s_add_u32 s20, s20, 1")
    a("s_lshl_b32 s20, s20, 10")
    a("s_add_u32 s35, s35, s20")
    a(f"s_mul_i32 s36, s30, {16*3584}")
    a("s_lshl_b32 s20, s32, 8")
    a("s_add_u32 s36, s36, s20")
    a("s_lshl_b32 s38, s30, 10")

    srd(a, 80, P_B1, 3584)
    a("v_lshlrev_b32 v10, 2, v1                 ; lane*4")
    a("s_lshl_b32 s39, s32, 8")
    vm = VM()

    def issue(m):
        if m == "b":
            a(f"s_mov_b32 m0, {L_BIAS}")
            a("s_nop 0")
            a("buffer_load_dword v10, s[80:83], s39 offen lds")
            vm.op("b")
            return
        if m == "c":
            a("buffer_load_dword v7, v9, s[24:27], 0 offen sc1")
            vm.op("c")
            return
        a(f"s_add_u32 s21, s33, {m & 7}")
        a("s_and_b32 s21, s21, 7                    ; kc")
        if m < 8:
            st = (m % 5) * STG
            a("s_lshl_b32 s22, s21, 7")
            a("s_add_u32 s22, s22, s34")
            a(f"s_mul_i32 s23, s21, {64*3072}")
            for kind, i in (("x", 0), ("w", 0), ("w", 1), ("x", 1), ("x", 2), ("w", 2), ("x", 3)):
                if kind == "x":
                    a(f"s_add_u32 m0, s38, {st + i*4096}")
                    a(f"s_add_u32 s20, s22, {i*32768}")
                    a("buffer_load_dwordx4 v4, s[4:7], s20 offen lds")
                else:
                    a(f"s_add_u32 m0, s38, {st + 16384 + i*4096 - (64 if i == 1 else 0)}")
                    a(f"s_add_u32 s20, s23, s{37 if i == 2 else 35}")
                    a(f"buffer_load_dwordx4 v5, s[8:11], s20 offen{' offset:64' if i == 1 else ''} lds")
            vm.op(m, 7)
        else:
            a(f"s_mul_i32 s23, s21, {64*3584}")
            a("s_add_u32 s23, s23, s36")
            for i in range(4):
                a(f"s_add_u32 m0, s38, {W1_PAGES[m][i]*4096}")
                a(f"s_add_u32 s20, s23, {i*64}")
                a("buffer_load_dwordx4 v6, s[16:19], s20 offen lds")
            vm.op(m, 4)

    def sched(last, tag):
        short = tag == "s"
        ok = lambda m: not (short and (m == "b" or (m != "c" and m >= 8)))
        for n in range(last + 1):
            vm.wait(a, *NEED.get(n, (n,)))
            if n == 8:
                poll_global(a, f"a_ctr{tag}", 9, 24, "0", NRESET, 7, 8, first_loaded=True)
            if n < 11: stamp(a, 2 + n, 2)
            a("s_barrier")
            if n == 0: stamp(a, 3)
            if n == 8: stamp(a, 4)
            for m in PLAN.get(n, []):
                if ok(m):
                    issue(m)
            if n == WARM2:
                for i in range(3):
                    a(f"s_add_u32 s87, s86, {i*16384}")
                    a("s_min_u32 s87, s87, k_exit - k_pc")
                    a(f"s_load_dword s{88+i}, s[84:85], s87")

    a("s_getpc_b64 s[84:85]")
    a.label("k_pc")
    a("s_lshl_b32 s86, s29, 2")
    a("s_add_u32 s86, s86, s30")
    a("s_lshl_b32 s86, s86, 7")
    a("v_mov_b32 v9, 0")
    for m in PLAN[-1]:
        issue(m)
    stamp(a, 2)
    q0 = list(vm.q)
    a("s_cmp_ge_u32 s32, 14")
    a("s_cbranch_scc1 a_short")
    sched(8, "l")
    a(f"v_mov_b32 v4, {L_FLAGS}")
    a("v_mov_b32 v6, 1")
    a("s_mov_b64 exec, 1")
    vm.wait(a, 10, 11, 12)
    a(f"ds_add_u32 v4, v6 offset:{F_W1}")
    a("s_waitcnt vmcnt(0)")
    a(f"ds_add_u32 v4, v6 offset:{F_W1B}")
    a("s_mov_b64 exec, -1")
    a("s_branch a_p1done")
    a.label("a_short")
    vm.q = list(q0)
    sched(8, "s")
    a.label("a_p1done")
    stamp(a, 5)
    a("s_lshl_b32 s31, s28, 2")
    a("s_lshr_b32 s20, s29, 3")
    a("s_add_u32 s31, s31, s20                  ; h")
    a("s_and_b32 s32, s29, 7                    ; q chunk")
    a("s_lshl_b32 s33, s32, 2")
    a("s_add_u32 s33, s33, s30                  ; rb = 4c + w")
    a("s_lshl_b32 s21, s30, 1")
    a("s_add_u32 s21, s21, s32")
    a("s_and_b32 s21, s21, 7")
    a("s_lshl_b32 s24, s21, 8")
    a("s_lshl_b32 s21, s21, 13")
    a("s_add_u32 s23, s21, 0x2000")
    a("s_and_b32 s23, s23, 0xffff")
    a("s_lshl_b32 s22, s31, 17")
    a(f"s_add_u32 s22, s22, {WS_KV}")
    a("s_add_u32 s23, s23, s22")
    a("s_add_u32 s22, s21, s22")
    QA, QB, NMA, NMB, SA, SB, P, OA, OB = 8, 12, 16, 32, 48, 64, 80, 88, 104
    K0, K1, V0, V1 = 120, 124, 128, 136
    KA, KAN, VA, VAN, VL = 144, 145, 146, 147, 148
    a(f"s_mov_b32 s26, {KV_TBL_LO}")
    a(f"s_mov_b32 s27, {KV_TBL_HI}")
    def slot_base(dst):
        a("s_lshl_b32 s20, s25, 3")
        a(f"s_lshr_b64 s[{dst}:{dst+1}], s[26:27], s20")
        a(f"s_and_b32 s{dst}, s{dst}, 0xff")
        a(f"s_lshl_b32 s{dst}, s{dst}, 12")
        a("s_add_u32 s25, s25, 1")
        a("s_and_b32 s25, s25, 7")
    a("s_lshl_b32 s25, s30, 1")
    slot_base(4)
    slot_base(6)
    a("v_and_b32 v6, 31, v1                     ; m")
    a("v_and_b32 v7, 27, v1                     ; m & ~4")
    a("v_cmp_eq_u32 vcc, 16, v7")
    a("v_mov_b32 v4, 0x3f803f80")
    a("s_nop 0")
    a("v_cndmask_b32 v4, 0, v4, vcc")
    for r in range(V0, V0 + 16):
        a(f"v_mov_b32 v{r}, v4")
    a("v_lshrrev_b32 v7, 5, v1")
    a("v_lshlrev_b32 v7, 8, v7")
    a("v_lshl_add_u32 v7, v6, 4, v7")
    a(f"v_add_u32 v{VL}, 0x2000, v7")
    a("s_mov_b32 s34, 0xffff")
    a("s_mov_b32 s35, 0xffff")
    a("s_mov_b32 s36, 0")
    a("v_lshlrev_b32 v4, 6, v1")
    a("v_add_u32 v4, s24, v4")
    a("v_and_b32 v4, 0x7ff, v4")
    a("v_and_b32 v5, 1, v1")
    a("v_lshlrev_b32 v5, 6, v5")
    a("s_lshr_b32 s20, s33, 1")
    a("s_lshl_b32 s20, s20, 7")
    a("v_add_u32 v5, s20, v5")
    a("v_cmp_gt_u32 vcc, 8, v1")
    a("s_lshr_b32 s38, s31, 2")
    a("v_cndmask_b32 v4, v5, v4, vcc")
    a("s_lshl_b32 s38, s38, 11")
    a(f"s_add_u32 s38, s38, {WS_FKV}")
    a(f"v_mov_b32 v7, {L_FLAGS + F_ST}")
    poll_lds(a, "a_st", 7, 5, "s_cmp_ge_u32 s20, 4", sleep=2)
    stamp(a, 12)
    if PDELAY:
        a(f"s_sleep {PDELAY}")
    poll_global(a, "a_kv", 4, 12, "s38", 1, 6, PSLEEP)
    stamp(a, 6)
    a("s_lshl_b32 s20, s31, 5")
    a("s_add_u32 s20, s20, s33")
    a("s_lshl_b32 s20, s20, 11")
    a(f"s_add_u32 s20, s20, {WS_QF}")
    a(f"buffer_load_dwordx4 {vr(QA, 4)}, v3, s[12:15], s20 offen sc1")
    a(f"buffer_load_dwordx4 {vr(QB, 4)}, v3, s[12:15], s20 offen offset:1024 sc1")
    a(f"buffer_load_dwordx4 {vr(K0, 4)}, v3, s[12:15], s22 offen sc1")
    a(f"v_mov_b32 v4, {L_FLAGS + F_C10}")
    poll_lds(a, "a_c10", 4, 5, "s_cmp_ge_u32 s20, 4", sleep=2)
    stamp(a, 7)
    for part in range(4):
        a(f"s_add_u32 m0, s4, {(part >> 1) * 4096 + (part & 1) * 8192}")
        a(f"s_add_u32 s20, s22, {(part >> 1) * 4096 + (part & 1) * 65536}")
        for i in range(4):
            a(f"buffer_load_dwordx4 v3, s[12:15], s20 offen offset:{i*1024} sc1 lds")
    a("s_waitcnt vmcnt(16)")
    a(f"{MFMA} {vr(SA, 16)}, {vr(K0, 4)}, {vr(QA, 4)}, 0")
    a(f"{MFMA} {vr(SB, 16)}, {vr(K0, 4)}, {vr(QB, 4)}, 0")
    a(f"v_mov_b32 v5, {f32(-3.0e38)}")
    a(f"v_mov_b32 v6, {f32(-3.0e38)}")
    a("s_nop 15")
    def rowmax_step():
        for r in range(0, 16, 2):
            a(f"v_max3_f32 v5, v5, v{SA+r}, v{SA+r+1}")
        for r in range(0, 16, 2):
            a(f"v_max3_f32 v6, v6, v{SB+r}, v{SB+r+1}")
    def rowmax_fin():
        for v, NM in ((5, NMA), (6, NMB)):
            a(f"v_mov_b32 v7, v{v}")
            a("s_nop 1")
            a(f"v_permlane32_swap_b32 v{v}, v7")
            a("s_nop 1")
            a(f"v_max_f32 v{v}, v{v}, v7")
            a(f"v_sub_f32 v{v}, 0, v{v}")
            for r in range(16):
                a(f"v_mov_b32 v{NM+r}, v{v}")
    rowmax_step()
    rowmax_fin()
    a("s_mov_b32 s38, 0")
    a("s_waitcnt vmcnt(8)")

    a.label("a_start")
    stamp(a, 8)
    for r in range(32):
        a(f"v_mov_b32 v{OA+r}, 0")
    for r in range(4, 8):
        a(f"v_mov_b32 v{P+r}, 0")
    a("s_mov_b32 s37, 0")

    def next_addrs():
        slot_base(8)
        a(f"v_add_u32 v{KAN}, s8, v3")
        a(f"v_add_u32 v{VAN}, s8, v{VL}")
    a(f"v_add_u32 v{KA}, s4, v3")
    a(f"v_add_u32 v{VA}, s4, v{VL}")
    a("s_lshl_b32 s25, s30, 1")
    a("s_add_u32 s25, s25, 1")
    next_addrs()
    Kb = [K0, K1]
    Vb = [V0, V1]
    a(f"ds_read_b128 {vr(K0, 4)}, v{KA}")
    a(f"ds_read_b128 {vr(K1, 4)}, v{KA} offset:1024")
    a("s_mov_b64 exec, s[34:35]")
    a(f"ds_read_b128 {vr(V0, 4)}, v{VA}")
    a(f"ds_read_b128 {vr(V0+4, 4)}, v{VA} offset:512")
    a(f"ds_read_b128 {vr(V1+4, 4)}, v{VA} offset:512")
    a("s_mov_b64 exec, -1")
    a("s_waitcnt lgkmcnt(0)")
    a(f"{MFMA} {vr(SA, 16)}, {vr(K0, 4)}, {vr(QA, 4)}, {vr(NMA, 16)}")
    a("s_nop 7")
    a("s_nop 3")
    SPECIAL = (0, 1, 2, 3, 5, 6)
    a("s_cmp_lt_u32 s38, 2")
    a.raw(".p2align 6")
    a.label("a_loop")
    for u in range(8):
        cur, nxt = u & 1, (u + 1) & 1
        if u in SPECIAL:
            a(f"s_cbranch_scc1 a_sp{u}")
            a.label(f"a_back{u}")
        kread = (f"ds_read_b128 {vr(Kb[cur], 4)}, v{KA} offset:{(u+2)*1024}" if u + 2 < 8
                 else f"ds_read_b128 {vr(Kb[cur], 4)}, v{KAN} offset:{(u+2-8)*1024}")
        va, vo = (VA, (u + 1) * 1024) if u + 1 < 8 else (VAN, 0)
        for ph in range(2):
            S = (SA, SB)[ph]
            e = lambda r: a(f"v_exp_f32 v{S+r}, v{S+r}")
            c = lambda j: a(f"v_cvt_pk_bf16_f32 v{P+j}, v{S+2*j}, v{S+2*j+1}")
            if ph == 0:
                a(f"{MFMA} {vr(SB, 16)}, {vr(Kb[cur], 4)}, {vr(QB, 4)}, {vr(NMB, 16)}")
                a(kread)
                for r in range(5): e(r)
                a(f"{MFMA} {vr(OB, 16)}, {vr(Vb[nxt]+4, 4)}, {vr(P+4, 4)}, {vr(OB, 16)}")
                a("s_mov_b64 exec, s[34:35]")
                a(f"ds_read_b128 {vr(Vb[nxt], 4)}, v{va} offset:{vo}")
                a(f"ds_read_b128 {vr(Vb[nxt]+4, 4)}, v{va} offset:{vo+512}")
                a("s_mov_b64 exec, -1")
                for r in range(5, 8): e(r)
                for j in range(4): c(j)
                e(8); e(9)
                a("s_waitcnt lgkmcnt(3)")
                a(f"{MFMA} {vr(OA, 16)}, {vr(Vb[cur], 4)}, {vr(P, 4)}, {vr(OA, 16)}")
                for r in range(10, 16): e(r)
                for j in range(4, 8): c(j)
            else:
                a(f"{MFMA} {vr(SA, 16)}, {vr(Kb[nxt], 4)}, {vr(QA, 4)}, {vr(NMA, 16)}")
                for r in range(5): e(r)
                a(f"{MFMA} {vr(OA, 16)}, {vr(Vb[cur]+4, 4)}, {vr(P+4, 4)}, {vr(OA, 16)}")
                for r in range(5, 8): e(r)
                for j in range(4): c(j)
                e(8); e(9)
                a(f"{MFMA} {vr(OB, 16)}, {vr(Vb[cur], 4)}, {vr(P, 4)}, {vr(OB, 16)}")
                for r in range(10, 16): e(r)
                for j in range(4, 8): c(j)
                if u == 7:
                    a(f"v_mov_b32 v{KA}, v{KAN}")
                    a(f"v_mov_b32 v{VA}, v{VAN}")
    next_addrs()
    a("s_add_u32 s37, s37, 1")
    a("s_cmp_ge_u32 s37, 8")
    a("s_cbranch_scc1 a_loopend")
    a("s_cmp_lt_u32 s38, 2")
    a("s_branch a_loop")
    def signal_kv():
        a("s_waitcnt vmcnt(0)")
        a(f"v_mov_b32 v4, {L_FLAGS + F_KVL}")
        a("v_mov_b32 v6, 1")
        a("s_mov_b64 exec, 1")
        a("ds_add_u32 v4, v6")
        a("s_mov_b64 exec, -1")
        a("s_mov_b32 s38, 1")
        stamp(a, 9)
    for u in SPECIAL:
        a.label(f"a_sp{u}")
        if u < 4:
            a("s_cmp_lg_u32 s37, 0")
            a(f"s_cbranch_scc1 a_back{u}")
            if u == 0:
                a(f"v_mov_b32 v4, {L_FLAGS + F_C14}")
                poll_lds(a, "a_c14", 4, 5, "s_cmp_ge_u32 s20, 4", sleep=2)
            if u == 2:
                a("s_waitcnt vmcnt(8)")
            a(f"s_add_u32 m0, s6, {(u >> 1) * 4096 + (u & 1) * 8192}")
            a(f"s_add_u32 s20, s23, {(u >> 1) * 4096 + (u & 1) * 65536}")
            for i in range(4):
                a(f"buffer_load_dwordx4 v3, s[12:15], s20 offen offset:{i*1024} sc1 lds")
        elif u == 5:
            a("s_cmp_lg_u32 s37, 0")
            a(f"s_cbranch_scc1 a_back{u}")
            a("s_getreg_b32 s20, hwreg(HW_REG_IB_STS)")
            a("s_and_b32 s20, s20, 0xc0000f")
            a("s_cmp_lg_u32 s20, 0")
            a(f"s_cbranch_scc1 a_back{u}")
            signal_kv()
        else:
            a("s_cmp_lg_u32 s37, 0")
            a("s_cbranch_scc1 a_wait_all")
            a("s_cmp_lg_u32 s38, 0")
            a(f"s_cbranch_scc1 a_back{u}")
            signal_kv()
            a("s_branch a_back6")
            a.label("a_wait_all")
            a(f"v_mov_b32 v4, {L_FLAGS + F_KVL}")
            poll_lds(a, "a_all", 4, 5, "s_cmp_ge_u32 s20, 4")
            a("s_mov_b32 s38, 2")
            stamp(a, 10)
        a("s_cmp_eq_u32 s37, s37                    ; scc = 1")
        a(f"s_branch a_back{u}")
    a.label("a_loopend")
    a(f"{MFMA} {vr(OB, 16)}, {vr(Vb[1]+4, 4)}, {vr(P+4, 4)}, {vr(OB, 16)}")
    stamp(a, 11)
    stamp(a, 2, 3)
    a("s_waitcnt lgkmcnt(0)")
    a("s_lshl_b32 s20, s33, 6")
    a("s_add_u32 s20, s20, s31")
    a("s_lshl_b32 s20, s20, 10")
    a(f"s_add_u32 s20, s20, {WS_OF}")
    a(f"s_add_u32 s21, s20, {32*1024}")
    a("s_nop 8")
    a("s_cmp_lg_u32 s36, 0")
    a("s_cbranch_scc1 a_fin")
    a(f"v_add_f32 v7, v{OA+8}, v{OB+8}")
    a(f"v_cmp_nge_f32 vcc, {f32(2.0**60)}, v7")
    a("s_nop 4")
    a("s_cbranch_vccz a_fin")
    a("s_mov_b32 s36, 1")
    a(f"v_mov_b32 v5, {f32(-3.0e38)}")
    a(f"v_mov_b32 v6, {f32(-3.0e38)}")
    a("s_mov_b32 s37, 0")
    a.label("a_mx")
    a("s_and_b32 s20, s37, 7")
    a("s_cmp_lg_u32 s20, 0")
    a("s_cbranch_scc1 a_mx1")
    slot_base(8)
    a("v_add_u32 v4, s8, v3")
    a.label("a_mx1")
    a(f"ds_read_b128 {vr(K0, 4)}, v4")
    a("s_waitcnt lgkmcnt(0)")
    a(f"{MFMA} {vr(SA, 16)}, {vr(K0, 4)}, {vr(QA, 4)}, 0")
    a(f"{MFMA} {vr(SB, 16)}, {vr(K0, 4)}, {vr(QB, 4)}, 0")
    a("s_nop 15")
    rowmax_step()
    a("v_add_u32 v4, 1024, v4")
    a("s_add_u32 s37, s37, 1")
    a("s_cmp_lt_u32 s37, 64")
    a("s_cbranch_scc1 a_mx")
    rowmax_fin()
    a("s_branch a_start")
    a.label("a_fin")
    for i, O in enumerate((OA, OB)):
        a(f"v_rcp_f32 v6, v{O+8}")
        a("s_nop 0")
        for r in range(8):
            a(f"v_mul_f32 v{O+r}, v{O+r}, v6")
        for j in range(4):
            a(f"v_cvt_pk_bf16_f32 v{P+4*i+j}, v{O+2*j}, v{O+2*j+1}")
        for j in range(4):
            a(f"v_min_u32 v{P+4*i+j}, 0xfffeffff, v{P+4*i+j}")
        a(f"buffer_store_dwordx4 {vr(P+4*i, 4)}, v3, s[12:15], s{20+i} offen sc1")
    a(f"v_mov_b32 v4, {L_FLAGS + 48}")
    a("v_mov_b32 v6, 1")
    a("s_mov_b64 exec, 1")
    a("ds_add_u32 v4, v6")
    a("s_mov_b64 exec, -1")
    a("s_waitcnt lgkmcnt(0)")
    if PROF == 3:
        stamp(a, 3, 3)
        a("s_waitcnt vmcnt(0)")
    dump_stamps(a)
    a("s_endpgm")


def gen_g(a):
    a("s_sub_u32 s30, s30, 4                    ; g")
    a("s_lshl_b32 s34, s31, 2")
    a("s_add_u32 s34, s34, s30")
    a("v_lshlrev_b32 v4, 2, v1")
    a(f"v_add_u32 v4, {L_FLAGS}, v4")
    a("v_mov_b32 v5, 0")
    a("ds_write_b32 v4, v5")
    X = 128
    ACC = 64
    WA, WB = 32, 48
    for r in range(4):
        a(f"v_mov_b32 v{WA+r}, -1")
    a("s_lshl_b32 s20, s34, 5")
    a("s_lshl_b32 s21, s32, 1")
    a("s_add_u32 s20, s20, s21")
    a("s_lshl_b32 s20, s20, 10")
    a(f"s_add_u32 s20, s20, {WS_OF}")
    if not os.environ.get("NOSENT"):
        a(f"buffer_store_dwordx4 {vr(WA, 4)}, v3, s[12:15], s20 offen sc1")
        a(f"buffer_store_dwordx4 {vr(WA, 4)}, v3, s[12:15], s20 offen offset:1024 sc1")
    a("s_cmp_ge_u32 s2, 8")
    a("s_cbranch_scc1 g_noreset")
    for r in range(4):
        a(f"v_mov_b32 v{WB+r}, 0")
    a("s_lshl_b32 s20, s2, 2")
    a("s_add_u32 s20, s20, s30")
    a("s_lshl_b32 s20, s20, 10")
    a(f"s_add_u32 s20, s20, {WS_FL}")
    a(f"buffer_store_dwordx4 {vr(WB, 4)}, v3, s[12:15], s20 offen sc1")
    a.label("g_noreset")
    a("v_and_b32 v5, 31, v1                     ; t")
    a("v_lshrrev_b32 v6, 5, v1                  ; hh")
    a("v_bfe_u32 v7, v1, 1, 3")
    a("s_lshl_b32 s20, s30, 12")
    a("v_lshl_add_u32 v12, v5, 7, s20")
    for s in range(4):
        a(f"v_add_u32 v13, {2*s}, v6")
        a("v_xor_b32 v13, v13, v7")
        a(f"v_lshl_add_u32 v{8+s}, v13, 4, v12")
    a("v_bfe_u32 v13, v1, 4, 1")
    a("v_lshlrev_b32 v13, 5, v13")
    a("v_and_b32 v14, 3, v1")
    a("v_lshl_add_u32 v13, v14, 3, v13          ; colhalf*32 + c4*8")
    a("v_bfe_u32 v14, v1, 2, 2                  ; r")
    a("v_lshl_add_u32 v13, v14, 6, v13          ; + r*64")
    a("v_lshl_add_u32 v12, v6, 9, v13")
    a("v_lshl_add_u32 v14, v6, 8, v13")
    for r in range(ACC, ACC + 48):
        a(f"v_mov_b32 v{r}, 0")

    for s_ in range(4):
        a(f"v_add_u32 v{24+s_}, {3*STG}, v{8+s_}")
    a("v_add_u32 v28, 0x10000, v12")
    a("v_add_u32 v29, 0x20000, v12")

    lk = VM("lgkmcnt", 15)

    def stream(first, last, ncb, D, xfirst, bars, hook=None):
        items = [(n, s, c) for n in range(first, last + 1) for s in range(4) for c in range(ncb)]
        def R(k):
            n, s, c = items[k]
            if s == 0 and c == 0 and n in bars:
                a("s_barrier")
                if PROF == 2 and bars[n] is not None:
                    stamp(a, bars[n], 2)
                    lk.clear()
            if n < 8:
                st = n % 5
                page = 7 * st + 4 + c
                if c == 0:
                    xb, xo = (8 + s, st * STG) if st < 3 else (24 + s, (st - 3) * STG)
                    a(f"ds_read_b128 {vr(X + 16*n + 4*s, 4)}, v{xb} offset:{xo}")
                    lk.op(k)
            else:
                page = W1_PAGES[n][c]
            b = (12, 28, 29)[page >> 4]
            o = (page & 15) * 4096 + s * 1024
            w = WA + 4 * (k % 8)
            a(f"ds_read_b64_tr_b16 {vr(w, 2)}, v{b} offset:{o}")
            a(f"ds_read_b64_tr_b16 {vr(w+2, 2)}, v{b} offset:{o + 256}")
            lk.op(k, 2)
            assert len(lk.q) <= 15
        for k in range(D):
            R(k)
        for k, (n, s, c) in enumerate(items):
            lk.wait(a, k)
            xf = vr(X + 16 * (n & 7) + 4 * s, 4)
            w = vr(WA + 4 * (k % 8), 4)
            d = vr(ACC + 16 * c, 16)
            if xfirst(c):
                a(f"{MFMA} {d}, {xf}, {w}, {d}")
            else:
                a(f"{MFMA} {d}, {w}, {xf}, {d}")
            if k + D < len(items):
                R(k + D)
            if hook:
                hook(n, s, c)

    def pack(b):
        for j in range(8):
            a(f"v_cvt_pk_bf16_f32 v{b+j}, v{b+2*j}, v{b+2*j+1}")

    BI = 32
    def bias_reads():
        for c in range(4):
            for q in range(0, 4, 2):
                d = BI + 2 * (c * 4 + q)
                a(f"ds_read2_b64 {vr(d, 4)}, v15 offset0:{(c*64 + q*16)//8} offset1:{(c*64 + q*16 + 16)//8}")

    a(f"v_lshlrev_b32 v15, 3, v6")
    a(f"v_add_u32 v15, {L_BIAS}, v15")
    a("v_mov_b32 v16, 0")
    a("v_mov_b32 v22, 1")
    a("s_lshr_b32 s35, s32, 1")
    a("s_lshl_b32 s35, s35, 2")
    a("s_lshl_b32 s38, s35, 7")
    a("s_add_u32 s38, s38, s34")
    a("s_lshl_b32 s38, s38, 10")
    a(f"s_add_u32 s38, s38, {WS_KV}")
    TOUCH = os.environ.get("TOUCH", "0")
    def touch(tag):
        a("v_lshlrev_b32 v30, 20, v1")
        a("s_cmp_eq_u32 s30, 0")
        a(f"s_cbranch_scc0 g_t1{tag}")
        a("s_mov_b64 exec, 0xffff")
        a("buffer_load_dword v23, v30, s[12:15], 0 offen")
        a("s_mov_b64 exec, -1")
        a.label(f"g_t1{tag}")
        a("s_cmp_eq_u32 s30, 1")
        a(f"s_cbranch_scc0 g_t2{tag}")
        a("s_mov_b64 exec, 3")
        a("buffer_load_dword v23, v30, s[4:7], 0 offen")
        a("buffer_load_dword v23, v30, s[8:11], 0 offen")
        a("s_mov_b64 exec, -1")
        a.label(f"g_t2{tag}")
        a("s_cmp_eq_u32 s30, 2")
        a(f"s_cbranch_scc0 g_t3{tag}")
        a("s_mov_b64 exec, 3")
        a("buffer_load_dword v23, v30, s[16:19], 0 offen")
        a("buffer_load_dword v23, v30, s[80:83], 0 offen")
        a("s_mov_b64 exec, -1")
        a.label(f"g_t3{tag}")
    srd(a, 4, P_W2, 1835008)
    srd(a, 8, P_WO, 524288)
    srd(a, 16, P_B2, 1024)
    srd(a, 80, P_OUT, 2097152)
    if TOUCH == "1":
        touch("a")
    a(f"v_mov_b32 v17, {L_FLAGS}")
    a("s_waitcnt lgkmcnt(0)")
    bars = {n: 2 + n for n in range(8)}
    def thook(tag):
        def h(n, s, c):
            if TOUCH == "2" and (n, s, c) == (1, 0, 0):
                touch(tag)
            if (n, s, c) == (1, 2, 0):
                a("s_cmp_ge_u32 s2, 8")
                a(f"s_cbranch_scc1 g_nocnt{tag}")
                a("s_waitcnt vmcnt(0)")
                a("s_mov_b64 exec, 1")
                a("buffer_atomic_add v22, v16, s[24:27], 0 offen sc1")
                a("s_mov_b64 exec, -1")
                a.label(f"g_nocnt{tag}")
        return h
    a("s_bitcmp1_b32 s32, 0")
    a("s_cbranch_scc1 g_vpath")
    stream(0, 7, 3, 6, lambda c: False, bars, thook("k"))
    stamp(a, 3)
    a("s_nop 7")
    for c in range(2):
        bk = ACC + 16 * c
        pack(bk)
        for u in range(2):
            a(f"s_add_u32 s20, s38, {(2*c + u) * 131072}")
            a(f"buffer_store_dwordx4 {vr(bk+4*u, 4)}, v3, s[12:15], s20 offen sc1")
    a("s_branch g_qpath")
    a.label("g_vpath")
    lk.clear()
    stream(0, 7, 3, 6, lambda c: c < 2, bars, thook("v"))
    stamp(a, 3)
    a("s_nop 7")
    a("v_bfe_u32 v20, v1, 4, 1")
    a("v_lshlrev_b32 v20, 17, v20")
    a("v_lshl_add_u32 v20, v6, 8, v20")
    a("v_and_b32 v21, 15, v1")
    a("v_lshl_add_u32 v20, v21, 4, v20")
    for c in range(2):
        bv = ACC + 16 * c
        pack(bv)
        a(f"s_add_u32 s20, s38, {65536 + 2*c*131072}")
        a(f"buffer_store_dwordx4 {vr(bv, 4)}, v20, s[12:15], s20 offen sc1")
        a(f"buffer_store_dwordx4 {vr(bv+4, 4)}, v20, s[12:15], s20 offen offset:512 sc1")
    a.label("g_qpath")
    bq = ACC + 32
    a(f"s_mov_b32 s36, {f32(QSCALE)}")
    for r in range(16):
        a(f"v_mul_f32 v{bq+r}, s36, v{bq+r}")
    pack(bq)
    a("s_lshl_b32 s20, s32, 7")
    a("s_add_u32 s20, s20, s34")
    a("s_lshl_b32 s20, s20, 10")
    a(f"s_add_u32 s20, s20, {WS_QF}")
    a(f"s_add_u32 s21, s20, 65536")
    a(f"buffer_store_dwordx4 {vr(bq, 4)}, v3, s[12:15], s20 offen sc1")
    a(f"buffer_store_dwordx4 {vr(bq+4, 4)}, v3, s[12:15], s21 offen sc1")
    a("s_lshl_b32 s36, s31, 4")
    a("s_add_u32 s36, s36, s32")
    a("s_lshl_b32 s36, s36, 6")
    a(f"s_add_u32 s36, s36, {WS_FH}               ; FH[rg][j]")
    a("s_lshl_b32 s35, s35, 2                   ; quad*16")
    a("s_add_u32 s35, s35, s31")
    a("s_lshl_b32 s35, s35, 1")
    a("s_and_b32 s20, s32, 1")
    a("s_add_u32 s35, s35, s20")
    a("s_lshl_b32 s35, s35, 6")
    a(f"s_add_u32 s35, s35, {WS_FKV}              ; FKV[quad][rg][par]")
    stamp(a, 4)

    def send_flag(sreg):
        a("s_waitcnt vmcnt(0)")
        a("s_mov_b64 exec, 1")
        a(f"ds_add_rtn_u32 v18, v17, v22 offset:{F_ST}")
        a("s_waitcnt lgkmcnt(0)")
        a("v_cmp_eq_u32 vcc, 3, v18")
        a("s_nop 4")
        a("s_and_b64 exec, exec, vcc")
        lab = f"g_pub{len(a.lines)}"
        a(f"s_cbranch_execz {lab}")
        a(f"buffer_store_dword v22, v16, s[12:15], {sreg} offen sc1")
        a.label(lab)
        a("s_mov_b64 exec, -1")

    a("s_cmp_ge_u32 s32, 14")
    a("s_cbranch_scc1 g_noffn1")
    a("s_barrier                                ; B8")
    stamp(a, 10, 2)
    bias_reads()
    a("s_waitcnt lgkmcnt(0)                     ; bias")
    for c in range(4):
        for q in range(4):
            d = BI + 2 * (c * 4 + q)
            r = ACC + 16 * c + 4 * q
            a(f"v_lshlrev_b32 v{r}, 16, v{d}")
            a(f"v_and_b32 v{r+1}, 0xffff0000, v{d}")
            a(f"v_lshlrev_b32 v{r+2}, 16, v{d+1}")
            a(f"v_and_b32 v{r+3}, 0xffff0000, v{d+1}")
    a("s_mov_b32 s37, 0")
    lk.clear()
    def lds_signal(off):
        a("s_mov_b64 exec, 1")
        a(f"ds_add_u32 v17, v22 offset:{off}")
        a("s_mov_b64 exec, -1")
        lk.op("sig")
    def hook(n, s, c):
        if (n, s, c) == (10, 3, 3):
            lds_signal(F_C10)
        if (n, s, c) == (14, 3, 3):
            lds_signal(F_C14)
        for nn, off in ((9, F_W1), (12, F_W1B)):
            if (n, s, c) == (nn, 0, 0):
                a(f"ds_read_b32 v20, v17 offset:{off}")
                lk.op("w1")
            if (n, s, c) == (nn, 2, 0):
                lk.wait(a, "w1")
                a("v_readfirstlane_b32 s20, v20")
                a("s_nop 3")
                a("s_cmp_ge_u32 s20, 4")
                a(f"s_cbranch_scc1 g_w1ok{nn}")
                a(f"v_mov_b32 v19, {L_FLAGS + off}")
                poll_lds(a, f"g_w1{nn}", 19, 20, "s_cmp_ge_u32 s20, 4", sleep=2)
                a.label(f"g_w1ok{nn}")
        if c != 3 or s not in (1, 3):
            return
        lab = f"g_fl{n}_{s}"
        a("s_cmp_eq_u32 s37, 0")
        a(f"s_cbranch_scc0 {lab}")
        if not (n == 15 and s == 3):
            a("s_getreg_b32 s20, hwreg(HW_REG_IB_STS, 0, 4)")
            a("s_cmp_eq_u32 s20, 0")
            a(f"s_cbranch_scc0 {lab}")
        send_flag("s35")
        a("s_mov_b32 s37, 1")
        stamp(a, 5)
        a.label(lab)
    FD = 7
    assert 16 * 3 - FD == 2 * 16 + 2 * 4 + 0 + 1
    stream(8, 15, 4, FD, lambda c: False, {}, hook)
    stamp(a, 6)
    a("s_nop 15")
    a("s_mul_i32 s20, s34, 112")
    a("s_lshl_b32 s21, s32, 3")
    a("s_add_u32 s20, s20, s21")
    a("s_lshl_b32 s20, s20, 10")
    a(f"s_add_u32 s20, s20, {WS_HF}")
    a("s_add_u32 s21, s20, 4096")
    for c in range(4):
        b = ACC + 16 * c
        for r in range(16):
            a(f"v_max_f32 v{b+r}, 0, v{b+r}")
        for r in range(0, 16, 2):
            a(f"v_pk_mul_f32 {vr(b+r, 2)}, {vr(b+r, 2)}, {vr(b+r, 2)}")
        pack(b)
    if HDELAY:
        a("s_mov_b32 s22, s20")
        a(f"v_mov_b32 v8, {L_FLAGS}")
        poll_lds(a, "g_kvl", 8, 9, "s_cmp_ge_u32 s20, 4", sleep=8)
        a("s_mov_b32 s20, s22")
    for c in range(4):
        b = ACC + 16 * c
        for u in range(2):
            a(f"buffer_store_dwordx4 {vr(b+4*u, 4)}, v3, s[12:15], s{20 + (c >> 1)} offen offset:{((c & 1)*2 + u)*1024} sc1")
    a("s_branch g_p1done")
    a.label("g_noffn1")
    a("s_waitcnt lgkmcnt(0)")
    a("s_barrier                                ; B8")
    lds_signal(F_C10)
    lds_signal(F_C14)
    send_flag("s35")
    a("s_cmp_eq_u32 s32, 15")
    a("s_cbranch_scc1 g_p1done")
    srd(a, 16, P_GATE, 1024)
    for r in range(16):
        a(f"v_mov_b32 v{ACC+r}, 0")
    a("v_lshlrev_b32 v15, 4, v6                 ; hh*16")
    for n in range(8):
        a(f"s_add_u32 s21, s33, {n}")
        a("s_and_b32 s21, s21, 7")
        a("s_lshl_b32 s21, s21, 7")
        for s in range(4):
            a(f"buffer_load_dwordx4 {vr(WA + 4*s, 4)}, v15, s[16:19], s21 offen offset:{s*32}")
        a("s_waitcnt vmcnt(0)")
        for s in range(4):
            a(f"{MFMA} {vr(ACC, 16)}, {vr(WA + 4*s, 4)}, {vr(X + 16*n + 4*s, 4)}, {vr(ACC, 16)}")
    a("s_nop 15")
    a("v_lshlrev_b32 v15, 2, v1")
    a("s_lshl_b32 s20, s34, 7")
    a(f"s_add_u32 s20, s20, {WS_G}")
    a("s_mov_b32 exec_hi, 0")
    a(f"buffer_store_dword v{ACC}, v15, s[12:15], s20 offen sc1")
    a("s_mov_b64 exec, -1")
    a.label("g_p1done")
    srd(a, 4, P_W2, 1835008)
    srd(a, 8, P_WO, 524288)
    srd(a, 16, P_B2, 1024)
    srd(a, 24, P_OUT, 2097152)
    a("s_lshl_b32 s31, s28, 2")
    a("s_lshr_b32 s20, s29, 3")
    a("s_add_u32 s31, s31, s20                  ; rb")
    a("s_and_b32 s32, s29, 7                    ; cp")
    a("s_and_b32 s38, s30, 1")
    a("s_lshr_b32 s39, s30, 1")
    a("s_lshl_b32 s41, s31, 1")
    a("s_add_u32 s41, s41, s38")
    a("s_xor_b32 s42, s41, 1")
    a("s_lshl_b32 s40, s32, 1")
    a("s_add_u32 s40, s40, s39")
    a("s_xor_b32 s43, s40, 1")
    a("s_mul_i32 s21, s30, 28")
    a("s_lshl_b32 s20, s21, 14")
    a("s_lshl_b32 s33, s40, 6")
    a("s_add_u32 s33, s33, s20")
    a("s_lshl_b32 s35, s43, 6")
    a("s_add_u32 s35, s35, s20")
    a("v_lshrrev_b32 v8, 2, v1")
    a("v_and_b32 v9, 3, v1")
    a("v_lshlrev_b32 v8, 10, v8")
    a("v_lshl_add_u32 v4, v9, 4, v8")
    AF = 16
    HB = 80
    WF = 112
    WO = 128
    ND = 7
    ST = lambda i: 128 + 16 * i
    vm = VM()
    vm.op("hst")
    def ldW(k):
        i = k % ND
        a(f"buffer_load_dwordx4 {vr(ST(i), 4)}, v4, s[4:7], s33 offen")
        a(f"buffer_load_dwordx4 {vr(ST(i)+4, 4)}, v4, s[4:7], s35 offen")
        a("s_add_u32 s33, s33, 16384")
        a("s_add_u32 s35, s35, 16384")
        vm.op(("w", k), 2)
    def ldH(k):
        i = k % ND
        a(f"buffer_load_dwordx4 {vr(ST(i)+8, 4)}, v3, s[12:15], s22 offen sc1")
        a(f"buffer_load_dwordx4 {vr(ST(i)+12, 4)}, v3, s[12:15], s23 offen sc1")
        a("s_add_u32 s22, s22, 1024")
        a("s_add_u32 s23, s23, 1024")
        vm.op(("h", k), 2)
    def ldWo(k):
        a(f"s_add_u32 s20, s98, {k*16384}")
        a(f"buffer_load_dwordx4 {vr(WO+8*k, 4)}, v4, s[8:11], s20 offen")
        a(f"s_add_u32 s20, s99, {k*16384}")
        a(f"buffer_load_dwordx4 {vr(WO+8*k+4, 4)}, v4, s[8:11], s20 offen")
        vm.op(("o", k), 2)
    if HDELAY:
        a(f"v_mov_b32 v8, {L_FLAGS}")
        poll_lds(a, "g_kvl2", 8, 9, "s_cmp_ge_u32 s20, 4", sleep=8)
    for k in range(ND):
        ldW(k)
    a("s_lshl_b32 s20, s39, 18")
    a("s_lshl_b32 s98, s40, 6")
    a("s_add_u32 s98, s98, s20")
    a("s_lshl_b32 s99, s43, 6")
    a("s_add_u32 s99, s99, s20")
    ldWo(14)
    ldWo(15)
    for sd, st in ((22, 41), (23, 42)):
        a(f"s_mul_i32 s{sd}, s{st}, 112")
        a(f"s_add_u32 s{sd}, s{sd}, s21")
        a(f"s_lshl_b32 s{sd}, s{sd}, 10")
        a(f"s_add_u32 s{sd}, s{sd}, {WS_HF}")
    a("s_lshl_b32 s34, s30, 12")
    a(f"s_add_u32 s34, s34, {36*4096}")
    a("v_add_u32 v7, s34, v14")
    a("v_add_u32 v12, s34, v3")
    a(f"v_mov_b32 v8, {L_FLAGS + 4}")
    a("v_mov_b32 v9, 1")
    a("s_mov_b64 exec, 1")
    a("ds_add_u32 v8, v9")
    vm.wait(a, "hst")
    a(f"ds_add_rtn_u32 v10, v17, v22 offset:{F_HS}")
    a("s_waitcnt lgkmcnt(0)")
    a("v_readfirstlane_b32 s20, v10")
    a("s_nop 3")
    a("s_cmp_lg_u32 s20, 3")
    a("s_cbranch_scc1 g_nohpub")
    a("buffer_store_dword v22, v16, s[12:15], s36 offen sc1")
    a.label("g_nohpub")
    a("s_mov_b64 exec, -1")
    stamp(a, 7)
    poll_lds(a, "g_f7", 8, 9, "s_cmp_ge_u32 s20, 4", sleep=4)
    a("v_and_b32 v8, 15, v1")
    a("v_lshlrev_b32 v8, 6, v8")
    a("s_lshr_b32 s36, s31, 1")
    a("s_lshl_b32 s36, s36, 10")
    a(f"s_add_u32 s36, s36, {WS_FH}")
    poll_global(a, "g_hw", 8, 12, "s36", 1, 9, HSLEEP)
    vm.clear()
    stamp(a, 8)
    for k in range(ND):
        ldH(k)
    def prep(k):
        i = k % ND
        w = WF + 8 * (k & 1)
        vm.wait(a, ("w", k))
        a(f"ds_write_b128 v12, {vr(ST(i), 4)}")
        a(f"ds_write_b128 v12, {vr(ST(i)+4, 4)} offset:1024")
        for cl in range(2):
            a(f"ds_read_b64_tr_b16 {vr(w+4*cl, 2)}, v7 offset:{cl*1024}")
            a(f"ds_read_b64_tr_b16 {vr(w+4*cl+2, 2)}, v7 offset:{cl*1024+512}")
    prep(0)
    for k in range(28):
        i = k % ND
        w = WF + 8 * (k & 1)
        if k + 1 < 28:
            prep(k + 1)
            a("s_waitcnt lgkmcnt(6)")
        else:
            a("s_waitcnt lgkmcnt(0)")
        if k + ND < 28:
            ldW(k + ND)
        else:
            ldWo(2 * i)
        vm.wait(a, ("h", k))
        for cl in range(2):
            for tl in range(2):
                d = vr(AF + 16 * (tl + 2 * cl), 16)
                a(f"{MFMA} {d}, {vr(w + 4*cl, 4)}, {vr(ST(i) + 8 + 4*tl, 4)}, {d if k else 0}")
        if k + ND < 28:
            ldH(k + ND)
        else:
            ldWo(2 * i + 1)
    stamp(a, 9)
    for k in list(range(14, 16)) + list(range(14)):
        vm.wait(a, ("o", k))
        a(f"ds_write_b128 v12, {vr(WO+8*k, 4)}")
        a(f"ds_write_b128 v12, {vr(WO+8*k+4, 4)} offset:1024")
        for cl in range(2):
            a(f"ds_read_b64_tr_b16 {vr(WO+8*k+4*cl, 2)}, v7 offset:{cl*1024}")
            a(f"ds_read_b64_tr_b16 {vr(WO+8*k+4*cl+2, 2)}, v7 offset:{cl*1024+512}")
        if k & 1:
            a("s_waitcnt lgkmcnt(0)")
    stamp(a, 10)
    a("v_lshlrev_b32 v8, 2, v5")
    a("s_lshl_b32 s20, s41, 7")
    a(f"s_add_u32 s20, s20, {WS_G}")
    a("buffer_load_dword v10, v8, s[12:15], s20 offen sc1")
    a("v_lshlrev_b32 v8, 3, v6")
    a("s_lshl_b32 s20, s40, 6")
    for q in range(4):
        a(f"buffer_load_dwordx2 {vr(WF+2*q, 2)}, v8, s[16:19], s20 offen offset:{q*16}")
    a("s_lshl_b32 s20, s30, 2")
    a(f"s_add_u32 s20, s20, {L_FLAGS + 16}")
    a("v_mov_b32 v13, s20")
    def partner(r):
        a(f"s_xor_b32 s36, s30, {r}")
        a("s_lshl_b32 s21, s36, 12")
        a(f"s_add_u32 s21, s21, {36*4096}")
        a("s_lshl_b32 s36, s36, 2")
        a(f"s_add_u32 s36, s36, {L_FLAGS + 16}")
    def xchg(r, seq, src, dst_tmp, tag, need_ack):
        if need_ack:
            a("v_add_u32 v8, 16, v13")
            poll_lds(a, f"{tag}a", 8, 9, f"s_cmp_ge_u32 s20, {seq-1}")
        for q in range(4):
            a(f"ds_write_b128 v12, {vr(src+4*q, 4)} offset:{q*1024}")
        partner(r)
        a(f"v_mov_b32 v9, {seq}")
        a("s_waitcnt lgkmcnt(0)")
        a("ds_write_b32 v13, v9")
        a("v_mov_b32 v8, s36")
        poll_lds(a, f"{tag}f", 8, 11, f"s_cmp_ge_u32 s20, {seq}")
        a("v_add_u32 v11, s21, v3")
        for q in range(4):
            a(f"ds_read_b128 {vr(dst_tmp+4*q, 4)}, v11 offset:{q*1024}")
        a("s_waitcnt lgkmcnt(0)")
        a("ds_write_b32 v8, v9 offset:16")
    T0, T1 = AF, AF + 32
    for seq, (src, dst) in enumerate(((AF + 16, T0), (AF + 48, T1)), 1):
        xchg(1, seq, src, HB, f"g_r{seq}", seq > 1)
        vadd16(a, dst, HB, "a")
    a("s_waitcnt vmcnt(0)")
    a(f"v_max_f32 v10, {f32(-60.0)}, v10")
    a(f"v_mul_f32 v10, {f32(-LOG2E)}, v10")
    a("v_exp_f32 v14, v10                       ; e^-z")
    a("s_nop 0")
    a("v_add_f32 v10, 1.0, v14")
    a("v_rcp_f32 v10, v10                       ; g")
    for q in range(4):
        d = WF + 2 * q
        a(f"v_lshlrev_b32 v8, 16, v{d}")
        a(f"v_add_f32 v{AF+4*q}, v{AF+4*q}, v8")
        a(f"v_and_b32 v8, 0xffff0000, v{d}")
        a(f"v_add_f32 v{AF+4*q+1}, v{AF+4*q+1}, v8")
        a(f"v_lshlrev_b32 v8, 16, v{d+1}")
        a(f"v_add_f32 v{AF+4*q+2}, v{AF+4*q+2}, v8")
        a(f"v_and_b32 v8, 0xffff0000, v{d+1}")
        a(f"v_add_f32 v{AF+4*q+3}, v{AF+4*q+3}, v8")
    for T in (T0, T1):
        vscale16(a, T, 14, "b")
    OBF = AF + 48
    a("s_lshl_b32 s22, s41, 5")
    a("s_lshl_b32 s20, s39, 4")
    a("s_add_u32 s22, s22, s20")
    a("s_lshl_b32 s22, s22, 10")
    a(f"s_add_u32 s22, s22, {WS_OF}")
    for i in range(1, 4):
        a(f"s_add_u32 s{44+i}, s22, {i*4096}")
    a("s_mov_b32 s44, s22")
    a("v_add_u32 v8, 16, v13")
    poll_lds(a, "g_ak", 8, 9, "s_cmp_ge_u32 s20, 2", sleep=2)
    stamp(a, 11)
    a(f"v_mov_b32 v8, {L_FLAGS + F_AD}")
    poll_lds(a, "g_ad", 8, 9, f"s_cmp_ge_u32 s20, {ADN}", sleep=4)
    stamp(a, 12)
    stamp(a, 2, 3)
    ldO = lambda k: a(f"buffer_load_dwordx4 {vr(OBF+4*k, 4)}, v3, s[12:15], s{44 + k//4} offen offset:{(k%4)*1024} sc1")
    for k in range(16):
        ldO(k)
    a("s_mov_b32 s37, 0xffff")
    a("s_mov_b32 s96, 0")
    a.label("g_oround")
    if os.environ.get("OWAIT"): a("s_waitcnt vmcnt(0)")
    for k in range(16):
        b = OBF + 4 * k
        a(f"s_bitcmp1_b32 s37, {k}")
        a(f"s_cbranch_scc0 g_onext{k}")
        a(f"s_waitcnt vmcnt({15-k})")
        a(f"v_max3_u32 v8, v{b}, v{b+1}, v{b+2}")
        a(f"v_max_u32 v8, v8, v{b+3}")
        a("v_cmp_eq_u32 vcc, -1, v8")
        a("s_nop 4")
        a(f"s_cbranch_vccnz g_oretry{k}")
        for cl, T in enumerate((T0, T1)):
            d = vr(T, 16)
            a(f"{MFMA} {d}, {vr(WO + 8*k + 4*cl, 4)}, {vr(b, 4)}, {d}")
        a(f"s_bitset0_b32 s37, {k}")
        a.label(f"g_onext{k}")
    a("s_cmp_eq_u32 s37, 0")
    a("s_cbranch_scc1 g_odone")
    a("s_add_u32 s96, s96, 1")
    a(f"s_cmp_lt_u32 s96, {SPIN_MAX}")
    a("s_waitcnt vmcnt(0)")
    a("s_cbranch_scc1 g_oround")
    a("s_branch g_odone")
    for k in range(16):
        a.label(f"g_oretry{k}")
        ldO(k)
        a(f"s_branch g_onext{k}")
    a.label("g_odone")
    a("s_nop 15")
    stamp(a, 6, 3)
    xchg(2, 3, T1, AF + 16, "g_r4", False)
    stamp(a, 7, 3)
    vadd16(a, AF, AF + 16, "c")
    vscale16(a, AF, 10, "d")
    P = OBF
    for j in range(8):
        a(f"v_cvt_pk_bf16_f32 v{P+j}, v{AF+2*j}, v{AF+2*j+1}")
    a("v_lshlrev_b32 v8, 10, v5")
    a("v_lshl_add_u32 v8, v6, 4, v8")
    for pa in (0, 2):
        a(f"v_permlane32_swap_b32 v{P+2*pa}, v{P+2*pa+2}")
        a(f"v_permlane32_swap_b32 v{P+2*pa+1}, v{P+2*pa+3}")
    a("s_lshl_b32 s20, s41, 15")
    a("s_lshl_b32 s21, s40, 6")
    a("s_add_u32 s20, s20, s21")
    a(f"buffer_store_dwordx4 {vr(P, 4)}, v8, s[24:27], s20 offen")
    a(f"buffer_store_dwordx4 {vr(P+4, 4)}, v8, s[24:27], s20 offen offset:32")
    a("s_waitcnt lgkmcnt(0)")
    if PROF == 3:
        a("s_mul_i32 s73, s96, 100")
        a("s_add_u32 s73, s73, s64")
        stamp(a, 8, 3)
        a("s_waitcnt vmcnt(0)")
    dump_stamps(a)
    a("s_endpgm")


def main(path):
    a = Asm()
    hdr = f"""; gated_mix: MHA block + squared-relu FFN, gated mix.  Generated by gen/gen6.py
; @launch grid=(256,1,1) block=(512,1,1) lds={LDS_BYTES}
.amdgcn_target "amdgcn-amd-amdhsa--gfx950"
.text
.globl {NAME}_kernel
.type {NAME}_kernel,@function
"""
    gen(a)
    tail = f""".section .rodata,"a"
.p2align 6
.amdhsa_kernel {NAME}_kernel
  .amdhsa_next_free_vgpr 256
  .amdhsa_next_free_sgpr 102
  .amdhsa_accum_offset 256
  .amdhsa_group_segment_fixed_size 0
  .amdhsa_kernarg_size 96
  .amdhsa_user_sgpr_count 2
  .amdhsa_user_sgpr_kernarg_segment_ptr 1
  .amdhsa_system_sgpr_workgroup_id_x 1
.end_amdhsa_kernel
"""
    open(path, "w").write(hdr + a.text() + tail)


if __name__ == "__main__":
    main(sys.argv[1] if len(sys.argv) > 1 else f"cdna_kernels/{NAME}.s")
```

```python
import struct, math, sys, os

NAME = "gated_mix__mha_block__dense_activation_squared_relu__prompt"

WS_QF = 0x000000
WS_KV = 0x200000
WS_OF = 0x600000
WS_HF = 0x800000
WS_G = 0xF02000
WS_FL = 0xF04000
WS_FKV = WS_FL
WS_FH = WS_FL + 16384
WS_SIZE = 0xF0C000
NRESET = 32

QSCALE = 0.25 * math.log2(math.e)
LOG2E = math.log2(math.e)
PROF = int(os.environ.get("PROF", "0"))
WS_PROF = 0x2000000
if PROF:
    WS_SIZE = 0x2400000
SPIN_MAX = 1 << 15
MFMA = "v_mfma_f32_32x32x16_bf16"

STG = 28672
L_FLAGS = 143360
L_F7 = 147456
LDS_BYTES = 163840
def g_stage(j):
    return (131072, 131072 + 6144, 147456, 147456 + 6144)[j]


def f32(x):
    return "0x%08x" % struct.unpack("<I", struct.pack("<f", x))[0]


class Asm:
    def __init__(self):
        self.lines = []

    def __call__(self, s):
        for l in s.strip("\n").split("\n"):
            self.lines.append("    " + l.strip())

    def label(self, l):
        self.lines.append(l + ":")

    def raw(self, s):
        self.lines.append(s)

    def text(self):
        return "\n".join(self.lines) + "\n"


class VM:
    def __init__(self, cnt="vmcnt", mx=63):
        self.q = []
        self.cnt, self.mx = cnt, mx

    def op(self, tag, n=1):
        self.q += [tag] * n

    def wait(self, a, *tags):
        idx = [i for i, t in enumerate(self.q) if t in tags]
        if not idx:
            return
        n = len(self.q) - 1 - max(idx)
        a(f"s_waitcnt {self.cnt}({min(n, self.mx)})")
        self.q = self.q[max(idx) + 1:]

    def clear(self):
        self.q = []


L_BIAS = L_FLAGS + 256
W1_PAGES = {8: (21, 22, 23, 24), 9: (25, 26, 27, 28), 10: (29, 30, 31, 32), 11: (33, 34, 0, 1),
            12: (2, 3, 4, 5), 13: (6, 7, 8, 9), 14: (10, 11, 12, 13), 15: (36, 37, 38, 39)}
PLANS = {
    "a": {-1: [0, 1], 0: [2], 1: [3], 2: [4], 3: [5], 4: [6], 5: [7], 6: [8], 7: [9, "b", "c"], 8: [10, 11, 12, 13, 14, 15]},
    "b": {-1: [0, 1], 0: [2], 1: [3], 2: [4], 3: [5], 4: [6], 5: [7], 6: [8], 7: [9, "b", "c", 10, 11], 8: [12, 13, 14, 15]},
    "c": {-1: [0, 1], 0: [2], 1: [3], 2: [4], 3: [5], 4: [6], 5: [7], 6: [8, 9], 7: ["b", "c", 10, 11, 12], 8: [13, 14, 15]},
}
PLAN = PLANS[os.environ.get("PLAN", "a")]
NEED = {8: (8, 9, "b", "c")}
KV_PAGE = (14, 0, 18, 4, 22, 8, 26, 30)
KV_TBL_LO = sum(KV_PAGE[i] << (8 * i) for i in range(4))
KV_TBL_HI = sum(KV_PAGE[4 + i] << (8 * i) for i in range(4))
F_KVL, F_F7, F_C10, F_C14, F_FULL, F_ACK, F_AD, F_W1, F_ST, F_HS, F_W1B = 0, 4, 8, 12, 16, 32, 48, 52, 56, 60, 64
PSLEEP = int(os.environ.get("PSLEEP", "6"))
HSLEEP = int(os.environ.get("HSLEEP", "24"))
WARM2 = int(os.environ.get("WARM2", "1"))
ADN = int(os.environ.get("ADN", "4"))
PDELAY = int(os.environ.get("PDELAY", "0"))
HDELAY = int(os.environ.get("HDELAY", "1"))


PK = os.environ.get("PK", "abcd")
def vadd16(a, dst, src, tag):
    if tag in PK:
        for i in range(0, 16, 2):
            a(f"v_pk_add_f32 {vr(dst+i, 2)}, {vr(dst+i, 2)}, {vr(src+i, 2)}")
    else:
        for i in range(16):
            a(f"v_add_f32 v{dst+i}, v{dst+i}, v{src+i}")


def vscale16(a, dst, sreg, tag):
    if tag in PK:
        a(f"v_mov_b32 v{sreg+1}, v{sreg}")
        for i in range(0, 16, 2):
            a(f"v_pk_mul_f32 {vr(dst+i, 2)}, {vr(dst+i, 2)}, {vr(sreg, 2)}")
    else:
        for i in range(16):
            a(f"v_mul_f32 v{dst+i}, v{dst+i}, v{sreg}")


def vr(b, n):
    return f"v[{b}:{b+n-1}]" if n > 1 else f"v{b}"


def srd(a, d, base, size):
    a(f"s_mov_b32 s{d}, s{base}")
    a(f"s_and_b32 s{d+1}, s{base+1}, 0xffff")
    a(f"s_mov_b32 s{d+2}, {size}")
    a(f"s_mov_b32 s{d+3}, 0x00020000")


TIMER = "s_memtime" if os.environ.get("CYC") else "s_memrealtime"
NSTAMP = 14
def stamp(a, slot, mode=1):
    if not PROF or (mode != PROF and slot not in (1, NSTAMP - 1)):
        return
    a(f"{TIMER} s[92:93]")
    a("s_waitcnt lgkmcnt(0)")
    a(f"s_mov_b32 s{64+slot}, s92")


DBG_A = [True]
def init_stamps(a):
    if not PROF:
        return
    a("s_memtime s[94:95]")
    a(f"{TIMER} s[92:93]")
    a("s_waitcnt lgkmcnt(0)")
    a("s_mov_b32 s78, s94")
    for i in range(NSTAMP):
        a(f"s_mov_b32 s{64+i}, s92")


def dump_stamps(a):
    if not PROF:
        return
    if os.environ.get("DBGT"):
        stamp(a, NSTAMP - 1)
        srd(a, 24, P_DBG, 256)
        a("s_getreg_b32 s20, hwreg(HW_REG_XCC_ID, 0, 4)")
        a("s_sub_u32 s20, s20, s2")
        a("s_and_b32 s20, s20, 7")
        a("s_lshl_b32 s20, 1, s20")
        a("s_mov_b64 exec, 1")
        a("v_mov_b32 v2, 0")
        a("v_mov_b32 v4, s20")
        a("buffer_atomic_or v4, v2, s[24:27], 0 offen offset:4 sc1")
        a("s_not_b32 s20, s64")
        a("v_mov_b32 v5, s20")
        a("buffer_atomic_umax v5, v2, s[24:27], 0 offen offset:8 sc1")
        for i, sl in enumerate((0, 3, 4, 5, 8, 9, 10, 11, 13) if DBG_A[0] else (3, 5, 8, 13)):
            a(f"v_mov_b32 v{6+i}, s{64+sl}")
            a(f"buffer_atomic_umax v{6+i}, v2, s[24:27], 0 offen offset:{(12 if DBG_A[0] else 48) + 4*i} sc1")
        DBG_A[0] = False
        a("s_mov_b64 exec, -1")
        return
    a("s_memtime s[94:95]")
    stamp(a, NSTAMP - 1)
    a("s_mov_b32 s79, s94")
    a("v_lshrrev_b32 v2, 6, v0")
    a("v_lshlrev_b32 v2, 6, v2")
    a("s_lshl_b32 s20, s2, 10")
    a(f"s_add_u32 s20, s20, {WS_PROF}")
    a("s_mov_b64 exec, 1")
    for i in range(0, 16, 2):
        a(f"v_mov_b32 v4, s{64+i}")
        a(f"v_mov_b32 v5, s{65+i}")
        a(f"buffer_store_dwordx2 v[4:5], v2, s[12:15], s20 offen offset:{4*i}")
        a("s_nop 1")
    a("s_mov_b64 exec, -1")


P_X, P_WQKV, P_WO, P_BX, P_W1, P_B1, P_W2, P_B2, P_GATE, P_OUT, P_DBG, P_WS = [40 + 2 * i for i in range(12)]


def half_max(a, v, t):
    for sh in (8, 4, 2, 1):
        a("s_nop 1")
        a(f"v_max_f32_dpp v{v}, v{v}, v{v} row_ror:{sh} row_mask:0xf bank_mask:0xf")
    a("s_nop 0")
    a(f"v_mov_b32 v{t}, v{v}")
    a("s_nop 1")
    a(f"v_permlane16_swap_b32 v{v}, v{t}")
    a("s_nop 1")
    a(f"v_max_f32 v{v}, v{v}, v{t}")


def wave_max(a, v, t):
    half_max(a, v, t)
    a(f"v_mov_b32 v{t}, v{v}")
    a("s_nop 1")
    a(f"v_permlane32_swap_b32 v{v}, v{t}")
    a("s_nop 1")
    a(f"v_max_f32 v{v}, v{v}, v{t}")


def poll_global(a, name, voff, srdn, soff, want, vtmp, sleep, first_loaded=False, two=False):
    a("s_mov_b32 s96, 0")
    if first_loaded:
        a(f"s_branch {name}_chk")
    a.label(f"{name}_ld")
    if two:
        a(f"buffer_load_dwordx2 v[{vtmp}:{vtmp+1}], v{voff}, s[{srdn}:{srdn+3}], {soff} offen sc1")
        a("s_waitcnt vmcnt(0)")
        a(f"v_and_b32 v{vtmp}, v{vtmp}, v{vtmp+1}")
    else:
        a(f"buffer_load_dword v{vtmp}, v{voff}, s[{srdn}:{srdn+3}], {soff} offen sc1")
        a("s_waitcnt vmcnt(0)")
    a.label(f"{name}_chk")
    a(f"v_cmp_ne_u32 vcc, {want}, v{vtmp}")
    a("s_nop 4")
    a(f"s_cbranch_vccz {name}_ok")
    a("s_add_u32 s96, s96, 1")
    a(f"s_cmp_gt_u32 s96, {SPIN_MAX}")
    a(f"s_cbranch_scc1 {name}_ok")
    a(f"s_sleep {sleep}")
    a(f"s_branch {name}_ld")
    a.label(f"{name}_ok")


def poll_lds(a, name, vaddr, vtmp, cmp_instr, sleep=1):
    a("s_mov_b32 s97, 0")
    a.label(f"{name}_ld")
    a(f"ds_read_b32 v{vtmp}, v{vaddr}")
    a("s_waitcnt lgkmcnt(0)")
    a(f"v_readfirstlane_b32 s20, v{vtmp}")
    a("s_nop 3")
    a(cmp_instr)
    a(f"s_cbranch_scc1 {name}_ok")
    a("s_add_u32 s97, s97, 1")
    a(f"s_cmp_gt_u32 s97, {SPIN_MAX * 8}")
    a(f"s_cbranch_scc1 {name}_ok")
    a(f"s_sleep {sleep}")
    a(f"s_branch {name}_ld")
    a.label(f"{name}_ok")


def gen(a):
    a.raw(".p2align 8")
    a.label(f"{NAME}_kernel")
    a("s_cmp_ge_u32 s2, 256")
    a("s_cbranch_scc1 k_exit")
    init_stamps(a)
    a("s_load_dwordx16 s[40:55], s[0:1], 0")
    a("s_load_dwordx8 s[56:63], s[0:1], 64")
    a("v_and_b32 v1, 63, v0                    ; lane")
    a("v_lshrrev_b32 v2, 6, v0                 ; wave")
    a("s_and_b32 s28, s2, 7")
    a("v_readfirstlane_b32 s30, v2")
    a("s_lshr_b32 s29, s2, 3                   ; idx")
    a("v_lshlrev_b32 v3, 4, v1                 ; lane*16")
    a("s_and_b32 s20, s28, 1")
    a("s_lshl_b32 s20, s20, 3")
    a("s_and_b32 s21, s29, 7")
    a("s_add_u32 s31, s20, s21                 ; rg")
    a("s_lshr_b32 s20, s28, 1")
    a("s_lshl_b32 s20, s20, 2")
    a("s_lshr_b32 s22, s29, 3")
    a("s_add_u32 s32, s20, s22")
    a("s_lshl_b32 s22, s22, 1")
    a("s_add_u32 s33, s21, s22")
    a("s_and_b32 s33, s33, 7                   ; rot")
    a("s_waitcnt lgkmcnt(0)")
    stamp(a, 1)
    srd(a, 12, P_WS, WS_SIZE)
    srd(a, 24, P_DBG, 256)
    a("s_cmp_ge_u32 s30, 4")
    a("s_cbranch_scc1 k_g")
    gen_a(a)
    a.label("k_g")
    gen_g(a)
    a.label("k_exit")
    a("s_endpgm")


def gen_a(a):
    srd(a, 4, P_X, 2097152)
    srd(a, 8, P_WQKV, 1572864)
    srd(a, 16, P_W1, 1835008)
    a("v_lshrrev_b32 v8, 3, v1")
    a("v_lshrrev_b32 v5, 1, v8")
    a("s_and_b32 s20, s30, 1")
    a("s_lshl_b32 s20, s20, 2")
    a("v_add_u32 v5, s20, v5")
    a("v_and_b32 v6, 7, v1")
    a("v_xor_b32 v5, v5, v6")
    a("v_lshlrev_b32 v5, 4, v5")
    a("v_lshl_add_u32 v4, v8, 10, v5")
    a("v_lshrrev_b32 v8, 2, v1")
    a("v_and_b32 v9, 3, v1")
    a("v_lshlrev_b32 v9, 4, v9")
    a("v_mul_u32_u24 v5, 3072, v8")
    a("v_add_u32 v5, v5, v9")
    a("v_mul_u32_u24 v6, 3584, v8")
    a("v_add_u32 v6, v6, v9")
    a("s_lshl_b32 s34, s31, 17")
    a("s_lshl_b32 s20, s30, 13")
    a("s_add_u32 s34, s34, s20")
    a(f"s_mul_i32 s35, s30, {16*3072}")
    a("s_lshl_b32 s20, s32, 6")
    a("s_add_u32 s37, s35, s20                  ; q pair j")
    a("s_lshr_b32 s20, s32, 1")
    a("s_lshl_b32 s20, s20, 7")
    a("s_add_u32 s35, s35, s20")
    a("s_and_b32 s20, s32, 1")
    a("s_add_u32 s20, s20, 1")
    a("s_lshl_b32 s20, s20, 10")
    a("s_add_u32 s35, s35, s20")
    a(f"s_mul_i32 s36, s30, {16*3584}")
    a("s_lshl_b32 s20, s32, 8")
    a("s_add_u32 s36, s36, s20")
    a("s_lshl_b32 s38, s30, 10")

    srd(a, 80, P_B1, 3584)
    a("v_lshlrev_b32 v10, 2, v1                 ; lane*4")
    a("s_lshl_b32 s39, s32, 8")
    vm = VM()

    def issue(m):
        if m == "b":
            a(f"s_mov_b32 m0, {L_BIAS}")
            a("s_nop 0")
            a("buffer_load_dword v10, s[80:83], s39 offen lds")
            vm.op("b")
            return
        if m == "c":
            a("buffer_load_dword v7, v9, s[24:27], 0 offen sc1")
            vm.op("c")
            return
        a(f"s_add_u32 s21, s33, {m & 7}")
        a("s_and_b32 s21, s21, 7                    ; kc")
        if m < 8:
            st = (m % 5) * STG
            a("s_lshl_b32 s22, s21, 7")
            a("s_add_u32 s22, s22, s34")
            a(f"s_mul_i32 s23, s21, {64*3072}")
            for kind, i in (("x", 0), ("w", 0), ("w", 1), ("x", 1), ("x", 2), ("w", 2), ("x", 3)):
                if kind == "x":
                    a(f"s_add_u32 m0, s38, {st + i*4096}")
                    a(f"s_add_u32 s20, s22, {i*32768}")
                    a("buffer_load_dwordx4 v4, s[4:7], s20 offen lds")
                else:
                    a(f"s_add_u32 m0, s38, {st + 16384 + i*4096 - (64 if i == 1 else 0)}")
                    a(f"s_add_u32 s20, s23, s{37 if i == 2 else 35}")
                    a(f"buffer_load_dwordx4 v5, s[8:11], s20 offen{' offset:64' if i == 1 else ''} lds")
            vm.op(m, 7)
        else:
            a(f"s_mul_i32 s23, s21, {64*3584}")
            a("s_add_u32 s23, s23, s36")
            for i in range(4):
                a(f"s_add_u32 m0, s38, {W1_PAGES[m][i]*4096}")
                a(f"s_add_u32 s20, s23, {i*64}")
                a("buffer_load_dwordx4 v6, s[16:19], s20 offen lds")
            vm.op(m, 4)

    def sched(last, tag):
        short = tag == "s"
        ok = lambda m: not (short and (m == "b" or (m != "c" and m >= 8)))
        for n in range(last + 1):
            vm.wait(a, *NEED.get(n, (n,)))
            if n == 8:
                poll_global(a, f"a_ctr{tag}", 9, 24, "0", NRESET, 7, 8, first_loaded=True)
            if n < 11: stamp(a, 2 + n, 2)
            a("s_barrier")
            if n == 0: stamp(a, 3)
            if n == 8: stamp(a, 4)
            for m in PLAN.get(n, []):
                if ok(m):
                    issue(m)
            if n == WARM2:
                for i in range(3):
                    a(f"s_add_u32 s87, s86, {i*16384}")
                    a("s_min_u32 s87, s87, k_exit - k_pc")
                    a(f"s_load_dword s{88+i}, s[84:85], s87")

    a("s_getpc_b64 s[84:85]")
    a.label("k_pc")
    a("s_lshl_b32 s86, s29, 2")
    a("s_add_u32 s86, s86, s30")
    a("s_lshl_b32 s86, s86, 7")
    a("v_mov_b32 v9, 0")
    for m in PLAN[-1]:
        issue(m)
    stamp(a, 2)
    q0 = list(vm.q)
    a("s_cmp_ge_u32 s32, 14")
    a("s_cbranch_scc1 a_short")
    sched(8, "l")
    a(f"v_mov_b32 v4, {L_FLAGS}")
    a("v_mov_b32 v6, 1")
    a("s_mov_b64 exec, 1")
    vm.wait(a, 10, 11, 12)
    a(f"ds_add_u32 v4, v6 offset:{F_W1}")
    a("s_waitcnt vmcnt(0)")
    a(f"ds_add_u32 v4, v6 offset:{F_W1B}")
    a("s_mov_b64 exec, -1")
    a("s_branch a_p1done")
    a.label("a_short")
    vm.q = list(q0)
    sched(8, "s")
    a.label("a_p1done")
    stamp(a, 5)
    a("s_lshl_b32 s31, s28, 2")
    a("s_lshr_b32 s20, s29, 3")
    a("s_add_u32 s31, s31, s20                  ; h")
    a("s_and_b32 s32, s29, 7                    ; q chunk")
    a("s_lshl_b32 s33, s32, 2")
    a("s_add_u32 s33, s33, s30                  ; rb = 4c + w")
    a("s_lshl_b32 s21, s30, 1")
    a("s_add_u32 s21, s21, s32")
    a("s_and_b32 s21, s21, 7")
    a("s_lshl_b32 s24, s21, 8")
    a("s_lshl_b32 s21, s21, 13")
    a("s_add_u32 s23, s21, 0x2000")
    a("s_and_b32 s23, s23, 0xffff")
    a("s_lshl_b32 s22, s31, 17")
    a(f"s_add_u32 s22, s22, {WS_KV}")
    a("s_add_u32 s23, s23, s22")
    a("s_add_u32 s22, s21, s22")
    QA, QB, NMA, NMB, SA, SB, P, OA, OB = 8, 12, 16, 32, 48, 64, 80, 88, 104
    K0, K1, V0, V1 = 120, 124, 128, 136
    KA, KAN, VA, VAN, VL = 144, 145, 146, 147, 148
    a(f"s_mov_b32 s26, {KV_TBL_LO}")
    a(f"s_mov_b32 s27, {KV_TBL_HI}")
    def slot_base(dst):
        a("s_lshl_b32 s20, s25, 3")
        a(f"s_lshr_b64 s[{dst}:{dst+1}], s[26:27], s20")
        a(f"s_and_b32 s{dst}, s{dst}, 0xff")
        a(f"s_lshl_b32 s{dst}, s{dst}, 12")
        a("s_add_u32 s25, s25, 1")
        a("s_and_b32 s25, s25, 7")
    a("s_lshl_b32 s25, s30, 1")
    slot_base(4)
    slot_base(6)
    a("v_and_b32 v6, 31, v1                     ; m")
    a("v_and_b32 v7, 27, v1                     ; m & ~4")
    a("v_cmp_eq_u32 vcc, 16, v7")
    a("v_mov_b32 v4, 0x3f803f80")
    a("s_nop 0")
    a("v_cndmask_b32 v4, 0, v4, vcc")
    for r in range(V0, V0 + 16):
        a(f"v_mov_b32 v{r}, v4")
    a("v_lshrrev_b32 v7, 5, v1")
    a("v_lshlrev_b32 v7, 8, v7")
    a("v_lshl_add_u32 v7, v6, 4, v7")
    a(f"v_add_u32 v{VL}, 0x2000, v7")
    a("s_mov_b32 s34, 0xffff")
    a("s_mov_b32 s35, 0xffff")
    a("s_mov_b32 s36, 0")
    a("v_lshlrev_b32 v4, 6, v1")
    a("v_add_u32 v4, s24, v4")
    a("v_and_b32 v4, 0x7ff, v4")
    a("v_and_b32 v5, 1, v1")
    a("v_lshlrev_b32 v5, 6, v5")
    a("s_lshr_b32 s20, s33, 1")
    a("s_lshl_b32 s20, s20, 7")
    a("v_add_u32 v5, s20, v5")
    a("v_cmp_gt_u32 vcc, 8, v1")
    a("s_lshr_b32 s38, s31, 2")
    a("v_cndmask_b32 v4, v5, v4, vcc")
    a("s_lshl_b32 s38, s38, 11")
    a(f"s_add_u32 s38, s38, {WS_FKV}")
    a(f"v_mov_b32 v7, {L_FLAGS + F_ST}")
    poll_lds(a, "a_st", 7, 5, "s_cmp_ge_u32 s20, 4", sleep=2)
    stamp(a, 12)
    if PDELAY:
        a(f"s_sleep {PDELAY}")
    poll_global(a, "a_kv", 4, 12, "s38", 1, 6, PSLEEP)
    stamp(a, 6)
    a("s_lshl_b32 s20, s31, 5")
    a("s_add_u32 s20, s20, s33")
    a("s_lshl_b32 s20, s20, 11")
    a(f"s_add_u32 s20, s20, {WS_QF}")
    a(f"buffer_load_dwordx4 {vr(QA, 4)}, v3, s[12:15], s20 offen sc1")
    a(f"buffer_load_dwordx4 {vr(QB, 4)}, v3, s[12:15], s20 offen offset:1024 sc1")
    a(f"buffer_load_dwordx4 {vr(K0, 4)}, v3, s[12:15], s22 offen sc1")
    a(f"v_mov_b32 v4, {L_FLAGS + F_C10}")
    poll_lds(a, "a_c10", 4, 5, "s_cmp_ge_u32 s20, 4", sleep=2)
    stamp(a, 7)
    for part in range(4):
        a(f"s_add_u32 m0, s4, {(part >> 1) * 4096 + (part & 1) * 8192}")
        a(f"s_add_u32 s20, s22, {(part >> 1) * 4096 + (part & 1) * 65536}")
        for i in range(4):
            a(f"buffer_load_dwordx4 v3, s[12:15], s20 offen offset:{i*1024} sc1 lds")
    a("s_waitcnt vmcnt(16)")
    a(f"{MFMA} {vr(SA, 16)}, {vr(K0, 4)}, {vr(QA, 4)}, 0")
    a(f"{MFMA} {vr(SB, 16)}, {vr(K0, 4)}, {vr(QB, 4)}, 0")
    a(f"v_mov_b32 v5, {f32(-3.0e38)}")
    a(f"v_mov_b32 v6, {f32(-3.0e38)}")
    a("s_nop 15")
    def rowmax_step():
        for r in range(0, 16, 2):
            a(f"v_max3_f32 v5, v5, v{SA+r}, v{SA+r+1}")
        for r in range(0, 16, 2):
            a(f"v_max3_f32 v6, v6, v{SB+r}, v{SB+r+1}")
    def rowmax_fin():
        for v, NM in ((5, NMA), (6, NMB)):
            a(f"v_mov_b32 v7, v{v}")
            a("s_nop 1")
            a(f"v_permlane32_swap_b32 v{v}, v7")
            a("s_nop 1")
            a(f"v_max_f32 v{v}, v{v}, v7")
            a(f"v_sub_f32 v{v}, 0, v{v}")
            for r in range(16):
                a(f"v_mov_b32 v{NM+r}, v{v}")
    rowmax_step()
    rowmax_fin()
    a("s_mov_b32 s38, 0")
    a("s_waitcnt vmcnt(8)")

    a.label("a_start")
    stamp(a, 8)
    for r in range(32):
        a(f"v_mov_b32 v{OA+r}, 0")
    for r in range(4, 8):
        a(f"v_mov_b32 v{P+r}, 0")
    a("s_mov_b32 s37, 0")

    def next_addrs():
        slot_base(8)
        a(f"v_add_u32 v{KAN}, s8, v3")
        a(f"v_add_u32 v{VAN}, s8, v{VL}")
    a(f"v_add_u32 v{KA}, s4, v3")
    a(f"v_add_u32 v{VA}, s4, v{VL}")
    a("s_lshl_b32 s25, s30, 1")
    a("s_add_u32 s25, s25, 1")
    next_addrs()
    Kb = [K0, K1]
    Vb = [V0, V1]
    a(f"ds_read_b128 {vr(K0, 4)}, v{KA}")
    a(f"ds_read_b128 {vr(K1, 4)}, v{KA} offset:1024")
    a("s_mov_b64 exec, s[34:35]")
    a(f"ds_read_b128 {vr(V0, 4)}, v{VA}")
    a(f"ds_read_b128 {vr(V0+4, 4)}, v{VA} offset:512")
    a(f"ds_read_b128 {vr(V1+4, 4)}, v{VA} offset:512")
    a("s_mov_b64 exec, -1")
    a("s_waitcnt lgkmcnt(0)")
    a(f"{MFMA} {vr(SA, 16)}, {vr(K0, 4)}, {vr(QA, 4)}, {vr(NMA, 16)}")
    a("s_nop 7")
    a("s_nop 3")
    SPECIAL = (0, 1, 2, 3, 5, 6)
    a("s_cmp_lt_u32 s38, 2")
    a.raw(".p2align 6")
    a.label("a_loop")
    for u in range(8):
        cur, nxt = u & 1, (u + 1) & 1
        if u in SPECIAL:
            a(f"s_cbranch_scc1 a_sp{u}")
            a.label(f"a_back{u}")
        kread = (f"ds_read_b128 {vr(Kb[cur], 4)}, v{KA} offset:{(u+2)*1024}" if u + 2 < 8
                 else f"ds_read_b128 {vr(Kb[cur], 4)}, v{KAN} offset:{(u+2-8)*1024}")
        va, vo = (VA, (u + 1) * 1024) if u + 1 < 8 else (VAN, 0)
        for ph in range(2):
            S = (SA, SB)[ph]
            e = lambda r: a(f"v_exp_f32 v{S+r}, v{S+r}")
            c = lambda j: a(f"v_cvt_pk_bf16_f32 v{P+j}, v{S+2*j}, v{S+2*j+1}")
            if ph == 0:
                a(f"{MFMA} {vr(SB, 16)}, {vr(Kb[cur], 4)}, {vr(QB, 4)}, {vr(NMB, 16)}")
                a(kread)
                for r in range(5): e(r)
                a(f"{MFMA} {vr(OB, 16)}, {vr(Vb[nxt]+4, 4)}, {vr(P+4, 4)}, {vr(OB, 16)}")
                a("s_mov_b64 exec, s[34:35]")
                a(f"ds_read_b128 {vr(Vb[nxt], 4)}, v{va} offset:{vo}")
                a(f"ds_read_b128 {vr(Vb[nxt]+4, 4)}, v{va} offset:{vo+512}")
                a("s_mov_b64 exec, -1")
                for r in range(5, 8): e(r)
                for j in range(4): c(j)
                e(8); e(9)
                a("s_waitcnt lgkmcnt(3)")
                a(f"{MFMA} {vr(OA, 16)}, {vr(Vb[cur], 4)}, {vr(P, 4)}, {vr(OA, 16)}")
                for r in range(10, 16): e(r)
                for j in range(4, 8): c(j)
            else:
                a(f"{MFMA} {vr(SA, 16)}, {vr(Kb[nxt], 4)}, {vr(QA, 4)}, {vr(NMA, 16)}")
                for r in range(5): e(r)
                a(f"{MFMA} {vr(OA, 16)}, {vr(Vb[cur]+4, 4)}, {vr(P+4, 4)}, {vr(OA, 16)}")
                for r in range(5, 8): e(r)
                for j in range(4): c(j)
                e(8); e(9)
                a(f"{MFMA} {vr(OB, 16)}, {vr(Vb[cur], 4)}, {vr(P, 4)}, {vr(OB, 16)}")
                for r in range(10, 16): e(r)
                for j in range(4, 8): c(j)
                if u == 7:
                    a(f"v_mov_b32 v{KA}, v{KAN}")
                    a(f"v_mov_b32 v{VA}, v{VAN}")
    next_addrs()
    a("s_add_u32 s37, s37, 1")
    a("s_cmp_ge_u32 s37, 8")
    a("s_cbranch_scc1 a_loopend")
    a("s_cmp_lt_u32 s38, 2")
    a("s_branch a_loop")
    def signal_kv():
        a("s_waitcnt vmcnt(0)")
        a(f"v_mov_b32 v4, {L_FLAGS + F_KVL}")
        a("v_mov_b32 v6, 1")
        a("s_mov_b64 exec, 1")
        a("ds_add_u32 v4, v6")
        a("s_mov_b64 exec, -1")
        a("s_mov_b32 s38, 1")
        stamp(a, 9)
    for u in SPECIAL:
        a.label(f"a_sp{u}")
        if u < 4:
            a("s_cmp_lg_u32 s37, 0")
            a(f"s_cbranch_scc1 a_back{u}")
            if u == 0:
                a(f"v_mov_b32 v4, {L_FLAGS + F_C14}")
                poll_lds(a, "a_c14", 4, 5, "s_cmp_ge_u32 s20, 4", sleep=2)
            if u == 2:
                a("s_waitcnt vmcnt(8)")
            a(f"s_add_u32 m0, s6, {(u >> 1) * 4096 + (u & 1) * 8192}")
            a(f"s_add_u32 s20, s23, {(u >> 1) * 4096 + (u & 1) * 65536}")
            for i in range(4):
                a(f"buffer_load_dwordx4 v3, s[12:15], s20 offen offset:{i*1024} sc1 lds")
        elif u == 5:
            a("s_cmp_lg_u32 s37, 0")
            a(f"s_cbranch_scc1 a_back{u}")
            a("s_getreg_b32 s20, hwreg(HW_REG_IB_STS)")
            a("s_and_b32 s20, s20, 0xc0000f")
            a("s_cmp_lg_u32 s20, 0")
            a(f"s_cbranch_scc1 a_back{u}")
            signal_kv()
        else:
            a("s_cmp_lg_u32 s37, 0")
            a("s_cbranch_scc1 a_wait_all")
            a("s_cmp_lg_u32 s38, 0")
            a(f"s_cbranch_scc1 a_back{u}")
            signal_kv()
            a("s_branch a_back6")
            a.label("a_wait_all")
            a(f"v_mov_b32 v4, {L_FLAGS + F_KVL}")
            poll_lds(a, "a_all", 4, 5, "s_cmp_ge_u32 s20, 4")
            a("s_mov_b32 s38, 2")
            stamp(a, 10)
        a("s_cmp_eq_u32 s37, s37                    ; scc = 1")
        a(f"s_branch a_back{u}")
    a.label("a_loopend")
    a(f"{MFMA} {vr(OB, 16)}, {vr(Vb[1]+4, 4)}, {vr(P+4, 4)}, {vr(OB, 16)}")
    stamp(a, 11)
    stamp(a, 2, 3)
    a("s_waitcnt lgkmcnt(0)")
    a("s_lshl_b32 s20, s33, 6")
    a("s_add_u32 s20, s20, s31")
    a("s_lshl_b32 s20, s20, 10")
    a(f"s_add_u32 s20, s20, {WS_OF}")
    a(f"s_add_u32 s21, s20, {32*1024}")
    a("s_nop 8")
    a("s_cmp_lg_u32 s36, 0")
    a("s_cbranch_scc1 a_fin")
    a(f"v_add_f32 v7, v{OA+8}, v{OB+8}")
    a(f"v_cmp_nge_f32 vcc, {f32(2.0**60)}, v7")
    a("s_nop 4")
    a("s_cbranch_vccz a_fin")
    a("s_mov_b32 s36, 1")
    a(f"v_mov_b32 v5, {f32(-3.0e38)}")
    a(f"v_mov_b32 v6, {f32(-3.0e38)}")
    a("s_mov_b32 s37, 0")
    a.label("a_mx")
    a("s_and_b32 s20, s37, 7")
    a("s_cmp_lg_u32 s20, 0")
    a("s_cbranch_scc1 a_mx1")
    slot_base(8)
    a("v_add_u32 v4, s8, v3")
    a.label("a_mx1")
    a(f"ds_read_b128 {vr(K0, 4)}, v4")
    a("s_waitcnt lgkmcnt(0)")
    a(f"{MFMA} {vr(SA, 16)}, {vr(K0, 4)}, {vr(QA, 4)}, 0")
    a(f"{MFMA} {vr(SB, 16)}, {vr(K0, 4)}, {vr(QB, 4)}, 0")
    a("s_nop 15")
    rowmax_step()
    a("v_add_u32 v4, 1024, v4")
    a("s_add_u32 s37, s37, 1")
    a("s_cmp_lt_u32 s37, 64")
    a("s_cbranch_scc1 a_mx")
    rowmax_fin()
    a("s_branch a_start")
    a.label("a_fin")
    for i, O in enumerate((OA, OB)):
        a(f"v_rcp_f32 v6, v{O+8}")
        a("s_nop 0")
        for r in range(8):
            a(f"v_mul_f32 v{O+r}, v{O+r}, v6")
        for j in range(4):
            a(f"v_cvt_pk_bf16_f32 v{P+4*i+j}, v{O+2*j}, v{O+2*j+1}")
        for j in range(4):
            a(f"v_min_u32 v{P+4*i+j}, 0xfffeffff, v{P+4*i+j}")
        a(f"buffer_store_dwordx4 {vr(P+4*i, 4)}, v3, s[12:15], s{20+i} offen sc1")
    a(f"v_mov_b32 v4, {L_FLAGS + 48}")
    a("v_mov_b32 v6, 1")
    a("s_mov_b64 exec, 1")
    a("ds_add_u32 v4, v6")
    a("s_mov_b64 exec, -1")
    a("s_waitcnt lgkmcnt(0)")
    if PROF == 3:
        stamp(a, 3, 3)
        a("s_waitcnt vmcnt(0)")
    dump_stamps(a)
    a("s_endpgm")


def gen_g(a):
    a("s_sub_u32 s30, s30, 4                    ; g")
    a("s_lshl_b32 s34, s31, 2")
    a("s_add_u32 s34, s34, s30")
    a("v_lshlrev_b32 v4, 2, v1")
    a(f"v_add_u32 v4, {L_FLAGS}, v4")
    a("v_mov_b32 v5, 0")
    a("ds_write_b32 v4, v5")
    X = 128
    ACC = 64
    WA, WB = 32, 48
    for r in range(4):
        a(f"v_mov_b32 v{WA+r}, -1")
    a("s_lshl_b32 s20, s34, 5")
    a("s_lshl_b32 s21, s32, 1")
    a("s_add_u32 s20, s20, s21")
    a("s_lshl_b32 s20, s20, 10")
    a(f"s_add_u32 s20, s20, {WS_OF}")
    if not os.environ.get("NOSENT"):
        a(f"buffer_store_dwordx4 {vr(WA, 4)}, v3, s[12:15], s20 offen sc1")
        a(f"buffer_store_dwordx4 {vr(WA, 4)}, v3, s[12:15], s20 offen offset:1024 sc1")
    a("s_cmp_ge_u32 s2, 8")
    a("s_cbranch_scc1 g_noreset")
    for r in range(4):
        a(f"v_mov_b32 v{WB+r}, 0")
    a("s_lshl_b32 s20, s2, 2")
    a("s_add_u32 s20, s20, s30")
    a("s_lshl_b32 s20, s20, 10")
    a(f"s_add_u32 s20, s20, {WS_FL}")
    a(f"buffer_store_dwordx4 {vr(WB, 4)}, v3, s[12:15], s20 offen sc1")
    a.label("g_noreset")
    a("v_and_b32 v5, 31, v1                     ; t")
    a("v_lshrrev_b32 v6, 5, v1                  ; hh")
    a("v_bfe_u32 v7, v1, 1, 3")
    a("s_lshl_b32 s20, s30, 12")
    a("v_lshl_add_u32 v12, v5, 7, s20")
    for s in range(4):
        a(f"v_add_u32 v13, {2*s}, v6")
        a("v_xor_b32 v13, v13, v7")
        a(f"v_lshl_add_u32 v{8+s}, v13, 4, v12")
    a("v_bfe_u32 v13, v1, 4, 1")
    a("v_lshlrev_b32 v13, 5, v13")
    a("v_and_b32 v14, 3, v1")
    a("v_lshl_add_u32 v13, v14, 3, v13          ; colhalf*32 + c4*8")
    a("v_bfe_u32 v14, v1, 2, 2                  ; r")
    a("v_lshl_add_u32 v13, v14, 6, v13          ; + r*64")
    a("v_lshl_add_u32 v12, v6, 9, v13")
    a("v_lshl_add_u32 v14, v6, 8, v13")
    for r in range(ACC, ACC + 48):
        a(f"v_mov_b32 v{r}, 0")

    for s_ in range(4):
        a(f"v_add_u32 v{24+s_}, {3*STG}, v{8+s_}")
    a("v_add_u32 v28, 0x10000, v12")
    a("v_add_u32 v29, 0x20000, v12")

    lk = VM("lgkmcnt", 15)

    def stream(first, last, ncb, D, xfirst, bars, hook=None):
        items = [(n, s, c) for n in range(first, last + 1) for s in range(4) for c in range(ncb)]
        def R(k):
            n, s, c = items[k]
            if s == 0 and c == 0 and n in bars:
                a("s_barrier")
                if PROF == 2 and bars[n] is not None:
                    stamp(a, bars[n], 2)
                    lk.clear()
            if n < 8:
                st = n % 5
                page = 7 * st + 4 + c
                if c == 0:
                    xb, xo = (8 + s, st * STG) if st < 3 else (24 + s, (st - 3) * STG)
                    a(f"ds_read_b128 {vr(X + 16*n + 4*s, 4)}, v{xb} offset:{xo}")
                    lk.op(k)
            else:
                page = W1_PAGES[n][c]
            b = (12, 28, 29)[page >> 4]
            o = (page & 15) * 4096 + s * 1024
            w = WA + 4 * (k % 8)
            a(f"ds_read_b64_tr_b16 {vr(w, 2)}, v{b} offset:{o}")
            a(f"ds_read_b64_tr_b16 {vr(w+2, 2)}, v{b} offset:{o + 256}")
            lk.op(k, 2)
            assert len(lk.q) <= 15
        for k in range(D):
            R(k)
        for k, (n, s, c) in enumerate(items):
            lk.wait(a, k)
            xf = vr(X + 16 * (n & 7) + 4 * s, 4)
            w = vr(WA + 4 * (k % 8), 4)
            d = vr(ACC + 16 * c, 16)
            if xfirst(c):
                a(f"{MFMA} {d}, {xf}, {w}, {d}")
            else:
                a(f"{MFMA} {d}, {w}, {xf}, {d}")
            if k + D < len(items):
                R(k + D)
            if hook:
                hook(n, s, c)

    def pack(b):
        for j in range(8):
            a(f"v_cvt_pk_bf16_f32 v{b+j}, v{b+2*j}, v{b+2*j+1}")

    BI = 32
    def bias_reads():
        for c in range(4):
            for q in range(0, 4, 2):
                d = BI + 2 * (c * 4 + q)
                a(f"ds_read2_b64 {vr(d, 4)}, v15 offset0:{(c*64 + q*16)//8} offset1:{(c*64 + q*16 + 16)//8}")

    a(f"v_lshlrev_b32 v15, 3, v6")
    a(f"v_add_u32 v15, {L_BIAS}, v15")
    a("v_mov_b32 v16, 0")
    a("v_mov_b32 v22, 1")
    a("s_lshr_b32 s35, s32, 1")
    a("s_lshl_b32 s35, s35, 2")
    a("s_lshl_b32 s38, s35, 7")
    a("s_add_u32 s38, s38, s34")
    a("s_lshl_b32 s38, s38, 10")
    a(f"s_add_u32 s38, s38, {WS_KV}")
    TOUCH = os.environ.get("TOUCH", "0")
    def touch(tag):
        a("v_lshlrev_b32 v30, 20, v1")
        a("s_cmp_eq_u32 s30, 0")
        a(f"s_cbranch_scc0 g_t1{tag}")
        a("s_mov_b64 exec, 0xffff")
        a("buffer_load_dword v23, v30, s[12:15], 0 offen")
        a("s_mov_b64 exec, -1")
        a.label(f"g_t1{tag}")
        a("s_cmp_eq_u32 s30, 1")
        a(f"s_cbranch_scc0 g_t2{tag}")
        a("s_mov_b64 exec, 3")
        a("buffer_load_dword v23, v30, s[4:7], 0 offen")
        a("buffer_load_dword v23, v30, s[8:11], 0 offen")
        a("s_mov_b64 exec, -1")
        a.label(f"g_t2{tag}")
        a("s_cmp_eq_u32 s30, 2")
        a(f"s_cbranch_scc0 g_t3{tag}")
        a("s_mov_b64 exec, 3")
        a("buffer_load_dword v23, v30, s[16:19], 0 offen")
        a("buffer_load_dword v23, v30, s[80:83], 0 offen")
        a("s_mov_b64 exec, -1")
        a.label(f"g_t3{tag}")
    srd(a, 4, P_W2, 1835008)
    srd(a, 8, P_WO, 524288)
    srd(a, 16, P_B2, 1024)
    srd(a, 80, P_OUT, 2097152)
    if TOUCH == "1":
        touch("a")
    a(f"v_mov_b32 v17, {L_FLAGS}")
    a("s_waitcnt lgkmcnt(0)")
    bars = {n: 2 + n for n in range(8)}
    def thook(tag):
        def h(n, s, c):
            if TOUCH == "2" and (n, s, c) == (1, 0, 0):
                touch(tag)
            if (n, s, c) == (1, 2, 0):
                a("s_cmp_ge_u32 s2, 8")
                a(f"s_cbranch_scc1 g_nocnt{tag}")
                a("s_waitcnt vmcnt(0)")
                a("s_mov_b64 exec, 1")
                a("buffer_atomic_add v22, v16, s[24:27], 0 offen sc1")
                a("s_mov_b64 exec, -1")
                a.label(f"g_nocnt{tag}")
        return h
    a("s_bitcmp1_b32 s32, 0")
    a("s_cbranch_scc1 g_vpath")
    stream(0, 7, 3, 6, lambda c: False, bars, thook("k"))
    stamp(a, 3)
    a("s_nop 7")
    for c in range(2):
        bk = ACC + 16 * c
        pack(bk)
        for u in range(2):
            a(f"s_add_u32 s20, s38, {(2*c + u) * 131072}")
            a(f"buffer_store_dwordx4 {vr(bk+4*u, 4)}, v3, s[12:15], s20 offen sc1")
    a("s_branch g_qpath")
    a.label("g_vpath")
    lk.clear()
    stream(0, 7, 3, 6, lambda c: c < 2, bars, thook("v"))
    stamp(a, 3)
    a("s_nop 7")
    a("v_bfe_u32 v20, v1, 4, 1")
    a("v_lshlrev_b32 v20, 17, v20")
    a("v_lshl_add_u32 v20, v6, 8, v20")
    a("v_and_b32 v21, 15, v1")
    a("v_lshl_add_u32 v20, v21, 4, v20")
    for c in range(2):
        bv = ACC + 16 * c
        pack(bv)
        a(f"s_add_u32 s20, s38, {65536 + 2*c*131072}")
        a(f"buffer_store_dwordx4 {vr(bv, 4)}, v20, s[12:15], s20 offen sc1")
        a(f"buffer_store_dwordx4 {vr(bv+4, 4)}, v20, s[12:15], s20 offen offset:512 sc1")
    a.label("g_qpath")
    bq = ACC + 32
    a(f"s_mov_b32 s36, {f32(QSCALE)}")
    for r in range(16):
        a(f"v_mul_f32 v{bq+r}, s36, v{bq+r}")
    pack(bq)
    a("s_lshl_b32 s20, s32, 7")
    a("s_add_u32 s20, s20, s34")
    a("s_lshl_b32 s20, s20, 10")
    a(f"s_add_u32 s20, s20, {WS_QF}")
    a(f"s_add_u32 s21, s20, 65536")
    a(f"buffer_store_dwordx4 {vr(bq, 4)}, v3, s[12:15], s20 offen sc1")
    a(f"buffer_store_dwordx4 {vr(bq+4, 4)}, v3, s[12:15], s21 offen sc1")
    a("s_lshl_b32 s36, s31, 4")
    a("s_add_u32 s36, s36, s32")
    a("s_lshl_b32 s36, s36, 6")
    a(f"s_add_u32 s36, s36, {WS_FH}               ; FH[rg][j]")
    a("s_lshl_b32 s35, s35, 2                   ; quad*16")
    a("s_add_u32 s35, s35, s31")
    a("s_lshl_b32 s35, s35, 1")
    a("s_and_b32 s20, s32, 1")
    a("s_add_u32 s35, s35, s20")
    a("s_lshl_b32 s35, s35, 6")
    a(f"s_add_u32 s35, s35, {WS_FKV}              ; FKV[quad][rg][par]")
    stamp(a, 4)

    def send_flag(sreg):
        a("s_waitcnt vmcnt(0)")
        a("s_mov_b64 exec, 1")
        a(f"ds_add_rtn_u32 v18, v17, v22 offset:{F_ST}")
        a("s_waitcnt lgkmcnt(0)")
        a("v_cmp_eq_u32 vcc, 3, v18")
        a("s_nop 4")
        a("s_and_b64 exec, exec, vcc")
        lab = f"g_pub{len(a.lines)}"
        a(f"s_cbranch_execz {lab}")
        a(f"buffer_store_dword v22, v16, s[12:15], {sreg} offen sc1")
        a.label(lab)
        a("s_mov_b64 exec, -1")

    a("s_cmp_ge_u32 s32, 14")
    a("s_cbranch_scc1 g_noffn1")
    a("s_barrier                                ; B8")
    stamp(a, 10, 2)
    bias_reads()
    a("s_waitcnt lgkmcnt(0)                     ; bias")
    for c in range(4):
        for q in range(4):
            d = BI + 2 * (c * 4 + q)
            r = ACC + 16 * c + 4 * q
            a(f"v_lshlrev_b32 v{r}, 16, v{d}")
            a(f"v_and_b32 v{r+1}, 0xffff0000, v{d}")
            a(f"v_lshlrev_b32 v{r+2}, 16, v{d+1}")
            a(f"v_and_b32 v{r+3}, 0xffff0000, v{d+1}")
    a("s_mov_b32 s37, 0")
    lk.clear()
    def lds_signal(off):
        a("s_mov_b64 exec, 1")
        a(f"ds_add_u32 v17, v22 offset:{off}")
        a("s_mov_b64 exec, -1")
        lk.op("sig")
    def hook(n, s, c):
        if (n, s, c) == (10, 3, 3):
            lds_signal(F_C10)
        if (n, s, c) == (14, 3, 3):
            lds_signal(F_C14)
        for nn, off in ((9, F_W1), (12, F_W1B)):
            if (n, s, c) == (nn, 0, 0):
                a(f"ds_read_b32 v20, v17 offset:{off}")
                lk.op("w1")
            if (n, s, c) == (nn, 2, 0):
                lk.wait(a, "w1")
                a("v_readfirstlane_b32 s20, v20")
                a("s_nop 3")
                a("s_cmp_ge_u32 s20, 4")
                a(f"s_cbranch_scc1 g_w1ok{nn}")
                a(f"v_mov_b32 v19, {L_FLAGS + off}")
                poll_lds(a, f"g_w1{nn}", 19, 20, "s_cmp_ge_u32 s20, 4", sleep=2)
                a.label(f"g_w1ok{nn}")
        if c != 3 or s not in (1, 3):
            return
        lab = f"g_fl{n}_{s}"
        a("s_cmp_eq_u32 s37, 0")
        a(f"s_cbranch_scc0 {lab}")
        if not (n == 15 and s == 3):
            a("s_getreg_b32 s20, hwreg(HW_REG_IB_STS, 0, 4)")
            a("s_cmp_eq_u32 s20, 0")
            a(f"s_cbranch_scc0 {lab}")
        send_flag("s35")
        a("s_mov_b32 s37, 1")
        stamp(a, 5)
        a.label(lab)
    FD = 7
    assert 16 * 3 - FD == 2 * 16 + 2 * 4 + 0 + 1
    stream(8, 15, 4, FD, lambda c: False, {}, hook)
    stamp(a, 6)
    a("s_nop 15")
    a("s_mul_i32 s20, s34, 112")
    a("s_lshl_b32 s21, s32, 3")
    a("s_add_u32 s20, s20, s21")
    a("s_lshl_b32 s20, s20, 10")
    a(f"s_add_u32 s20, s20, {WS_HF}")
    a("s_add_u32 s21, s20, 4096")
    for c in range(4):
        b = ACC + 16 * c
        for r in range(16):
            a(f"v_max_f32 v{b+r}, 0, v{b+r}")
        for r in range(0, 16, 2):
            a(f"v_pk_mul_f32 {vr(b+r, 2)}, {vr(b+r, 2)}, {vr(b+r, 2)}")
        pack(b)
    if HDELAY:
        a("s_mov_b32 s22, s20")
        a(f"v_mov_b32 v8, {L_FLAGS}")
        poll_lds(a, "g_kvl", 8, 9, "s_cmp_ge_u32 s20, 4", sleep=8)
        a("s_mov_b32 s20, s22")
    for c in range(4):
        b = ACC + 16 * c
        for u in range(2):
            a(f"buffer_store_dwordx4 {vr(b+4*u, 4)}, v3, s[12:15], s{20 + (c >> 1)} offen offset:{((c & 1)*2 + u)*1024} sc1")
    a("s_branch g_p1done")
    a.label("g_noffn1")
    a("s_waitcnt lgkmcnt(0)")
    a("s_barrier                                ; B8")
    lds_signal(F_C10)
    lds_signal(F_C14)
    send_flag("s35")
    a("s_cmp_eq_u32 s32, 15")
    a("s_cbranch_scc1 g_p1done")
    srd(a, 16, P_GATE, 1024)
    for r in range(16):
        a(f"v_mov_b32 v{ACC+r}, 0")
    a("v_lshlrev_b32 v15, 4, v6                 ; hh*16")
    for n in range(8):
        a(f"s_add_u32 s21, s33, {n}")
        a("s_and_b32 s21, s21, 7")
        a("s_lshl_b32 s21, s21, 7")
        for s in range(4):
            a(f"buffer_load_dwordx4 {vr(WA + 4*s, 4)}, v15, s[16:19], s21 offen offset:{s*32}")
        a("s_waitcnt vmcnt(0)")
        for s in range(4):
            a(f"{MFMA} {vr(ACC, 16)}, {vr(WA + 4*s, 4)}, {vr(X + 16*n + 4*s, 4)}, {vr(ACC, 16)}")
    a("s_nop 15")
    a("v_lshlrev_b32 v15, 2, v1")
    a("s_lshl_b32 s20, s34, 7")
    a(f"s_add_u32 s20, s20, {WS_G}")
    a("s_mov_b32 exec_hi, 0")
    a(f"buffer_store_dword v{ACC}, v15, s[12:15], s20 offen sc1")
    a("s_mov_b64 exec, -1")
    a.label("g_p1done")
    srd(a, 4, P_W2, 1835008)
    srd(a, 8, P_WO, 524288)
    srd(a, 16, P_B2, 1024)
    srd(a, 24, P_OUT, 2097152)
    a("s_lshl_b32 s31, s28, 2")
    a("s_lshr_b32 s20, s29, 3")
    a("s_add_u32 s31, s31, s20                  ; rb")
    a("s_and_b32 s32, s29, 7                    ; cp")
    a("s_and_b32 s38, s30, 1")
    a("s_lshr_b32 s39, s30, 1")
    a("s_lshl_b32 s41, s31, 1")
    a("s_add_u32 s41, s41, s38")
    a("s_xor_b32 s42, s41, 1")
    a("s_lshl_b32 s40, s32, 1")
    a("s_add_u32 s40, s40, s39")
    a("s_xor_b32 s43, s40, 1")
    a("s_mul_i32 s21, s30, 28")
    a("s_lshl_b32 s20, s21, 14")
    a("s_lshl_b32 s33, s40, 6")
    a("s_add_u32 s33, s33, s20")
    a("s_lshl_b32 s35, s43, 6")
    a("s_add_u32 s35, s35, s20")
    a("v_lshrrev_b32 v8, 2, v1")
    a("v_and_b32 v9, 3, v1")
    a("v_lshlrev_b32 v8, 10, v8")
    a("v_lshl_add_u32 v4, v9, 4, v8")
    AF = 16
    HB = 80
    WF = 112
    WO = 128
    ND = 7
    ST = lambda i: 128 + 16 * i
    vm = VM()
    vm.op("hst")
    def ldW(k):
        i = k % ND
        a(f"buffer_load_dwordx4 {vr(ST(i), 4)}, v4, s[4:7], s33 offen")
        a(f"buffer_load_dwordx4 {vr(ST(i)+4, 4)}, v4, s[4:7], s35 offen")
        a("s_add_u32 s33, s33, 16384")
        a("s_add_u32 s35, s35, 16384")
        vm.op(("w", k), 2)
    def ldH(k):
        i = k % ND
        a(f"buffer_load_dwordx4 {vr(ST(i)+8, 4)}, v3, s[12:15], s22 offen sc1")
        a(f"buffer_load_dwordx4 {vr(ST(i)+12, 4)}, v3, s[12:15], s23 offen sc1")
        a("s_add_u32 s22, s22, 1024")
        a("s_add_u32 s23, s23, 1024")
        vm.op(("h", k), 2)
    def ldWo(k):
        a(f"s_add_u32 s20, s98, {k*16384}")
        a(f"buffer_load_dwordx4 {vr(WO+8*k, 4)}, v4, s[8:11], s20 offen")
        a(f"s_add_u32 s20, s99, {k*16384}")
        a(f"buffer_load_dwordx4 {vr(WO+8*k+4, 4)}, v4, s[8:11], s20 offen")
        vm.op(("o", k), 2)
    if HDELAY:
        a(f"v_mov_b32 v8, {L_FLAGS}")
        poll_lds(a, "g_kvl2", 8, 9, "s_cmp_ge_u32 s20, 4", sleep=8)
    for k in range(ND):
        ldW(k)
    a("s_lshl_b32 s20, s39, 18")
    a("s_lshl_b32 s98, s40, 6")
    a("s_add_u32 s98, s98, s20")
    a("s_lshl_b32 s99, s43, 6")
    a("s_add_u32 s99, s99, s20")
    ldWo(14)
    ldWo(15)
    for sd, st in ((22, 41), (23, 42)):
        a(f"s_mul_i32 s{sd}, s{st}, 112")
        a(f"s_add_u32 s{sd}, s{sd}, s21")
        a(f"s_lshl_b32 s{sd}, s{sd}, 10")
        a(f"s_add_u32 s{sd}, s{sd}, {WS_HF}")
    a("s_lshl_b32 s34, s30, 12")
    a(f"s_add_u32 s34, s34, {36*4096}")
    a("v_add_u32 v7, s34, v14")
    a("v_add_u32 v12, s34, v3")
    a(f"v_mov_b32 v8, {L_FLAGS + 4}")
    a("v_mov_b32 v9, 1")
    a("s_mov_b64 exec, 1")
    a("ds_add_u32 v8, v9")
    vm.wait(a, "hst")
    a(f"ds_add_rtn_u32 v10, v17, v22 offset:{F_HS}")
    a("s_waitcnt lgkmcnt(0)")
    a("v_readfirstlane_b32 s20, v10")
    a("s_nop 3")
    a("s_cmp_lg_u32 s20, 3")
    a("s_cbranch_scc1 g_nohpub")
    a("buffer_store_dword v22, v16, s[12:15], s36 offen sc1")
    a.label("g_nohpub")
    a("s_mov_b64 exec, -1")
    stamp(a, 7)
    poll_lds(a, "g_f7", 8, 9, "s_cmp_ge_u32 s20, 4", sleep=4)
    a("v_and_b32 v8, 15, v1")
    a("v_lshlrev_b32 v8, 6, v8")
    a("s_lshr_b32 s36, s31, 1")
    a("s_lshl_b32 s36, s36, 10")
    a(f"s_add_u32 s36, s36, {WS_FH}")
    poll_global(a, "g_hw", 8, 12, "s36", 1, 9, HSLEEP)
    vm.clear()
    stamp(a, 8)
    for k in range(ND):
        ldH(k)
    def prep(k):
        i = k % ND
        w = WF + 8 * (k & 1)
        vm.wait(a, ("w", k))
        a(f"ds_write_b128 v12, {vr(ST(i), 4)}")
        a(f"ds_write_b128 v12, {vr(ST(i)+4, 4)} offset:1024")
        for cl in range(2):
            a(f"ds_read_b64_tr_b16 {vr(w+4*cl, 2)}, v7 offset:{cl*1024}")
            a(f"ds_read_b64_tr_b16 {vr(w+4*cl+2, 2)}, v7 offset:{cl*1024+512}")
    prep(0)
    for k in range(28):
        i = k % ND
        w = WF + 8 * (k & 1)
        if k + 1 < 28:
            prep(k + 1)
            a("s_waitcnt lgkmcnt(6)")
        else:
            a("s_waitcnt lgkmcnt(0)")
        if k + ND < 28:
            ldW(k + ND)
        else:
            ldWo(2 * i)
        vm.wait(a, ("h", k))
        for cl in range(2):
            for tl in range(2):
                d = vr(AF + 16 * (tl + 2 * cl), 16)
                a(f"{MFMA} {d}, {vr(w + 4*cl, 4)}, {vr(ST(i) + 8 + 4*tl, 4)}, {d if k else 0}")
        if k + ND < 28:
            ldH(k + ND)
        else:
            ldWo(2 * i + 1)
    stamp(a, 9)
    for k in list(range(14, 16)) + list(range(14)):
        vm.wait(a, ("o", k))
        a(f"ds_write_b128 v12, {vr(WO+8*k, 4)}")
        a(f"ds_write_b128 v12, {vr(WO+8*k+4, 4)} offset:1024")
        for cl in range(2):
            a(f"ds_read_b64_tr_b16 {vr(WO+8*k+4*cl, 2)}, v7 offset:{cl*1024}")
            a(f"ds_read_b64_tr_b16 {vr(WO+8*k+4*cl+2, 2)}, v7 offset:{cl*1024+512}")
        if k & 1:
            a("s_waitcnt lgkmcnt(0)")
    stamp(a, 10)
    a("v_lshlrev_b32 v8, 2, v5")
    a("s_lshl_b32 s20, s41, 7")
    a(f"s_add_u32 s20, s20, {WS_G}")
    a("buffer_load_dword v10, v8, s[12:15], s20 offen sc1")
    a("v_lshlrev_b32 v8, 3, v6")
    a("s_lshl_b32 s20, s40, 6")
    for q in range(4):
        a(f"buffer_load_dwordx2 {vr(WF+2*q, 2)}, v8, s[16:19], s20 offen offset:{q*16}")
    a("s_lshl_b32 s20, s30, 2")
    a(f"s_add_u32 s20, s20, {L_FLAGS + 16}")
    a("v_mov_b32 v13, s20")
    def partner(r):
        a(f"s_xor_b32 s36, s30, {r}")
        a("s_lshl_b32 s21, s36, 12")
        a(f"s_add_u32 s21, s21, {36*4096}")
        a("s_lshl_b32 s36, s36, 2")
        a(f"s_add_u32 s36, s36, {L_FLAGS + 16}")
    def xchg(r, seq, src, dst_tmp, tag, need_ack):
        if need_ack:
            a("v_add_u32 v8, 16, v13")
            poll_lds(a, f"{tag}a", 8, 9, f"s_cmp_ge_u32 s20, {seq-1}")
        for q in range(4):
            a(f"ds_write_b128 v12, {vr(src+4*q, 4)} offset:{q*1024}")
        partner(r)
        a(f"v_mov_b32 v9, {seq}")
        a("s_waitcnt lgkmcnt(0)")
        a("ds_write_b32 v13, v9")
        a("v_mov_b32 v8, s36")
        poll_lds(a, f"{tag}f", 8, 11, f"s_cmp_ge_u32 s20, {seq}")
        a("v_add_u32 v11, s21, v3")
        for q in range(4):
            a(f"ds_read_b128 {vr(dst_tmp+4*q, 4)}, v11 offset:{q*1024}")
        a("s_waitcnt lgkmcnt(0)")
        a("ds_write_b32 v8, v9 offset:16")
    T0, T1 = AF, AF + 32
    for seq, (src, dst) in enumerate(((AF + 16, T0), (AF + 48, T1)), 1):
        xchg(1, seq, src, HB, f"g_r{seq}", seq > 1)
        vadd16(a, dst, HB, "a")
    a("s_waitcnt vmcnt(0)")
    a(f"v_max_f32 v10, {f32(-60.0)}, v10")
    a(f"v_mul_f32 v10, {f32(-LOG2E)}, v10")
    a("v_exp_f32 v14, v10                       ; e^-z")
    a("s_nop 0")
    a("v_add_f32 v10, 1.0, v14")
    a("v_rcp_f32 v10, v10                       ; g")
    for q in range(4):
        d = WF + 2 * q
        a(f"v_lshlrev_b32 v8, 16, v{d}")
        a(f"v_add_f32 v{AF+4*q}, v{AF+4*q}, v8")
        a(f"v_and_b32 v8, 0xffff0000, v{d}")
        a(f"v_add_f32 v{AF+4*q+1}, v{AF+4*q+1}, v8")
        a(f"v_lshlrev_b32 v8, 16, v{d+1}")
        a(f"v_add_f32 v{AF+4*q+2}, v{AF+4*q+2}, v8")
        a(f"v_and_b32 v8, 0xffff0000, v{d+1}")
        a(f"v_add_f32 v{AF+4*q+3}, v{AF+4*q+3}, v8")
    for T in (T0, T1):
        vscale16(a, T, 14, "b")
    OBF = AF + 48
    a("s_lshl_b32 s22, s41, 5")
    a("s_lshl_b32 s20, s39, 4")
    a("s_add_u32 s22, s22, s20")
    a("s_lshl_b32 s22, s22, 10")
    a(f"s_add_u32 s22, s22, {WS_OF}")
    for i in range(1, 4):
        a(f"s_add_u32 s{44+i}, s22, {i*4096}")
    a("s_mov_b32 s44, s22")
    a("v_add_u32 v8, 16, v13")
    poll_lds(a, "g_ak", 8, 9, "s_cmp_ge_u32 s20, 2", sleep=2)
    stamp(a, 11)
    a(f"v_mov_b32 v8, {L_FLAGS + F_AD}")
    poll_lds(a, "g_ad", 8, 9, f"s_cmp_ge_u32 s20, {ADN}", sleep=4)
    stamp(a, 12)
    stamp(a, 2, 3)
    ldO = lambda k: a(f"buffer_load_dwordx4 {vr(OBF+4*k, 4)}, v3, s[12:15], s{44 + k//4} offen offset:{(k%4)*1024} sc1")
    for k in range(16):
        ldO(k)
    a("s_mov_b32 s37, 0xffff")
    a("s_mov_b32 s96, 0")
    a.label("g_oround")
    if os.environ.get("OWAIT"): a("s_waitcnt vmcnt(0)")
    for k in range(16):
        b = OBF + 4 * k
        a(f"s_bitcmp1_b32 s37, {k}")
        a(f"s_cbranch_scc0 g_onext{k}")
        a(f"s_waitcnt vmcnt({15-k})")
        a(f"v_max3_u32 v8, v{b}, v{b+1}, v{b+2}")
        a(f"v_max_u32 v8, v8, v{b+3}")
        a("v_cmp_eq_u32 vcc, -1, v8")
        a("s_nop 4")
        a(f"s_cbranch_vccnz g_oretry{k}")
        for cl, T in enumerate((T0, T1)):
            d = vr(T, 16)
            a(f"{MFMA} {d}, {vr(WO + 8*k + 4*cl, 4)}, {vr(b, 4)}, {d}")
        a(f"s_bitset0_b32 s37, {k}")
        a.label(f"g_onext{k}")
    a("s_cmp_eq_u32 s37, 0")
    a("s_cbranch_scc1 g_odone")
    a("s_add_u32 s96, s96, 1")
    a(f"s_cmp_lt_u32 s96, {SPIN_MAX}")
    a("s_waitcnt vmcnt(0)")
    a("s_cbranch_scc1 g_oround")
    a("s_branch g_odone")
    for k in range(16):
        a.label(f"g_oretry{k}")
        ldO(k)
        a(f"s_branch g_onext{k}")
    a.label("g_odone")
    a("s_nop 15")
    stamp(a, 6, 3)
    xchg(2, 3, T1, AF + 16, "g_r4", False)
    stamp(a, 7, 3)
    vadd16(a, AF, AF + 16, "c")
    vscale16(a, AF, 10, "d")
    P = OBF
    for j in range(8):
        a(f"v_cvt_pk_bf16_f32 v{P+j}, v{AF+2*j}, v{AF+2*j+1}")
    a("v_lshlrev_b32 v8, 10, v5")
    a("v_lshl_add_u32 v8, v6, 4, v8")
    for pa in (0, 2):
        a(f"v_permlane32_swap_b32 v{P+2*pa}, v{P+2*pa+2}")
        a(f"v_permlane32_swap_b32 v{P+2*pa+1}, v{P+2*pa+3}")
    a("s_lshl_b32 s20, s41, 15")
    a("s_lshl_b32 s21, s40, 6")
    a("s_add_u32 s20, s20, s21")
    a(f"buffer_store_dwordx4 {vr(P, 4)}, v8, s[24:27], s20 offen")
    a(f"buffer_store_dwordx4 {vr(P+4, 4)}, v8, s[24:27], s20 offen offset:32")
    a("s_waitcnt lgkmcnt(0)")
    if PROF == 3:
        a("s_mul_i32 s73, s96, 100")
        a("s_add_u32 s73, s73, s64")
        stamp(a, 8, 3)
        a("s_waitcnt vmcnt(0)")
    dump_stamps(a)
    a("s_endpgm")


def main(path):
    a = Asm()
    hdr = f"""; gated_mix: MHA block + squared-relu FFN, gated mix.  Generated by gen/gen6.py
; @launch grid=(256,1,1) block=(512,1,1) lds={LDS_BYTES}
.amdgcn_target "amdgcn-amd-amdhsa--gfx950"
.text
.globl {NAME}_kernel
.type {NAME}_kernel,@function
"""
    gen(a)
    tail = f""".section .rodata,"a"
.p2align 6
.amdhsa_kernel {NAME}_kernel
  .amdhsa_next_free_vgpr 256
  .amdhsa_next_free_sgpr 102
  .amdhsa_accum_offset 256
  .amdhsa_group_segment_fixed_size 0
  .amdhsa_kernarg_size 96
  .amdhsa_user_sgpr_count 2
  .amdhsa_user_sgpr_kernarg_segment_ptr 1
  .amdhsa_system_sgpr_workgroup_id_x 1
.end_amdhsa_kernel
"""
    open(path, "w").write(hdr + a.text() + tail)


if __name__ == "__main__":
    main(sys.argv[1] if len(sys.argv) > 1 else f"cdna_kernels/{NAME}.s")
```

```python
import struct, math, sys, os

NAME = "gated_mix__mha_block__dense_activation_squared_relu__prompt"

WS_QF = 0x000000
WS_KV = 0x200000
WS_OF = 0x600000
WS_HF = 0x800000
WS_G = 0xF02000
WS_FL = 0xF04000
WS_FKV = WS_FL
WS_FH = WS_FL + 16384
WS_SIZE = 0xF0C000
NRESET = 32

QSCALE = 0.25 * math.log2(math.e)
LOG2E = math.log2(math.e)
PROF = int(os.environ.get("PROF", "0"))
WS_PROF = 0x2000000
if PROF:
    WS_SIZE = 0x2400000
SPIN_MAX = 1 << 15
MFMA = "v_mfma_f32_32x32x16_bf16"

STG = 28672
L_FLAGS = 143360
L_F7 = 147456
LDS_BYTES = 163840
def g_stage(j):
    return (131072, 131072 + 6144, 147456, 147456 + 6144)[j]


def f32(x):
    return "0x%08x" % struct.unpack("<I", struct.pack("<f", x))[0]


class Asm:
    def __init__(self):
        self.lines = []

    def __call__(self, s):
        for l in s.strip("\n").split("\n"):
            self.lines.append("    " + l.strip())

    def label(self, l):
        self.lines.append(l + ":")

    def raw(self, s):
        self.lines.append(s)

    def text(self):
        return "\n".join(self.lines) + "\n"


class VM:
    def __init__(self, cnt="vmcnt", mx=63):
        self.q = []
        self.cnt, self.mx = cnt, mx

    def op(self, tag, n=1):
        self.q += [tag] * n

    def wait(self, a, *tags):
        idx = [i for i, t in enumerate(self.q) if t in tags]
        if not idx:
            return
        n = len(self.q) - 1 - max(idx)
        a(f"s_waitcnt {self.cnt}({min(n, self.mx)})")
        self.q = self.q[max(idx) + 1:]

    def clear(self):
        self.q = []


L_BIAS = L_FLAGS + 256
W1_PAGES = {8: (21, 22, 23, 24), 9: (25, 26, 27, 28), 10: (29, 30, 31, 32), 11: (36, 37, 38, 39),
            12: (0, 1, 2, 3), 13: (33, 34, 4, 21), 14: (22, 23, 24, 25), 15: (26, 27, 28, 29)}
PLANS = {
    "a": {-1: [0, 1], 0: [2], 1: [3], 2: [4], 3: [5], 4: [6], 5: [7], 6: [8], 7: ["b", "c", 9, 10]},
    "b": {-1: [0, 1], 0: [2], 1: [3], 2: [4], 3: [5], 4: [6], 5: [7], 6: [8, "b", "c"], 7: [9, 10]},
    "c": {-1: [0, 1], 0: [2], 1: [3], 2: [4], 3: [5], 4: [6], 5: [7, 8], 6: ["b", "c", 9], 7: [10]},
}
PLAN = PLANS[os.environ.get("PLAN", "a")]
NEED = {8: (8, 9, 10, "b", "c")}
KV_PAGE = (5, 9, 13, 17, 0, 21, 25, 29)
KV_TBL_LO = sum(KV_PAGE[i] << (8 * i) for i in range(4))
KV_TBL_HI = sum(KV_PAGE[4 + i] << (8 * i) for i in range(4))
F_KVL, F_F7, F_C10, F_KVS, F_FULL, F_ACK, F_AD, F_W1, F_ST, F_HS, F_W1B, F_W1C = 0, 4, 8, 12, 16, 32, 48, 52, 56, 60, 64, 68
PSLEEP = int(os.environ.get("PSLEEP", "6"))
HSLEEP = int(os.environ.get("HSLEEP", "24"))
WARM2 = int(os.environ.get("WARM2", "1"))
ADN = int(os.environ.get("ADN", "4"))
GP0, GP1, GP2, GP3 = [int(x) for x in os.environ.get("GP", "0,2,0,2").split(",")]
PDELAY = int(os.environ.get("PDELAY", "0"))
HDELAY = int(os.environ.get("HDELAY", "1"))


PK = os.environ.get("PK", "abcd")
def vadd16(a, dst, src, tag):
    if tag in PK:
        for i in range(0, 16, 2):
            a(f"v_pk_add_f32 {vr(dst+i, 2)}, {vr(dst+i, 2)}, {vr(src+i, 2)}")
    else:
        for i in range(16):
            a(f"v_add_f32 v{dst+i}, v{dst+i}, v{src+i}")


def vscale16(a, dst, sreg, tag):
    if tag in PK:
        a(f"v_mov_b32 v{sreg+1}, v{sreg}")
        for i in range(0, 16, 2):
            a(f"v_pk_mul_f32 {vr(dst+i, 2)}, {vr(dst+i, 2)}, {vr(sreg, 2)}")
    else:
        for i in range(16):
            a(f"v_mul_f32 v{dst+i}, v{dst+i}, v{sreg}")


def vr(b, n):
    return f"v[{b}:{b+n-1}]" if n > 1 else f"v{b}"


def srd(a, d, base, size):
    a(f"s_mov_b32 s{d}, s{base}")
    a(f"s_and_b32 s{d+1}, s{base+1}, 0xffff")
    a(f"s_mov_b32 s{d+2}, {size}")
    a(f"s_mov_b32 s{d+3}, 0x00020000")


TIMER = "s_memtime" if os.environ.get("CYC") else "s_memrealtime"
NSTAMP = 14
def stamp(a, slot, mode=1):
    if not PROF or (mode != PROF and slot not in (1, NSTAMP - 1)):
        return
    a(f"{TIMER} s[92:93]")
    a("s_waitcnt lgkmcnt(0)")
    a(f"s_mov_b32 s{64+slot}, s92")


DBG_A = [True]
def init_stamps(a):
    if not PROF:
        return
    a("s_memtime s[94:95]")
    a(f"{TIMER} s[92:93]")
    a("s_waitcnt lgkmcnt(0)")
    a("s_mov_b32 s78, s94")
    for i in range(NSTAMP):
        a(f"s_mov_b32 s{64+i}, s92")


def dump_stamps(a):
    if not PROF:
        return
    if os.environ.get("DBGT"):
        stamp(a, NSTAMP - 1)
        srd(a, 24, P_DBG, 256)
        a("s_getreg_b32 s20, hwreg(HW_REG_XCC_ID, 0, 4)")
        a("s_sub_u32 s20, s20, s2")
        a("s_and_b32 s20, s20, 7")
        a("s_lshl_b32 s20, 1, s20")
        a("s_mov_b64 exec, 1")
        a("v_mov_b32 v2, 0")
        a("v_mov_b32 v4, s20")
        a("buffer_atomic_or v4, v2, s[24:27], 0 offen offset:4 sc1")
        a("s_not_b32 s20, s64")
        a("v_mov_b32 v5, s20")
        a("buffer_atomic_umax v5, v2, s[24:27], 0 offen offset:8 sc1")
        for i, sl in enumerate((0, 3, 4, 5, 8, 9, 10, 11, 13) if DBG_A[0] else (3, 5, 8, 13)):
            a(f"v_mov_b32 v{6+i}, s{64+sl}")
            a(f"buffer_atomic_umax v{6+i}, v2, s[24:27], 0 offen offset:{(12 if DBG_A[0] else 48) + 4*i} sc1")
        DBG_A[0] = False
        a("s_mov_b64 exec, -1")
        return
    a("s_memtime s[94:95]")
    stamp(a, NSTAMP - 1)
    a("s_mov_b32 s79, s94")
    a("v_lshrrev_b32 v2, 6, v0")
    a("v_lshlrev_b32 v2, 6, v2")
    a("s_lshl_b32 s20, s2, 10")
    a(f"s_add_u32 s20, s20, {WS_PROF}")
    a("s_mov_b64 exec, 1")
    for i in range(0, 16, 2):
        a(f"v_mov_b32 v4, s{64+i}")
        a(f"v_mov_b32 v5, s{65+i}")
        a(f"buffer_store_dwordx2 v[4:5], v2, s[12:15], s20 offen offset:{4*i}")
        a("s_nop 1")
    a("s_mov_b64 exec, -1")


P_X, P_WQKV, P_WO, P_BX, P_W1, P_B1, P_W2, P_B2, P_GATE, P_OUT, P_DBG, P_WS = [40 + 2 * i for i in range(12)]


def half_max(a, v, t):
    for sh in (8, 4, 2, 1):
        a("s_nop 1")
        a(f"v_max_f32_dpp v{v}, v{v}, v{v} row_ror:{sh} row_mask:0xf bank_mask:0xf")
    a("s_nop 0")
    a(f"v_mov_b32 v{t}, v{v}")
    a("s_nop 1")
    a(f"v_permlane16_swap_b32 v{v}, v{t}")
    a("s_nop 1")
    a(f"v_max_f32 v{v}, v{v}, v{t}")


def wave_max(a, v, t):
    half_max(a, v, t)
    a(f"v_mov_b32 v{t}, v{v}")
    a("s_nop 1")
    a(f"v_permlane32_swap_b32 v{v}, v{t}")
    a("s_nop 1")
    a(f"v_max_f32 v{v}, v{v}, v{t}")


def poll_global(a, name, voff, srdn, soff, want, vtmp, sleep, first_loaded=False, two=False):
    a("s_mov_b32 s96, 0")
    if first_loaded:
        a(f"s_branch {name}_chk")
    a.label(f"{name}_ld")
    if two:
        a(f"buffer_load_dwordx2 v[{vtmp}:{vtmp+1}], v{voff}, s[{srdn}:{srdn+3}], {soff} offen sc1")
        a("s_waitcnt vmcnt(0)")
        a(f"v_and_b32 v{vtmp}, v{vtmp}, v{vtmp+1}")
    else:
        a(f"buffer_load_dword v{vtmp}, v{voff}, s[{srdn}:{srdn+3}], {soff} offen sc1")
        a("s_waitcnt vmcnt(0)")
    a.label(f"{name}_chk")
    a(f"v_cmp_ne_u32 vcc, {want}, v{vtmp}")
    a("s_nop 4")
    a(f"s_cbranch_vccz {name}_ok")
    a("s_add_u32 s96, s96, 1")
    a(f"s_cmp_gt_u32 s96, {SPIN_MAX}")
    a(f"s_cbranch_scc1 {name}_ok")
    a(f"s_sleep {sleep}")
    a(f"s_branch {name}_ld")
    a.label(f"{name}_ok")


def poll_lds(a, name, vaddr, vtmp, cmp_instr, sleep=1):
    a("s_mov_b32 s97, 0")
    a.label(f"{name}_ld")
    a(f"ds_read_b32 v{vtmp}, v{vaddr}")
    a("s_waitcnt lgkmcnt(0)")
    a(f"v_readfirstlane_b32 s20, v{vtmp}")
    a("s_nop 3")
    a(cmp_instr)
    a(f"s_cbranch_scc1 {name}_ok")
    a("s_add_u32 s97, s97, 1")
    a(f"s_cmp_gt_u32 s97, {SPIN_MAX * 8}")
    a(f"s_cbranch_scc1 {name}_ok")
    a(f"s_sleep {sleep}")
    a(f"s_branch {name}_ld")
    a.label(f"{name}_ok")


def gen(a):
    a.raw(".p2align 8")
    a.label(f"{NAME}_kernel")
    a("s_cmp_ge_u32 s2, 256")
    a("s_cbranch_scc1 k_exit")
    init_stamps(a)
    if os.environ.get("SCR"):
        a("s_and_b32 s20, s2, 7")
        a("s_lshl_b32 s20, s20, 5")
        a("s_lshr_b32 s2, s2, 3")
        a("s_or_b32 s2, s2, s20")
    a("s_load_dwordx16 s[40:55], s[0:1], 0")
    a("s_load_dwordx8 s[56:63], s[0:1], 64")
    a("v_and_b32 v1, 63, v0                    ; lane")
    a("v_lshrrev_b32 v2, 6, v0                 ; wave")
    a("s_and_b32 s28, s2, 7")
    a("v_readfirstlane_b32 s30, v2")
    a("s_lshr_b32 s29, s2, 3                   ; idx")
    a("v_lshlrev_b32 v3, 4, v1                 ; lane*16")
    a("s_and_b32 s20, s28, 1")
    a("s_lshl_b32 s20, s20, 3")
    a("s_and_b32 s21, s29, 7")
    a("s_add_u32 s31, s20, s21                 ; rg")
    a("s_lshr_b32 s20, s28, 1")
    a("s_lshl_b32 s20, s20, 2")
    a("s_lshr_b32 s22, s29, 3")
    a("s_add_u32 s32, s20, s22")
    a("s_lshl_b32 s22, s22, 1")
    a("s_add_u32 s33, s21, s22")
    a("s_and_b32 s33, s33, 7                   ; rot")
    a("s_waitcnt lgkmcnt(0)")
    stamp(a, 1)
    srd(a, 12, P_WS, WS_SIZE)
    srd(a, 24, P_DBG, 256)
    a("s_cmp_ge_u32 s30, 4")
    a("s_cbranch_scc1 k_g")
    gen_a(a)
    a.label("k_g")
    gen_g(a)
    a.label("k_exit")
    a("s_endpgm")


def gen_a(a):
    srd(a, 4, P_X, 2097152)
    srd(a, 8, P_WQKV, 1572864)
    srd(a, 16, P_W1, 1835008)
    a("v_lshrrev_b32 v8, 3, v1")
    a("v_lshrrev_b32 v5, 1, v8")
    a("s_and_b32 s20, s30, 1")
    a("s_lshl_b32 s20, s20, 2")
    a("v_add_u32 v5, s20, v5")
    a("v_and_b32 v6, 7, v1")
    a("v_xor_b32 v5, v5, v6")
    a("v_lshlrev_b32 v5, 4, v5")
    a("v_lshl_add_u32 v4, v8, 10, v5")
    a("v_lshrrev_b32 v8, 2, v1")
    a("v_and_b32 v9, 3, v1")
    a("v_lshlrev_b32 v9, 4, v9")
    a("v_mul_u32_u24 v5, 3072, v8")
    a("v_add_u32 v5, v5, v9")
    a("v_mul_u32_u24 v6, 3584, v8")
    a("v_add_u32 v6, v6, v9")
    a("s_lshl_b32 s34, s31, 17")
    a("s_lshl_b32 s20, s30, 13")
    a("s_add_u32 s34, s34, s20")
    a(f"s_mul_i32 s35, s30, {16*3072}")
    a("s_lshl_b32 s20, s32, 6")
    a("s_add_u32 s37, s35, s20                  ; q pair j")
    a("s_lshr_b32 s20, s32, 1")
    a("s_lshl_b32 s20, s20, 7")
    a("s_add_u32 s35, s35, s20")
    a("s_and_b32 s20, s32, 1")
    a("s_add_u32 s20, s20, 1")
    a("s_lshl_b32 s20, s20, 10")
    a("s_add_u32 s35, s35, s20")
    a(f"s_mul_i32 s36, s30, {16*3584}")
    a("s_lshl_b32 s20, s32, 8")
    a("s_add_u32 s36, s36, s20")
    a("s_lshl_b32 s38, s30, 10")

    srd(a, 80, P_B1, 3584)
    a("v_lshlrev_b32 v10, 2, v1                 ; lane*4")
    a("s_lshl_b32 s39, s32, 8")
    vm = VM()

    def issue(m):
        if m == "b":
            a(f"s_mov_b32 m0, {L_BIAS}")
            a("s_nop 0")
            a("buffer_load_dword v10, s[80:83], s39 offen lds")
            vm.op("b")
            return
        if m == "c":
            a("buffer_load_dword v7, v9, s[24:27], 0 offen sc1")
            vm.op("c")
            return
        a(f"s_add_u32 s21, s33, {m & 7}")
        a("s_and_b32 s21, s21, 7                    ; kc")
        if m < 8:
            st = (m % 5) * STG
            a("s_lshl_b32 s22, s21, 7")
            a("s_add_u32 s22, s22, s34")
            a(f"s_mul_i32 s23, s21, {64*3072}")
            for kind, i in (("x", 0), ("w", 0), ("w", 1), ("x", 1), ("x", 2), ("w", 2), ("x", 3)):
                if kind == "x":
                    a(f"s_add_u32 m0, s38, {st + i*4096}")
                    a(f"s_add_u32 s20, s22, {i*32768}")
                    a("buffer_load_dwordx4 v4, s[4:7], s20 offen lds")
                else:
                    a(f"s_add_u32 m0, s38, {st + 16384 + i*4096 - (64 if i == 1 else 0)}")
                    a(f"s_add_u32 s20, s23, s{37 if i == 2 else 35}")
                    a(f"buffer_load_dwordx4 v5, s[8:11], s20 offen{' offset:64' if i == 1 else ''} lds")
            vm.op(m, 7)
        else:
            a(f"s_mul_i32 s23, s21, {64*3584}")
            a("s_add_u32 s23, s23, s36")
            for i in range(4):
                a(f"s_add_u32 m0, s38, {W1_PAGES[m][i]*4096}")
                a(f"s_add_u32 s20, s23, {i*64}")
                a("buffer_load_dwordx4 v6, s[16:19], s20 offen lds")
            vm.op(m, 4)

    def sched(last, tag):
        short = tag == "s"
        ok = lambda m: not (short and (m == "b" or (m != "c" and m >= 8)))
        for n in range(last + 1):
            vm.wait(a, *NEED.get(n, (n,)))
            if n == 8:
                poll_global(a, f"a_ctr{tag}", 9, 24, "0", NRESET, 7, 8, first_loaded=True)
            if n < 11: stamp(a, 2 + n, 2)
            a("s_barrier")
            if n == 0: stamp(a, 3)
            if n == 8: stamp(a, 4)
            for m in PLAN.get(n, []):
                if ok(m):
                    issue(m)
            if n == WARM2:
                for i in range(3):
                    a(f"s_add_u32 s87, s86, {i*16384}")
                    a("s_min_u32 s87, s87, k_exit - k_pc")
                    a(f"s_load_dword s{88+i}, s[84:85], s87")

    a("s_getpc_b64 s[84:85]")
    a.label("k_pc")
    a("s_lshl_b32 s86, s29, 2")
    a("s_add_u32 s86, s86, s30")
    a("s_lshl_b32 s86, s86, 7")
    a("v_mov_b32 v9, 0")
    for m in PLAN[-1]:
        issue(m)
    stamp(a, 2)
    q0 = list(vm.q)
    a("s_cmp_ge_u32 s32, 14")
    a("s_cbranch_scc1 a_short")
    sched(8, "l")
    a("s_branch a_p1done")
    a.label("a_short")
    vm.q = list(q0)
    sched(8, "s")
    a.label("a_p1done")
    stamp(a, 5)
    a("s_lshl_b32 s31, s28, 2")
    a("s_lshr_b32 s20, s29, 3")
    a("s_add_u32 s31, s31, s20                  ; h")
    a("s_and_b32 s32, s29, 7                    ; q chunk")
    a("s_lshl_b32 s33, s32, 2")
    a("s_add_u32 s33, s33, s30                  ; rb = 4c + w")
    a("s_add_u32 s21, s30, s32")
    a("s_and_b32 s21, s21, 7")
    a("s_lshl_b32 s24, s21, 8")
    a("s_lshl_b32 s21, s21, 13")
    a("s_lshl_b32 s22, s31, 17")
    a(f"s_add_u32 s22, s22, {WS_KV}")
    a("s_add_u32 s22, s21, s22")
    QA, QB, NMA, NMB, SA, SB, P, OA, OB = 8, 12, 16, 32, 48, 64, 80, 88, 104
    K0, K1, V0, V1 = 120, 124, 128, 136
    KA, KAN, VA, VAN, VL = 144, 145, 146, 147, 148
    a("s_lshl_b32 s20, s30, 3")
    a(f"s_mov_b32 s4, {KV_TBL_HI}")
    a(f"s_mov_b32 s5, {KV_TBL_HI}")
    a("s_lshr_b64 s[4:5], s[4:5], s20")
    a(f"s_mov_b32 s26, {KV_TBL_LO}")
    a(f"s_mov_b32 s27, {KV_TBL_LO}")
    a("s_lshr_b64 s[26:27], s[26:27], s20")
    a("s_mov_b32 s27, s4")
    def slot_base(dst):
        a("s_lshl_b32 s20, s25, 3")
        a(f"s_lshr_b64 s[{dst}:{dst+1}], s[26:27], s20")
        a(f"s_and_b32 s{dst}, s{dst}, 0xff")
        a(f"s_lshl_b32 s{dst}, s{dst}, 12")
        a("s_add_u32 s25, s25, 1")
        a("s_and_b32 s25, s25, 7")
    a("s_mov_b32 s25, 0")
    slot_base(4)
    a("v_and_b32 v6, 31, v1                     ; m")
    a("v_and_b32 v7, 27, v1                     ; m & ~4")
    a("v_cmp_eq_u32 vcc, 16, v7")
    a("v_mov_b32 v4, 0x3f803f80")
    a("s_nop 0")
    a("v_cndmask_b32 v4, 0, v4, vcc")
    for r in range(V0, V0 + 16):
        a(f"v_mov_b32 v{r}, v4")
    a("v_lshrrev_b32 v7, 5, v1")
    a("v_lshlrev_b32 v7, 8, v7")
    a("v_lshl_add_u32 v7, v6, 4, v7")
    a(f"v_add_u32 v{VL}, 0x2000, v7")
    a("s_mov_b32 s34, 0xffff")
    a("s_mov_b32 s35, 0xffff")
    a("s_mov_b32 s36, 0")
    a("v_lshlrev_b32 v4, 6, v1")
    a("v_add_u32 v4, s24, v4")
    a("v_and_b32 v5, 1, v1")
    a("v_lshlrev_b32 v5, 6, v5")
    a("s_lshr_b32 s20, s33, 1")
    a("s_lshl_b32 s20, s20, 7")
    a("v_add_u32 v5, s20, v5")
    a("v_cmp_gt_u32 vcc, 4, v1")
    a("s_lshr_b32 s38, s31, 2")
    a("v_cndmask_b32 v4, v5, v4, vcc")
    a("s_lshl_b32 s38, s38, 11")
    a(f"s_add_u32 s38, s38, {WS_FKV}")
    a(f"v_mov_b32 v7, {L_FLAGS + F_ST}")
    poll_lds(a, "a_st", 7, 5, "s_cmp_ge_u32 s20, 4", sleep=2)
    stamp(a, 12)
    if PDELAY:
        a(f"s_sleep {PDELAY}")
    poll_global(a, "a_kv", 4, 12, "s38", 1, 6, PSLEEP)
    stamp(a, 6)
    a("s_lshl_b32 s20, s31, 5")
    a("s_add_u32 s20, s20, s33")
    a("s_lshl_b32 s20, s20, 11")
    a(f"s_add_u32 s20, s20, {WS_QF}")
    a(f"buffer_load_dwordx4 {vr(QA, 4)}, v3, s[12:15], s20 offen sc1")
    a(f"buffer_load_dwordx4 {vr(QB, 4)}, v3, s[12:15], s20 offen offset:1024 sc1")
    a(f"buffer_load_dwordx4 {vr(K0, 4)}, v3, s[12:15], s22 offen sc1")
    stamp(a, 7)
    for part in range(4):
        a(f"s_add_u32 m0, s4, {(part >> 1) * 4096 + (part & 1) * 8192}")
        a(f"s_add_u32 s20, s22, {(part >> 1) * 4096 + (part & 1) * 65536}")
        for i in range(4):
            a(f"buffer_load_dwordx4 v3, s[12:15], s20 offen offset:{i*1024} sc1 lds")
    a("s_waitcnt vmcnt(16)")
    a(f"{MFMA} {vr(SA, 16)}, {vr(K0, 4)}, {vr(QA, 4)}, 0")
    a(f"{MFMA} {vr(SB, 16)}, {vr(K0, 4)}, {vr(QB, 4)}, 0")
    a(f"v_mov_b32 v5, {f32(-3.0e38)}")
    a(f"v_mov_b32 v6, {f32(-3.0e38)}")
    a("s_nop 15")
    def rowmax_step():
        for r in range(0, 16, 2):
            a(f"v_max3_f32 v5, v5, v{SA+r}, v{SA+r+1}")
        for r in range(0, 16, 2):
            a(f"v_max3_f32 v6, v6, v{SB+r}, v{SB+r+1}")
    def rowmax_fin():
        for v, NM in ((5, NMA), (6, NMB)):
            a(f"v_mov_b32 v7, v{v}")
            a("s_nop 1")
            a(f"v_permlane32_swap_b32 v{v}, v7")
            a("s_nop 1")
            a(f"v_max_f32 v{v}, v{v}, v7")
            a(f"v_sub_f32 v{v}, 0, v{v}")
            for r in range(16):
                a(f"v_mov_b32 v{NM+r}, v{v}")
    rowmax_step()
    rowmax_fin()
    a("s_mov_b32 s38, 9")
    a("s_waitcnt vmcnt(8)")

    if os.environ.get("APRIO"): a(f"s_setprio {os.environ['APRIO']}")
    a.label("a_start")
    stamp(a, 8)
    for r in range(32):
        a(f"v_mov_b32 v{OA+r}, 0")
    for r in range(4, 8):
        a(f"v_mov_b32 v{P+r}, 0")
    a("s_mov_b32 s37, 0")

    def next_addrs():
        slot_base(8)
        a(f"v_add_u32 v{KAN}, s8, v3")
        a(f"v_add_u32 v{VAN}, s8, v{VL}")
    a(f"v_add_u32 v{KA}, s4, v3")
    a(f"v_add_u32 v{VA}, s4, v{VL}")
    a("s_mov_b32 s25, 1")
    next_addrs()
    Kb = [K0, K1]
    Vb = [V0, V1]
    a(f"ds_read_b128 {vr(K0, 4)}, v{KA}")
    a(f"ds_read_b128 {vr(K1, 4)}, v{KA} offset:1024")
    a("s_mov_b64 exec, s[34:35]")
    a(f"ds_read_b128 {vr(V0, 4)}, v{VA}")
    a(f"ds_read_b128 {vr(V0+4, 4)}, v{VA} offset:512")
    a(f"ds_read_b128 {vr(V1+4, 4)}, v{VA} offset:512")
    a("s_mov_b64 exec, -1")
    a("s_waitcnt lgkmcnt(0)")
    a(f"{MFMA} {vr(SA, 16)}, {vr(K0, 4)}, {vr(QA, 4)}, {vr(NMA, 16)}")
    a("s_nop 7")
    a("s_nop 3")
    SPECIAL = (2, 6)
    a("s_bitcmp1_b32 s38, s37")
    a.raw(".p2align 6")
    a.label("a_loop")
    for u in range(8):
        cur, nxt = u & 1, (u + 1) & 1
        if u in SPECIAL:
            a(f"s_cbranch_scc1 a_sp{u}")
            a.label(f"a_back{u}")
        kread = (f"ds_read_b128 {vr(Kb[cur], 4)}, v{KA} offset:{(u+2)*1024}" if u + 2 < 8
                 else f"ds_read_b128 {vr(Kb[cur], 4)}, v{KAN} offset:{(u+2-8)*1024}")
        va, vo = (VA, (u + 1) * 1024) if u + 1 < 8 else (VAN, 0)
        for ph in range(2):
            S = (SA, SB)[ph]
            e = lambda r: a(f"v_exp_f32 v{S+r}, v{S+r}")
            c = lambda j: a(f"v_cvt_pk_bf16_f32 v{P+j}, v{S+2*j}, v{S+2*j+1}")
            if ph == 0:
                a(f"{MFMA} {vr(SB, 16)}, {vr(Kb[cur], 4)}, {vr(QB, 4)}, {vr(NMB, 16)}")
                a(kread)
                for r in range(5): e(r)
                a(f"{MFMA} {vr(OB, 16)}, {vr(Vb[nxt]+4, 4)}, {vr(P+4, 4)}, {vr(OB, 16)}")
                a("s_mov_b64 exec, s[34:35]")
                a(f"ds_read_b128 {vr(Vb[nxt], 4)}, v{va} offset:{vo}")
                a(f"ds_read_b128 {vr(Vb[nxt]+4, 4)}, v{va} offset:{vo+512}")
                a("s_mov_b64 exec, -1")
                for r in range(5, 8): e(r)
                for j in range(4): c(j)
                e(8); e(9)
                a("s_waitcnt lgkmcnt(3)")
                a(f"{MFMA} {vr(OA, 16)}, {vr(Vb[cur], 4)}, {vr(P, 4)}, {vr(OA, 16)}")
                for r in range(10, 16): e(r)
                for j in range(4, 8): c(j)
            else:
                a(f"{MFMA} {vr(SA, 16)}, {vr(Kb[nxt], 4)}, {vr(QA, 4)}, {vr(NMA, 16)}")
                for r in range(5): e(r)
                a(f"{MFMA} {vr(OA, 16)}, {vr(Vb[cur]+4, 4)}, {vr(P+4, 4)}, {vr(OA, 16)}")
                for r in range(5, 8): e(r)
                for j in range(4): c(j)
                e(8); e(9)
                a(f"{MFMA} {vr(OB, 16)}, {vr(Vb[cur], 4)}, {vr(P, 4)}, {vr(OB, 16)}")
                for r in range(10, 16): e(r)
                for j in range(4, 8): c(j)
                if u == 7:
                    a(f"v_mov_b32 v{KA}, v{KAN}")
                    a(f"v_mov_b32 v{VA}, v{VAN}")
    next_addrs()
    a("s_add_u32 s37, s37, 1")
    a("s_cmp_ge_u32 s37, 8")
    a("s_cbranch_scc1 a_loopend")
    a("s_bitcmp1_b32 s38, s37")
    a("s_branch a_loop")
    a.label("a_sp2")
    a("s_cmp_lg_u32 s37, 0")
    a("s_cbranch_scc1 a_back2")
    a("s_waitcnt vmcnt(0)")
    a(f"v_mov_b32 v4, {L_FLAGS + F_KVL}")
    a("v_mov_b32 v6, 1")
    a("s_mov_b64 exec, 1")
    a("ds_add_u32 v4, v6")
    a("s_mov_b64 exec, -1")
    a("s_cmp_eq_u32 s37, s37                    ; scc = 1")
    a("s_branch a_back2")
    a.label("a_sp6")
    a("s_cmp_eq_u32 s37, 0")
    a(f"s_cselect_b32 s20, {F_KVL}, {F_KVS}")
    a(f"s_add_u32 s20, s20, {L_FLAGS}")
    a("v_mov_b32 v4, s20")
    poll_lds(a, "a_all", 4, 5, "s_cmp_ge_u32 s20, 4")
    if PROF == 1:
        a("s_mov_b32 s73, s74")
        stamp(a, 10)
    a("s_branch a_back6")
    a.label("a_loopend")
    a(f"{MFMA} {vr(OB, 16)}, {vr(Vb[1]+4, 4)}, {vr(P+4, 4)}, {vr(OB, 16)}")
    stamp(a, 11)
    stamp(a, 2, 3)
    a("s_waitcnt lgkmcnt(0)")
    a("s_lshl_b32 s20, s33, 6")
    a("s_add_u32 s20, s20, s31")
    a("s_lshl_b32 s20, s20, 10")
    a(f"s_add_u32 s20, s20, {WS_OF}")
    a(f"s_add_u32 s21, s20, {32*1024}")
    a("s_nop 8")
    a("s_cmp_lg_u32 s36, 0")
    a("s_cbranch_scc1 a_fin")
    a(f"v_add_f32 v7, v{OA+8}, v{OB+8}")
    a(f"v_cmp_nge_f32 vcc, {f32(2.0**60)}, v7")
    a("s_nop 4")
    a("s_cbranch_vccz a_fin")
    a("s_mov_b32 s36, 1")
    a("s_mov_b32 s38, 0")
    a(f"v_mov_b32 v5, {f32(-3.0e38)}")
    a(f"v_mov_b32 v6, {f32(-3.0e38)}")
    a("s_mov_b32 s37, 0")
    a.label("a_mx")
    a("s_and_b32 s20, s37, 7")
    a("s_cmp_lg_u32 s20, 0")
    a("s_cbranch_scc1 a_mx1")
    slot_base(8)
    a("v_add_u32 v4, s8, v3")
    a.label("a_mx1")
    a(f"ds_read_b128 {vr(K0, 4)}, v4")
    a("s_waitcnt lgkmcnt(0)")
    a(f"{MFMA} {vr(SA, 16)}, {vr(K0, 4)}, {vr(QA, 4)}, 0")
    a(f"{MFMA} {vr(SB, 16)}, {vr(K0, 4)}, {vr(QB, 4)}, 0")
    a("s_nop 15")
    rowmax_step()
    a("v_add_u32 v4, 1024, v4")
    a("s_add_u32 s37, s37, 1")
    a("s_cmp_lt_u32 s37, 64")
    a("s_cbranch_scc1 a_mx")
    rowmax_fin()
    a("s_branch a_start")
    a.label("a_fin")
    for i, O in enumerate((OA, OB)):
        a(f"v_rcp_f32 v6, v{O+8}")
        a("s_nop 0")
        for r in range(8):
            a(f"v_mul_f32 v{O+r}, v{O+r}, v6")
        for j in range(4):
            a(f"v_cvt_pk_bf16_f32 v{P+4*i+j}, v{O+2*j}, v{O+2*j+1}")
        for j in range(4):
            a(f"v_min_u32 v{P+4*i+j}, 0xfffeffff, v{P+4*i+j}")
        a(f"buffer_store_dwordx4 {vr(P+4*i, 4)}, v3, s[12:15], s{20+i} offen sc1")
    a(f"v_mov_b32 v4, {L_FLAGS + 48}")
    a("v_mov_b32 v6, 1")
    a("s_mov_b64 exec, 1")
    a("ds_add_u32 v4, v6")
    a("s_mov_b64 exec, -1")
    a("s_waitcnt lgkmcnt(0)")
    if PROF == 3:
        stamp(a, 3, 3)
        a("s_waitcnt vmcnt(0)")
    dump_stamps(a)
    a("s_endpgm")


def gen_g(a):
    a("s_sub_u32 s30, s30, 4                    ; g")
    a("s_lshl_b32 s34, s31, 2")
    a("s_add_u32 s34, s34, s30")
    a("v_lshlrev_b32 v4, 2, v1")
    a(f"v_add_u32 v4, {L_FLAGS}, v4")
    a("v_mov_b32 v5, 0")
    a("ds_write_b32 v4, v5")
    X = 128
    ACC = 64
    WA, WB = 32, 48
    for r in range(4):
        a(f"v_mov_b32 v{WA+r}, -1")
    a("s_lshl_b32 s20, s34, 5")
    a("s_lshl_b32 s21, s32, 1")
    a("s_add_u32 s20, s20, s21")
    a("s_lshl_b32 s20, s20, 10")
    a(f"s_add_u32 s20, s20, {WS_OF}")
    if not os.environ.get("NOSENT"):
        a(f"buffer_store_dwordx4 {vr(WA, 4)}, v3, s[12:15], s20 offen sc1")
        a(f"buffer_store_dwordx4 {vr(WA, 4)}, v3, s[12:15], s20 offen offset:1024 sc1")
    a("s_cmp_ge_u32 s2, 8")
    a("s_cbranch_scc1 g_noreset")
    for r in range(4):
        a(f"v_mov_b32 v{WB+r}, 0")
    a("s_lshl_b32 s20, s2, 2")
    a("s_add_u32 s20, s20, s30")
    a("s_lshl_b32 s20, s20, 10")
    a(f"s_add_u32 s20, s20, {WS_FL}")
    a(f"buffer_store_dwordx4 {vr(WB, 4)}, v3, s[12:15], s20 offen sc1")
    a.label("g_noreset")
    a("v_and_b32 v5, 31, v1                     ; t")
    a("v_lshrrev_b32 v6, 5, v1                  ; hh")
    a("v_bfe_u32 v7, v1, 1, 3")
    a("s_lshl_b32 s20, s30, 12")
    a("v_lshl_add_u32 v12, v5, 7, s20")
    for s in range(4):
        a(f"v_add_u32 v13, {2*s}, v6")
        a("v_xor_b32 v13, v13, v7")
        a(f"v_lshl_add_u32 v{8+s}, v13, 4, v12")
    a("v_bfe_u32 v13, v1, 4, 1")
    a("v_lshlrev_b32 v13, 5, v13")
    a("v_and_b32 v14, 3, v1")
    a("v_lshl_add_u32 v13, v14, 3, v13          ; colhalf*32 + c4*8")
    a("v_bfe_u32 v14, v1, 2, 2                  ; r")
    a("v_lshl_add_u32 v13, v14, 6, v13          ; + r*64")
    a("v_lshl_add_u32 v12, v6, 9, v13")
    a("v_lshl_add_u32 v14, v6, 8, v13")
    for r in range(ACC, ACC + 48):
        a(f"v_mov_b32 v{r}, 0")

    for s_ in range(4):
        a(f"v_add_u32 v{24+s_}, {3*STG}, v{8+s_}")
    a("v_add_u32 v28, 0x10000, v12")
    a("v_add_u32 v29, 0x20000, v12")

    lk = VM("lgkmcnt", 15)

    def stream(first, last, ncb, D, xfirst, bars, hook=None):
        items = [(n, s, c) for n in range(first, last + 1) for s in range(4) for c in range(ncb)]
        def R(k):
            n, s, c = items[k]
            if s == 0 and c == 0 and n in bars:
                a("s_barrier")
                if PROF == 2 and bars[n] is not None:
                    stamp(a, bars[n], 2)
                    lk.clear()
            if n < 8:
                st = n % 5
                page = 7 * st + 4 + c
                if c == 0:
                    xb, xo = (8 + s, st * STG) if st < 3 else (24 + s, (st - 3) * STG)
                    a(f"ds_read_b128 {vr(X + 16*n + 4*s, 4)}, v{xb} offset:{xo}")
                    lk.op(k)
            else:
                page = W1_PAGES[n][c]
            b = (12, 28, 29)[page >> 4]
            o = (page & 15) * 4096 + s * 1024
            w = WA + 4 * (k % 8)
            a(f"ds_read_b64_tr_b16 {vr(w, 2)}, v{b} offset:{o}")
            a(f"ds_read_b64_tr_b16 {vr(w+2, 2)}, v{b} offset:{o + 256}")
            lk.op(k, 2)
            assert len(lk.q) <= 15
        for k in range(D):
            R(k)
        for k, (n, s, c) in enumerate(items):
            lk.wait(a, k)
            xf = vr(X + 16 * (n & 7) + 4 * s, 4)
            w = vr(WA + 4 * (k % 8), 4)
            d = vr(ACC + 16 * c, 16)
            if xfirst(c):
                a(f"{MFMA} {d}, {xf}, {w}, {d}")
            else:
                a(f"{MFMA} {d}, {w}, {xf}, {d}")
            if k + D < len(items):
                R(k + D)
            if hook:
                hook(n, s, c)

    def pack(b):
        for j in range(8):
            a(f"v_cvt_pk_bf16_f32 v{b+j}, v{b+2*j}, v{b+2*j+1}")

    BI = 32
    def bias_reads():
        for c in range(4):
            for q in range(0, 4, 2):
                d = BI + 2 * (c * 4 + q)
                a(f"ds_read2_b64 {vr(d, 4)}, v15 offset0:{(c*64 + q*16)//8} offset1:{(c*64 + q*16 + 16)//8}")

    a(f"v_lshlrev_b32 v15, 3, v6")
    a(f"v_add_u32 v15, {L_BIAS}, v15")
    a("v_mov_b32 v16, 0")
    a("v_mov_b32 v22, 1")
    a("s_lshr_b32 s35, s32, 1")
    a("s_lshl_b32 s35, s35, 2")
    a("s_lshl_b32 s38, s35, 7")
    a("s_add_u32 s38, s38, s34")
    a("s_lshl_b32 s38, s38, 10")
    a(f"s_add_u32 s38, s38, {WS_KV}")
    TOUCH = os.environ.get("TOUCH", "0")
    def touch(tag):
        a("v_lshlrev_b32 v30, 20, v1")
        a("s_cmp_eq_u32 s30, 0")
        a(f"s_cbranch_scc0 g_t1{tag}")
        a("s_mov_b64 exec, 0xffff")
        a("buffer_load_dword v23, v30, s[12:15], 0 offen")
        a("s_mov_b64 exec, -1")
        a.label(f"g_t1{tag}")
        a("s_cmp_eq_u32 s30, 1")
        a(f"s_cbranch_scc0 g_t2{tag}")
        a("s_mov_b64 exec, 3")
        a("buffer_load_dword v23, v30, s[4:7], 0 offen")
        a("buffer_load_dword v23, v30, s[8:11], 0 offen")
        a("s_mov_b64 exec, -1")
        a.label(f"g_t2{tag}")
        a("s_cmp_eq_u32 s30, 2")
        a(f"s_cbranch_scc0 g_t3{tag}")
        a("s_mov_b64 exec, 3")
        a("buffer_load_dword v23, v30, s[16:19], 0 offen")
        a("buffer_load_dword v23, v30, s[80:83], 0 offen")
        a("s_mov_b64 exec, -1")
        a.label(f"g_t3{tag}")
    srd(a, 4, P_W2, 1835008)
    srd(a, 8, P_WO, 524288)
    srd(a, 16, P_B2, 1024)
    srd(a, 80, P_OUT, 2097152)
    if TOUCH == "1":
        touch("a")
    if TOUCH == "3":
        srd(a, 84, P_B1, 3584)
        a("s_cmp_eq_u32 s30, 3")
        a("s_cbranch_scc0 g_t4")
        a("s_mov_b64 exec, 1")
        a("buffer_load_dword v23, v16, s[84:87], 0 offen")
        a("buffer_load_dword v23, v16, s[24:27], 0 offen offset:128")
        a("s_mov_b64 exec, -1")
        a.label("g_t4")
    a(f"v_mov_b32 v17, {L_FLAGS}")
    a("s_waitcnt lgkmcnt(0)")
    bars = {n: 2 + n for n in range(8)}
    def thook(tag):
        def h(n, s, c):
            if TOUCH == "2" and (n, s, c) == (1, 0, 0):
                touch(tag)
            if (n, s, c) == (0, 1, 0):
                a("s_cmp_ge_u32 s2, 8")
                a(f"s_cbranch_scc1 g_nocnt{tag}")
                a("s_waitcnt vmcnt(0)")
                a("s_mov_b64 exec, 1")
                a("buffer_atomic_add v22, v16, s[24:27], 0 offen sc1")
                a("s_mov_b64 exec, -1")
                a.label(f"g_nocnt{tag}")
        return h
    a("s_bitcmp1_b32 s32, 0")
    a("s_cbranch_scc1 g_vpath")
    stream(0, 7, 3, 6, lambda c: False, bars, thook("k"))
    stamp(a, 3)
    a("s_nop 7")
    for c in range(2):
        bk = ACC + 16 * c
        pack(bk)
        for u in range(2):
            a(f"s_add_u32 s20, s38, {(2*c + u) * 131072}")
            a(f"buffer_store_dwordx4 {vr(bk+4*u, 4)}, v3, s[12:15], s20 offen sc1")
    a("s_branch g_qpath")
    a.label("g_vpath")
    lk.clear()
    stream(0, 7, 3, 6, lambda c: c < 2, bars, thook("v"))
    stamp(a, 3)
    a("s_nop 7")
    a("v_bfe_u32 v20, v1, 4, 1")
    a("v_lshlrev_b32 v20, 17, v20")
    a("v_lshl_add_u32 v20, v6, 8, v20")
    a("v_and_b32 v21, 15, v1")
    a("v_lshl_add_u32 v20, v21, 4, v20")
    for c in range(2):
        bv = ACC + 16 * c
        pack(bv)
        a(f"s_add_u32 s20, s38, {65536 + 2*c*131072}")
        a(f"buffer_store_dwordx4 {vr(bv, 4)}, v20, s[12:15], s20 offen sc1")
        a(f"buffer_store_dwordx4 {vr(bv+4, 4)}, v20, s[12:15], s20 offen offset:512 sc1")
    a.label("g_qpath")
    bq = ACC + 32
    a(f"s_mov_b32 s36, {f32(QSCALE)}")
    for r in range(16):
        a(f"v_mul_f32 v{bq+r}, s36, v{bq+r}")
    pack(bq)
    a("s_lshl_b32 s20, s32, 7")
    a("s_add_u32 s20, s20, s34")
    a("s_lshl_b32 s20, s20, 10")
    a(f"s_add_u32 s20, s20, {WS_QF}")
    a(f"s_add_u32 s21, s20, 65536")
    a(f"buffer_store_dwordx4 {vr(bq, 4)}, v3, s[12:15], s20 offen sc1")
    a(f"buffer_store_dwordx4 {vr(bq+4, 4)}, v3, s[12:15], s21 offen sc1")
    a("s_lshl_b32 s36, s31, 4")
    a("s_add_u32 s36, s36, s32")
    a("s_lshl_b32 s36, s36, 6")
    a(f"s_add_u32 s36, s36, {WS_FH}               ; FH[rg][j]")
    a("s_lshl_b32 s35, s35, 2                   ; quad*16")
    a("s_add_u32 s35, s35, s31")
    a("s_lshl_b32 s35, s35, 1")
    a("s_and_b32 s20, s32, 1")
    a("s_add_u32 s35, s35, s20")
    a("s_lshl_b32 s35, s35, 6")
    a(f"s_add_u32 s35, s35, {WS_FKV}              ; FKV[quad][rg][par]")
    stamp(a, 4)

    def send_flag(sreg, younger=0):
        a(f"s_waitcnt vmcnt({younger})")
        a("s_mov_b64 exec, 1")
        a(f"ds_add_rtn_u32 v18, v17, v22 offset:{F_ST}")
        a("s_waitcnt lgkmcnt(0)")
        a("v_cmp_eq_u32 vcc, 3, v18")
        a("s_nop 4")
        a("s_and_b64 exec, exec, vcc")
        lab = f"g_pub{len(a.lines)}"
        a(f"s_cbranch_execz {lab}")
        a(f"buffer_store_dword v22, v16, s[12:15], {sreg} offen sc1")
        a.label(lab)
        a("s_mov_b64 exec, -1")

    a("s_cmp_ge_u32 s32, 14")
    a("s_cbranch_scc1 g_noffn1")
    a("s_barrier                                ; B8")
    stamp(a, 10, 2)
    bias_reads()
    a("s_waitcnt lgkmcnt(0)                     ; bias")
    for c in range(4):
        for q in range(4):
            d = BI + 2 * (c * 4 + q)
            r = ACC + 16 * c + 4 * q
            a(f"v_lshlrev_b32 v{r}, 16, v{d}")
            a(f"v_and_b32 v{r+1}, 0xffff0000, v{d}")
            a(f"v_lshlrev_b32 v{r+2}, 16, v{d+1}")
            a(f"v_and_b32 v{r+3}, 0xffff0000, v{d+1}")
    a("s_mov_b32 s37, 0")
    a(f"s_setprio {GP0}")
    srd(a, 84, P_W1, 1835008)
    a("v_lshrrev_b32 v19, 2, v1")
    a("v_and_b32 v20, 3, v1")
    a("v_mul_u32_u24 v30, 3584, v19")
    a("v_lshl_add_u32 v30, v20, 4, v30")
    a(f"s_mul_i32 s39, s30, {16*3584}")
    a("s_lshl_b32 s20, s32, 8")
    a("s_add_u32 s39, s39, s20")
    a("s_lshl_b32 s88, s30, 10")
    lk.clear()
    def lds_signal(off):
        a("s_mov_b64 exec, 1")
        a(f"ds_add_u32 v17, v22 offset:{off}")
        a("s_mov_b64 exec, -1")
        lk.op("sig")
    dma = {2 * x: (11 + x // 4, x % 4) for x in range(8)}
    dma.update({53 + x: (13 + x // 4, x % 4) for x in range(12)})
    nl = [0]
    def hook(n, s, c):
        k = (n - 8) * 16 + s * 4 + c
        if k in dma:
            m, i = dma[k]
            if i == 0:
                a(f"s_add_u32 s21, s33, {m & 7}")
                a("s_and_b32 s21, s21, 7")
                a(f"s_mul_i32 s89, s21, {64*3584}")
                a("s_add_u32 s89, s89, s39")
            a(f"s_add_u32 m0, s88, {W1_PAGES[m][i]*4096}")
            a(f"s_add_u32 s20, s89, {i*64}")
            a("buffer_load_dwordx4 v30, s[84:87], s20 offen lds")
            nl[0] += 1
        if k <= PUBK and k % 4 == 3:
            lab = f"g_fl{k}"
            a("s_cmp_eq_u32 s37, 0")
            a(f"s_cbranch_scc0 {lab}")
            if k < PUBK:
                a("s_getreg_b32 s20, hwreg(HW_REG_IB_STS)")
                a("s_lshr_b32 s21, s20, 18")
                a("s_and_b32 s21, s21, 0x30")
                a("s_and_b32 s20, s20, 15")
                a("s_or_b32 s20, s20, s21")
                a(f"s_cmp_le_u32 s20, {nl[0]}")
                a(f"s_cbranch_scc0 {lab}")
            send_flag("s35", nl[0])
            a("s_mov_b32 s37, 1")
            stamp(a, 5)
            a.label(lab)
        for ks, kc, off, cnt in ((PUBK, 40, F_W1, 8), (47, 52, F_C10, 0), (68, 73, F_W1B, 12), (84, 89, F_W1C, 20)):
            if k == ks:
                if cnt:
                    a(f"s_waitcnt vmcnt({nl[0] - cnt})")
                lds_signal(off)
            if k == kc - 3:
                a(f"ds_read_b32 v20, v17 offset:{off}")
                lk.op("w1")
            if k == kc:
                lk.wait(a, "w1")
                a("v_readfirstlane_b32 s20, v20")
                a("s_nop 3")
                a("s_cmp_ge_u32 s20, 4")
                a(f"s_cbranch_scc1 g_w1ok{kc}")
                a(f"v_mov_b32 v19, {L_FLAGS + off}")
                poll_lds(a, f"g_w1{kc}", 19, 20, "s_cmp_ge_u32 s20, 4", sleep=1)
                a.label(f"g_w1ok{kc}")
    PUBK = 31
    FD = 6
    assert 48 - FD > 40 and 80 - FD > 73 and 96 - FD > 89
    stream(8, 15, 4, FD, lambda c: False, {}, hook)
    stamp(a, 6)
    a(f"s_setprio {GP1}")
    a("s_nop 15")
    a("s_mul_i32 s20, s34, 112")
    a("s_lshl_b32 s21, s32, 3")
    a("s_add_u32 s20, s20, s21")
    a("s_lshl_b32 s20, s20, 10")
    a(f"s_add_u32 s20, s20, {WS_HF}")
    a("s_add_u32 s21, s20, 4096")
    for c in range(4):
        b = ACC + 16 * c
        for r in range(16):
            a(f"v_max_f32 v{b+r}, 0, v{b+r}")
        for r in range(0, 16, 2):
            a(f"v_pk_mul_f32 {vr(b+r, 2)}, {vr(b+r, 2)}, {vr(b+r, 2)}")
        pack(b)
        for u in range(2):
            a(f"buffer_store_dwordx4 {vr(b+4*u, 4)}, v3, s[12:15], s{20 + (c >> 1)} offen offset:{((c & 1)*2 + u)*1024} sc1")
    a("s_branch g_p1done")
    a.label("g_noffn1")
    a("s_waitcnt lgkmcnt(0)")
    a("s_barrier                                ; B8")
    send_flag("s35")
    a("s_cmp_eq_u32 s32, 15")
    a("s_cbranch_scc1 g_p1done")
    srd(a, 16, P_GATE, 1024)
    for r in range(16):
        a(f"v_mov_b32 v{ACC+r}, 0")
    a("v_lshlrev_b32 v15, 4, v6                 ; hh*16")
    for n in range(8):
        a(f"s_add_u32 s21, s33, {n}")
        a("s_and_b32 s21, s21, 7")
        a("s_lshl_b32 s21, s21, 7")
        for s in range(4):
            a(f"buffer_load_dwordx4 {vr(WA + 4*s, 4)}, v15, s[16:19], s21 offen offset:{s*32}")
        a("s_waitcnt vmcnt(0)")
        for s in range(4):
            a(f"{MFMA} {vr(ACC, 16)}, {vr(WA + 4*s, 4)}, {vr(X + 16*n + 4*s, 4)}, {vr(ACC, 16)}")
    a("s_nop 15")
    a("v_lshlrev_b32 v15, 2, v1")
    a("s_lshl_b32 s20, s34, 7")
    a(f"s_add_u32 s20, s20, {WS_G}")
    a("s_mov_b32 exec_hi, 0")
    a(f"buffer_store_dword v{ACC}, v15, s[12:15], s20 offen sc1")
    a("s_mov_b64 exec, -1")
    a.label("g_p1done")
    lds_signal(F_F7)
    a("s_lshl_b32 s22, s28, 2")
    a("s_lshr_b32 s20, s29, 3")
    a("s_add_u32 s22, s22, s20                  ; h")
    a("s_add_u32 s21, s30, s29")
    a("s_add_u32 s21, s21, 4")
    a("s_and_b32 s21, s21, 7")
    a("s_lshr_b32 s23, s22, 2")
    a("s_lshl_b32 s23, s23, 3")
    a("s_add_u32 s23, s23, s21")
    a("s_lshl_b32 s23, s23, 8")
    a(f"s_add_u32 s23, s23, {WS_FKV}")
    a("s_lshl_b32 s22, s22, 17")
    a("s_lshl_b32 s21, s21, 13")
    a("s_add_u32 s22, s22, s21")
    a(f"s_add_u32 s22, s22, {WS_KV}")
    a("s_lshl_b32 s20, s30, 3")
    a(f"s_lshr_b32 s21, {KV_TBL_HI}, s20")
    a("s_and_b32 s21, s21, 0xff")
    a("s_lshl_b32 s21, s21, 12")
    a("v_and_b32 v8, 3, v1")
    a("v_lshlrev_b32 v8, 6, v8")
    a(f"s_setprio {GP2}")
    poll_global(a, "g_kv", 8, 12, "s23", 1, 9, HSLEEP)
    a("s_mov_b64 exec, 1")
    a(f"ds_add_rtn_u32 v10, v17, v22 offset:{F_HS}")
    a("s_waitcnt lgkmcnt(0)")
    a("v_readfirstlane_b32 s20, v10")
    a("s_nop 3")
    a("s_cmp_lg_u32 s20, 3")
    a("s_cbranch_scc1 g_nohpub")
    a("buffer_store_dword v22, v16, s[12:15], s36 offen sc1")
    a.label("g_nohpub")
    a("s_mov_b64 exec, -1")
    stamp(a, 7)
    a(f"v_mov_b32 v8, {L_FLAGS + F_F7}")
    poll_lds(a, "g_f7", 8, 9, "s_cmp_ge_u32 s20, 4", sleep=4)
    for part in range(4):
        a(f"s_add_u32 m0, s21, {(part >> 1) * 4096 + (part & 1) * 8192}")
        a(f"s_add_u32 s20, s22, {(part >> 1) * 4096 + (part & 1) * 65536}")
        for i in range(4):
            a(f"buffer_load_dwordx4 v3, s[12:15], s20 offen offset:{i*1024} sc1 lds")
    if os.environ.get("GEXIT"):
        a("s_waitcnt vmcnt(0)")
        lds_signal(F_KVS)
        dump_stamps(a)
        a("s_endpgm")
    srd(a, 4, P_W2, 1835008)
    srd(a, 8, P_WO, 524288)
    srd(a, 16, P_B2, 1024)
    srd(a, 24, P_OUT, 2097152)
    a("s_lshl_b32 s31, s28, 2")
    a("s_lshr_b32 s20, s29, 3")
    a("s_add_u32 s31, s31, s20                  ; rb")
    a("s_and_b32 s32, s29, 7                    ; cp")
    a("s_and_b32 s38, s30, 1")
    a("s_lshr_b32 s39, s30, 1")
    a("s_lshl_b32 s41, s31, 1")
    a("s_add_u32 s41, s41, s38")
    a("s_xor_b32 s42, s41, 1")
    a("s_lshl_b32 s40, s32, 1")
    a("s_add_u32 s40, s40, s39")
    a("s_xor_b32 s43, s40, 1")
    a("s_mul_i32 s21, s30, 28")
    a("s_lshl_b32 s20, s21, 14")
    a("s_lshl_b32 s33, s40, 6")
    a("s_add_u32 s33, s33, s20")
    a("s_lshl_b32 s35, s43, 6")
    a("s_add_u32 s35, s35, s20")
    a("v_lshrrev_b32 v8, 2, v1")
    a("v_and_b32 v9, 3, v1")
    a("v_lshlrev_b32 v8, 10, v8")
    a("v_lshl_add_u32 v4, v9, 4, v8")
    AF = 16
    HB = 80
    WF = 112
    WO = 128
    ND = 7
    ST = lambda i: 128 + 16 * i
    vm = VM()
    vm.op("hst")
    def ldW(k):
        i = k % ND
        a(f"buffer_load_dwordx4 {vr(ST(i), 4)}, v4, s[4:7], s33 offen")
        a(f"buffer_load_dwordx4 {vr(ST(i)+4, 4)}, v4, s[4:7], s35 offen")
        a("s_add_u32 s33, s33, 16384")
        a("s_add_u32 s35, s35, 16384")
        vm.op(("w", k), 2)
    def ldH(k):
        i = k % ND
        a(f"buffer_load_dwordx4 {vr(ST(i)+8, 4)}, v3, s[12:15], s22 offen sc1")
        a(f"buffer_load_dwordx4 {vr(ST(i)+12, 4)}, v3, s[12:15], s23 offen sc1")
        a("s_add_u32 s22, s22, 1024")
        a("s_add_u32 s23, s23, 1024")
        vm.op(("h", k), 2)
    def ldWo(k):
        a(f"s_add_u32 s20, s98, {k*16384}")
        a(f"buffer_load_dwordx4 {vr(WO+8*k, 4)}, v4, s[8:11], s20 offen")
        a(f"s_add_u32 s20, s99, {k*16384}")
        a(f"buffer_load_dwordx4 {vr(WO+8*k+4, 4)}, v4, s[8:11], s20 offen")
        vm.op(("o", k), 2)
    for k in range(ND):
        ldW(k)
    a("s_lshl_b32 s20, s39, 18")
    a("s_lshl_b32 s98, s40, 6")
    a("s_add_u32 s98, s98, s20")
    a("s_lshl_b32 s99, s43, 6")
    a("s_add_u32 s99, s99, s20")
    ldWo(14)
    ldWo(15)
    for sd, st in ((22, 41), (23, 42)):
        a(f"s_mul_i32 s{sd}, s{st}, 112")
        a(f"s_add_u32 s{sd}, s{sd}, s21")
        a(f"s_lshl_b32 s{sd}, s{sd}, 10")
        a(f"s_add_u32 s{sd}, s{sd}, {WS_HF}")
    a("s_lshl_b32 s34, s30, 12")
    a(f"s_add_u32 s34, s34, {36*4096}")
    a("v_add_u32 v7, s34, v14")
    a("v_add_u32 v12, s34, v3")
    vm.wait(a, "hst")
    lds_signal(F_KVS)
    a("v_and_b32 v8, 15, v1")
    a("v_lshlrev_b32 v8, 6, v8")
    a("s_lshr_b32 s36, s31, 1")
    a("s_lshl_b32 s36, s36, 10")
    a(f"s_add_u32 s36, s36, {WS_FH}")
    poll_global(a, "g_hw", 8, 12, "s36", 1, 9, HSLEEP)
    vm.clear()
    stamp(a, 8)
    for k in range(ND):
        ldH(k)
    def prep(k):
        i = k % ND
        w = WF + 8 * (k & 1)
        vm.wait(a, ("w", k))
        a(f"ds_write_b128 v12, {vr(ST(i), 4)}")
        a(f"ds_write_b128 v12, {vr(ST(i)+4, 4)} offset:1024")
        for cl in range(2):
            a(f"ds_read_b64_tr_b16 {vr(w+4*cl, 2)}, v7 offset:{cl*1024}")
            a(f"ds_read_b64_tr_b16 {vr(w+4*cl+2, 2)}, v7 offset:{cl*1024+512}")
    prep(0)
    for k in range(28):
        i = k % ND
        w = WF + 8 * (k & 1)
        if k + 1 < 28:
            prep(k + 1)
            a("s_waitcnt lgkmcnt(6)")
        else:
            a("s_waitcnt lgkmcnt(0)")
        if k + ND < 28:
            ldW(k + ND)
        else:
            ldWo(2 * i)
        vm.wait(a, ("h", k))
        for cl in range(2):
            for tl in range(2):
                d = vr(AF + 16 * (tl + 2 * cl), 16)
                if not os.environ.get("NOF2"):
                    a(f"{MFMA} {d}, {vr(w + 4*cl, 4)}, {vr(ST(i) + 8 + 4*tl, 4)}, {d if k else 0}")
        if k + ND < 28:
            ldH(k + ND)
        else:
            ldWo(2 * i + 1)
    stamp(a, 9)
    for k in list(range(14, 16)) + list(range(14)):
        vm.wait(a, ("o", k))
        a(f"ds_write_b128 v12, {vr(WO+8*k, 4)}")
        a(f"ds_write_b128 v12, {vr(WO+8*k+4, 4)} offset:1024")
        for cl in range(2):
            a(f"ds_read_b64_tr_b16 {vr(WO+8*k+4*cl, 2)}, v7 offset:{cl*1024}")
            a(f"ds_read_b64_tr_b16 {vr(WO+8*k+4*cl+2, 2)}, v7 offset:{cl*1024+512}")
        if k & 1:
            a("s_waitcnt lgkmcnt(0)")
    stamp(a, 10)
    a("v_lshlrev_b32 v8, 2, v5")
    a("s_lshl_b32 s20, s41, 7")
    a(f"s_add_u32 s20, s20, {WS_G}")
    a("buffer_load_dword v10, v8, s[12:15], s20 offen sc1")
    a("v_lshlrev_b32 v8, 3, v6")
    a("s_lshl_b32 s20, s40, 6")
    for q in range(4):
        a(f"buffer_load_dwordx2 {vr(WF+2*q, 2)}, v8, s[16:19], s20 offen offset:{q*16}")
    a("s_lshl_b32 s20, s30, 2")
    a(f"s_add_u32 s20, s20, {L_FLAGS + 16}")
    a("v_mov_b32 v13, s20")
    def partner(r):
        a(f"s_xor_b32 s36, s30, {r}")
        a("s_lshl_b32 s21, s36, 12")
        a(f"s_add_u32 s21, s21, {36*4096}")
        a("s_lshl_b32 s36, s36, 2")
        a(f"s_add_u32 s36, s36, {L_FLAGS + 16}")
    def xchg(r, seq, src, dst_tmp, tag, need_ack):
        if need_ack:
            a("v_add_u32 v8, 16, v13")
            poll_lds(a, f"{tag}a", 8, 9, f"s_cmp_ge_u32 s20, {seq-1}")
        for q in range(4):
            a(f"ds_write_b128 v12, {vr(src+4*q, 4)} offset:{q*1024}")
        partner(r)
        a(f"v_mov_b32 v9, {seq}")
        a("s_waitcnt lgkmcnt(0)")
        a("ds_write_b32 v13, v9")
        a("v_mov_b32 v8, s36")
        poll_lds(a, f"{tag}f", 8, 11, f"s_cmp_ge_u32 s20, {seq}")
        a("v_add_u32 v11, s21, v3")
        for q in range(4):
            a(f"ds_read_b128 {vr(dst_tmp+4*q, 4)}, v11 offset:{q*1024}")
        a("s_waitcnt lgkmcnt(0)")
        a("ds_write_b32 v8, v9 offset:16")
    a(f"s_setprio {GP3}")
    T0, T1 = AF, AF + 32
    for seq, (src, dst) in enumerate(((AF + 16, T0), (AF + 48, T1)), 1):
        xchg(1, seq, src, HB, f"g_r{seq}", seq > 1)
        vadd16(a, dst, HB, "a")
    a("s_waitcnt vmcnt(0)")
    a(f"v_max_f32 v10, {f32(-60.0)}, v10")
    a(f"v_mul_f32 v10, {f32(-LOG2E)}, v10")
    a("v_exp_f32 v14, v10                       ; e^-z")
    a("s_nop 0")
    a("v_add_f32 v10, 1.0, v14")
    a("v_rcp_f32 v10, v10                       ; g")
    for q in range(4):
        d = WF + 2 * q
        a(f"v_lshlrev_b32 v8, 16, v{d}")
        a(f"v_add_f32 v{AF+4*q}, v{AF+4*q}, v8")
        a(f"v_and_b32 v8, 0xffff0000, v{d}")
        a(f"v_add_f32 v{AF+4*q+1}, v{AF+4*q+1}, v8")
        a(f"v_lshlrev_b32 v8, 16, v{d+1}")
        a(f"v_add_f32 v{AF+4*q+2}, v{AF+4*q+2}, v8")
        a(f"v_and_b32 v8, 0xffff0000, v{d+1}")
        a(f"v_add_f32 v{AF+4*q+3}, v{AF+4*q+3}, v8")
    for T in (T0, T1):
        vscale16(a, T, 14, "b")
    OBF = AF + 48
    a("s_lshl_b32 s22, s41, 5")
    a("s_lshl_b32 s20, s39, 4")
    a("s_add_u32 s22, s22, s20")
    a("s_lshl_b32 s22, s22, 10")
    a(f"s_add_u32 s22, s22, {WS_OF}")
    for i in range(1, 4):
        a(f"s_add_u32 s{44+i}, s22, {i*4096}")
    a("s_mov_b32 s44, s22")
    a("v_add_u32 v8, 16, v13")
    poll_lds(a, "g_ak", 8, 9, "s_cmp_ge_u32 s20, 2", sleep=2)
    stamp(a, 11)
    a(f"v_mov_b32 v8, {L_FLAGS + F_AD}")
    poll_lds(a, "g_ad", 8, 9, f"s_cmp_ge_u32 s20, {ADN}", sleep=4)
    stamp(a, 12)
    stamp(a, 2, 3)
    ldO = lambda k: a(f"buffer_load_dwordx4 {vr(OBF+4*k, 4)}, v3, s[12:15], s{44 + k//4} offen offset:{(k%4)*1024} sc1")
    for k in range(16):
        ldO(k)
    a("s_mov_b32 s37, 0xffff")
    a("s_mov_b32 s96, 0")
    a.label("g_oround")
    if os.environ.get("OWAIT"): a("s_waitcnt vmcnt(0)")
    for k in range(16):
        b = OBF + 4 * k
        a(f"s_bitcmp1_b32 s37, {k}")
        a(f"s_cbranch_scc0 g_onext{k}")
        a(f"s_waitcnt vmcnt({15-k})")
        a(f"v_max3_u32 v8, v{b}, v{b+1}, v{b+2}")
        a(f"v_max_u32 v8, v8, v{b+3}")
        a("v_cmp_eq_u32 vcc, -1, v8")
        a("s_nop 4")
        a(f"s_cbranch_vccnz g_oretry{k}")
        for cl, T in enumerate((T0, T1)):
            d = vr(T, 16)
            a(f"{MFMA} {d}, {vr(WO + 8*k + 4*cl, 4)}, {vr(b, 4)}, {d}")
        a(f"s_bitset0_b32 s37, {k}")
        a.label(f"g_onext{k}")
    a("s_cmp_eq_u32 s37, 0")
    a("s_cbranch_scc1 g_odone")
    a("s_add_u32 s96, s96, 1")
    a(f"s_cmp_lt_u32 s96, {SPIN_MAX}")
    a("s_waitcnt vmcnt(0)")
    a("s_cbranch_scc1 g_oround")
    a("s_branch g_odone")
    for k in range(16):
        a.label(f"g_oretry{k}")
        ldO(k)
        a(f"s_branch g_onext{k}")
    a.label("g_odone")
    a("s_nop 15")
    stamp(a, 6, 3)
    xchg(2, 3, T1, AF + 16, "g_r4", False)
    stamp(a, 7, 3)
    vadd16(a, AF, AF + 16, "c")
    vscale16(a, AF, 10, "d")
    P = OBF
    for j in range(8):
        a(f"v_cvt_pk_bf16_f32 v{P+j}, v{AF+2*j}, v{AF+2*j+1}")
    a("v_lshlrev_b32 v8, 10, v5")
    a("v_lshl_add_u32 v8, v6, 4, v8")
    for pa in (0, 2):
        a(f"v_permlane32_swap_b32 v{P+2*pa}, v{P+2*pa+2}")
        a(f"v_permlane32_swap_b32 v{P+2*pa+1}, v{P+2*pa+3}")
    a("s_lshl_b32 s20, s41, 15")
    a("s_lshl_b32 s21, s40, 6")
    a("s_add_u32 s20, s20, s21")
    a(f"buffer_store_dwordx4 {vr(P, 4)}, v8, s[24:27], s20 offen")
    a(f"buffer_store_dwordx4 {vr(P+4, 4)}, v8, s[24:27], s20 offen offset:32")
    a("s_waitcnt lgkmcnt(0)")
    if PROF == 3:
        a("s_mul_i32 s73, s96, 100")
        a("s_add_u32 s73, s73, s64")
        stamp(a, 8, 3)
        a("s_waitcnt vmcnt(0)")
    dump_stamps(a)
    a("s_endpgm")


def main(path):
    a = Asm()
    hdr = f"""; gated_mix: MHA block + squared-relu FFN, gated mix.  Generated by gen/gen7.py
; @launch grid=(256,1,1) block=(512,1,1) lds={LDS_BYTES}
.amdgcn_target "amdgcn-amd-amdhsa--gfx950"
.text
.globl {NAME}_kernel
.type {NAME}_kernel,@function
"""
    gen(a)
    tail = f""".section .rodata,"a"
.p2align 6
.amdhsa_kernel {NAME}_kernel
  .amdhsa_next_free_vgpr 256
  .amdhsa_next_free_sgpr 102
  .amdhsa_accum_offset 256
  .amdhsa_group_segment_fixed_size 0
  .amdhsa_kernarg_size 96
  .amdhsa_user_sgpr_count 2
  .amdhsa_user_sgpr_kernarg_segment_ptr 1
  .amdhsa_system_sgpr_workgroup_id_x 1
.end_amdhsa_kernel
"""
    open(path, "w").write(hdr + a.text() + tail)


if __name__ == "__main__":
    main(sys.argv[1] if len(sys.argv) > 1 else f"cdna_kernels/{NAME}.s")
```

```python
import struct, math, sys, os

NAME = "gated_mix__mha_block__dense_activation_squared_relu__prompt"

WS_QF = 0x000000
WS_KV = 0x200000
WS_OF = 0x600000
WS_HF = 0x800000
WS_G = 0xF02000
WS_FL = 0xF04000
WS_FKV = WS_FL
WS_FH = WS_FL + 16384
WS_SIZE = 0xF0C000
NRESET = 32

QSCALE = 0.25 * math.log2(math.e)
LOG2E = math.log2(math.e)
PROF = int(os.environ.get("PROF", "0"))
WS_PROF = 0x2000000
if PROF:
    WS_SIZE = 0x2400000
SPIN_MAX = 1 << 15
MFMA = "v_mfma_f32_32x32x16_bf16"

STG = 28672
L_FLAGS = 143360
L_F7 = 147456
LDS_BYTES = 163840
def g_stage(j):
    return (131072, 131072 + 6144, 147456, 147456 + 6144)[j]


def f32(x):
    return "0x%08x" % struct.unpack("<I", struct.pack("<f", x))[0]


class Asm:
    def __init__(self):
        self.lines = []

    def __call__(self, s):
        for l in s.strip("\n").split("\n"):
            self.lines.append("    " + l.strip())

    def label(self, l):
        self.lines.append(l + ":")

    def raw(self, s):
        self.lines.append(s)

    def text(self):
        return "\n".join(self.lines) + "\n"


class VM:
    def __init__(self, cnt="vmcnt", mx=63):
        self.q = []
        self.cnt, self.mx = cnt, mx

    def op(self, tag, n=1):
        self.q += [tag] * n

    def wait(self, a, *tags):
        idx = [i for i, t in enumerate(self.q) if t in tags]
        if not idx:
            return
        n = len(self.q) - 1 - max(idx)
        a(f"s_waitcnt {self.cnt}({min(n, self.mx)})")
        self.q = self.q[max(idx) + 1:]

    def clear(self):
        self.q = []


L_BIAS = L_FLAGS + 256
W1_PAGES = {8: (21, 22, 23, 24), 9: (25, 26, 27, 28), 10: (29, 30, 31, 32), 11: (36, 37, 38, 39),
            12: (0, 1, 2, 3), 13: (33, 34, 4, 21), 14: (22, 23, 24, 25), 15: (26, 27, 28, 29)}
PLANS = {
    "a": {-1: [0, 1], 0: [2], 1: [3], 2: [4], 3: [5], 4: [6], 5: [7], 6: [8], 7: ["b", "c", 9, 10]},
    "b": {-1: [0, 1], 0: [2], 1: [3], 2: [4], 3: [5], 4: [6], 5: [7], 6: [8, "b", "c"], 7: [9, 10]},
    "c": {-1: [0, 1], 0: [2], 1: [3], 2: [4], 3: [5], 4: [6], 5: [7, 8], 6: ["b", "c", 9], 7: [10]},
}
PLAN = PLANS[os.environ.get("PLAN", "a")]
NEED = {8: (8, 9, 10, "b", "c")}
KV_PAGE = (5, 9, 13, 17, 0, 21, 25, 29)
KV_TBL_LO = sum(KV_PAGE[i] << (8 * i) for i in range(4))
KV_TBL_HI = sum(KV_PAGE[4 + i] << (8 * i) for i in range(4))
F_KVL, F_F7, F_C10, F_KVS, F_FULL, F_ACK, F_AD, F_W1, F_ST, F_HS, F_W1B, F_W1C = 0, 4, 8, 12, 16, 32, 48, 52, 56, 60, 64, 68
PSLEEP = int(os.environ.get("PSLEEP", "6"))
HSLEEP = int(os.environ.get("HSLEEP", "24"))
WARM2 = int(os.environ.get("WARM2", "1"))
ADN = int(os.environ.get("ADN", "4"))
GP0, GP1, GP2, GP3 = [int(x) for x in os.environ.get("GP", "0,2,0,2").split(",")]
PDELAY = int(os.environ.get("PDELAY", "0"))
HDELAY = int(os.environ.get("HDELAY", "1"))


PK = os.environ.get("PK", "abcd")
def vadd16(a, dst, src, tag):
    if tag in PK:
        for i in range(0, 16, 2):
            a(f"v_pk_add_f32 {vr(dst+i, 2)}, {vr(dst+i, 2)}, {vr(src+i, 2)}")
    else:
        for i in range(16):
            a(f"v_add_f32 v{dst+i}, v{dst+i}, v{src+i}")


def vscale16(a, dst, sreg, tag):
    if tag in PK:
        a(f"v_mov_b32 v{sreg+1}, v{sreg}")
        for i in range(0, 16, 2):
            a(f"v_pk_mul_f32 {vr(dst+i, 2)}, {vr(dst+i, 2)}, {vr(sreg, 2)}")
    else:
        for i in range(16):
            a(f"v_mul_f32 v{dst+i}, v{dst+i}, v{sreg}")


def vr(b, n):
    return f"v[{b}:{b+n-1}]" if n > 1 else f"v{b}"


def srd(a, d, base, size):
    a(f"s_mov_b32 s{d}, s{base}")
    a(f"s_and_b32 s{d+1}, s{base+1}, 0xffff")
    a(f"s_mov_b32 s{d+2}, {size}")
    a(f"s_mov_b32 s{d+3}, 0x00020000")


TIMER = "s_memtime" if os.environ.get("CYC") else "s_memrealtime"
NSTAMP = 14
def stamp(a, slot, mode=1):
    if not PROF or (mode != PROF and slot not in (1, NSTAMP - 1)):
        return
    a(f"{TIMER} s[92:93]")
    a("s_waitcnt lgkmcnt(0)")
    a(f"s_mov_b32 s{64+slot}, s92")


DBG_A = [True]
def init_stamps(a):
    if not PROF:
        return
    a("s_memtime s[94:95]")
    a(f"{TIMER} s[92:93]")
    a("s_waitcnt lgkmcnt(0)")
    a("s_mov_b32 s78, s94")
    for i in range(NSTAMP):
        a(f"s_mov_b32 s{64+i}, s92")


def dump_stamps(a):
    if not PROF:
        return
    if os.environ.get("DBGT"):
        stamp(a, NSTAMP - 1)
        srd(a, 24, P_DBG, 256)
        a("s_getreg_b32 s20, hwreg(HW_REG_XCC_ID, 0, 4)")
        a("s_sub_u32 s20, s20, s2")
        a("s_and_b32 s20, s20, 7")
        a("s_lshl_b32 s20, 1, s20")
        a("s_mov_b64 exec, 1")
        a("v_mov_b32 v2, 0")
        a("v_mov_b32 v4, s20")
        a("buffer_atomic_or v4, v2, s[24:27], 0 offen offset:4 sc1")
        a("s_not_b32 s20, s64")
        a("v_mov_b32 v5, s20")
        a("buffer_atomic_umax v5, v2, s[24:27], 0 offen offset:8 sc1")
        for i, sl in enumerate((0, 3, 4, 5, 8, 9, 10, 11, 13) if DBG_A[0] else (3, 5, 8, 13)):
            a(f"v_mov_b32 v{6+i}, s{64+sl}")
            a(f"buffer_atomic_umax v{6+i}, v2, s[24:27], 0 offen offset:{(12 if DBG_A[0] else 48) + 4*i} sc1")
        DBG_A[0] = False
        a("s_mov_b64 exec, -1")
        return
    a("s_memtime s[94:95]")
    stamp(a, NSTAMP - 1)
    a("s_mov_b32 s79, s94")
    a("v_lshrrev_b32 v2, 6, v0")
    a("v_lshlrev_b32 v2, 6, v2")
    a("s_lshl_b32 s20, s2, 10")
    a(f"s_add_u32 s20, s20, {WS_PROF}")
    a("s_mov_b64 exec, 1")
    for i in range(0, 16, 2):
        a(f"v_mov_b32 v4, s{64+i}")
        a(f"v_mov_b32 v5, s{65+i}")
        a(f"buffer_store_dwordx2 v[4:5], v2, s[12:15], s20 offen offset:{4*i}")
        a("s_nop 1")
    a("s_mov_b64 exec, -1")


P_X, P_WQKV, P_WO, P_BX, P_W1, P_B1, P_W2, P_B2, P_GATE, P_OUT, P_DBG, P_WS = [40 + 2 * i for i in range(12)]


def half_max(a, v, t):
    for sh in (8, 4, 2, 1):
        a("s_nop 1")
        a(f"v_max_f32_dpp v{v}, v{v}, v{v} row_ror:{sh} row_mask:0xf bank_mask:0xf")
    a("s_nop 0")
    a(f"v_mov_b32 v{t}, v{v}")
    a("s_nop 1")
    a(f"v_permlane16_swap_b32 v{v}, v{t}")
    a("s_nop 1")
    a(f"v_max_f32 v{v}, v{v}, v{t}")


def wave_max(a, v, t):
    half_max(a, v, t)
    a(f"v_mov_b32 v{t}, v{v}")
    a("s_nop 1")
    a(f"v_permlane32_swap_b32 v{v}, v{t}")
    a("s_nop 1")
    a(f"v_max_f32 v{v}, v{v}, v{t}")


def poll_global(a, name, voff, srdn, soff, want, vtmp, sleep, first_loaded=False, two=False):
    a("s_mov_b32 s96, 0")
    if first_loaded:
        a(f"s_branch {name}_chk")
    a.label(f"{name}_ld")
    if two:
        a(f"buffer_load_dwordx2 v[{vtmp}:{vtmp+1}], v{voff}, s[{srdn}:{srdn+3}], {soff} offen sc1")
        a("s_waitcnt vmcnt(0)")
        a(f"v_and_b32 v{vtmp}, v{vtmp}, v{vtmp+1}")
    else:
        a(f"buffer_load_dword v{vtmp}, v{voff}, s[{srdn}:{srdn+3}], {soff} offen sc1")
        a("s_waitcnt vmcnt(0)")
    a.label(f"{name}_chk")
    a(f"v_cmp_ne_u32 vcc, {want}, v{vtmp}")
    a("s_nop 4")
    a(f"s_cbranch_vccz {name}_ok")
    a("s_add_u32 s96, s96, 1")
    a(f"s_cmp_gt_u32 s96, {SPIN_MAX}")
    a(f"s_cbranch_scc1 {name}_ok")
    a(f"s_sleep {sleep}")
    a(f"s_branch {name}_ld")
    a.label(f"{name}_ok")


def poll_lds(a, name, vaddr, vtmp, cmp_instr, sleep=1):
    a("s_mov_b32 s97, 0")
    a.label(f"{name}_ld")
    a(f"ds_read_b32 v{vtmp}, v{vaddr}")
    a("s_waitcnt lgkmcnt(0)")
    a(f"v_readfirstlane_b32 s20, v{vtmp}")
    a("s_nop 3")
    a(cmp_instr)
    a(f"s_cbranch_scc1 {name}_ok")
    a("s_add_u32 s97, s97, 1")
    a(f"s_cmp_gt_u32 s97, {SPIN_MAX * 8}")
    a(f"s_cbranch_scc1 {name}_ok")
    a(f"s_sleep {sleep}")
    a(f"s_branch {name}_ld")
    a.label(f"{name}_ok")


def gen(a):
    a.raw(".p2align 8")
    a.label(f"{NAME}_kernel")
    a("s_cmp_ge_u32 s2, 256")
    a("s_cbranch_scc1 k_exit")
    init_stamps(a)
    if os.environ.get("SCR"):
        if os.environ["SCR"] == "1":
            a("s_and_b32 s20, s2, 7")
            a("s_lshl_b32 s20, s20, 5")
            a("s_lshr_b32 s2, s2, 3")
            a("s_or_b32 s2, s2, s20")
        else:
            a("s_lshr_b32 s20, s2, 3")
            a("s_lshr_b32 s21, s2, 5")
            a("s_xor_b32 s20, s20, s21")
            a("s_and_b32 s20, s20, 7")
            a("s_xor_b32 s2, s2, s20")
    a("s_load_dwordx16 s[40:55], s[0:1], 0")
    a("s_load_dwordx8 s[56:63], s[0:1], 64")
    a("v_and_b32 v1, 63, v0                    ; lane")
    a("v_lshrrev_b32 v2, 6, v0                 ; wave")
    a("s_and_b32 s28, s2, 7")
    a("v_readfirstlane_b32 s30, v2")
    a("s_lshr_b32 s29, s2, 3                   ; idx")
    a("v_lshlrev_b32 v3, 4, v1                 ; lane*16")
    a("s_and_b32 s20, s28, 1")
    a("s_lshl_b32 s20, s20, 3")
    a("s_and_b32 s21, s29, 7")
    a("s_add_u32 s31, s20, s21                 ; rg")
    a("s_lshr_b32 s20, s28, 1")
    a("s_lshl_b32 s20, s20, 2")
    a("s_lshr_b32 s22, s29, 3")
    a("s_add_u32 s32, s20, s22")
    a("s_lshl_b32 s22, s22, 1")
    a("s_add_u32 s33, s21, s22")
    a("s_and_b32 s33, s33, 7                   ; rot")
    a("s_waitcnt lgkmcnt(0)")
    stamp(a, 1)
    srd(a, 12, P_WS, WS_SIZE)
    srd(a, 24, P_DBG, 256)
    a("s_cmp_ge_u32 s30, 4")
    a("s_cbranch_scc1 k_g")
    gen_a(a)
    a.label("k_g")
    gen_g(a)
    a.label("k_exit")
    a("s_endpgm")


def gen_a(a):
    srd(a, 4, P_X, 2097152)
    srd(a, 8, P_WQKV, 1572864)
    srd(a, 16, P_W1, 1835008)
    a("v_lshrrev_b32 v8, 3, v1")
    a("v_lshrrev_b32 v5, 1, v8")
    a("s_and_b32 s20, s30, 1")
    a("s_lshl_b32 s20, s20, 2")
    a("v_add_u32 v5, s20, v5")
    a("v_and_b32 v6, 7, v1")
    a("v_xor_b32 v5, v5, v6")
    a("v_lshlrev_b32 v5, 4, v5")
    a("v_lshl_add_u32 v4, v8, 10, v5")
    a("v_lshrrev_b32 v8, 2, v1")
    a("v_and_b32 v9, 3, v1")
    a("v_lshlrev_b32 v9, 4, v9")
    a("v_mul_u32_u24 v5, 3072, v8")
    a("v_add_u32 v5, v5, v9")
    a("v_mul_u32_u24 v6, 3584, v8")
    a("v_add_u32 v6, v6, v9")
    a("s_lshl_b32 s34, s31, 17")
    a("s_lshl_b32 s20, s30, 13")
    a("s_add_u32 s34, s34, s20")
    a(f"s_mul_i32 s35, s30, {16*3072}")
    a("s_lshl_b32 s20, s32, 6")
    a("s_add_u32 s37, s35, s20                  ; q pair j")
    a("s_lshr_b32 s20, s32, 1")
    a("s_lshl_b32 s20, s20, 7")
    a("s_add_u32 s35, s35, s20")
    a("s_and_b32 s20, s32, 1")
    a("s_add_u32 s20, s20, 1")
    a("s_lshl_b32 s20, s20, 10")
    a("s_add_u32 s35, s35, s20")
    a(f"s_mul_i32 s36, s30, {16*3584}")
    a("s_lshl_b32 s20, s32, 8")
    a("s_add_u32 s36, s36, s20")
    a("s_lshl_b32 s38, s30, 10")

    srd(a, 80, P_B1, 3584)
    a("v_lshlrev_b32 v10, 2, v1                 ; lane*4")
    a("s_lshl_b32 s39, s32, 8")
    vm = VM()

    def issue(m):
        if m == "b":
            a(f"s_mov_b32 m0, {L_BIAS}")
            a("s_nop 0")
            a("buffer_load_dword v10, s[80:83], s39 offen lds")
            vm.op("b")
            return
        if m == "c":
            a("buffer_load_dword v7, v9, s[24:27], 0 offen sc1")
            vm.op("c")
            return
        a(f"s_add_u32 s21, s33, {m & 7}")
        a("s_and_b32 s21, s21, 7                    ; kc")
        if m < 8:
            st = (m % 5) * STG
            a("s_lshl_b32 s22, s21, 7")
            a("s_add_u32 s22, s22, s34")
            a(f"s_mul_i32 s23, s21, {64*3072}")
            for kind, i in (("x", 0), ("w", 0), ("w", 1), ("x", 1), ("x", 2), ("w", 2), ("x", 3)):
                if kind == "x":
                    a(f"s_add_u32 m0, s38, {st + i*4096}")
                    a(f"s_add_u32 s20, s22, {i*32768}")
                    a("buffer_load_dwordx4 v4, s[4:7], s20 offen lds")
                else:
                    a(f"s_add_u32 m0, s38, {st + 16384 + i*4096 - (64 if i == 1 else 0)}")
                    a(f"s_add_u32 s20, s23, s{37 if i == 2 else 35}")
                    a(f"buffer_load_dwordx4 v5, s[8:11], s20 offen{' offset:64' if i == 1 else ''} lds")
            vm.op(m, 7)
        else:
            a(f"s_mul_i32 s23, s21, {64*3584}")
            a("s_add_u32 s23, s23, s36")
            for i in range(4):
                a(f"s_add_u32 m0, s38, {W1_PAGES[m][i]*4096}")
                a(f"s_add_u32 s20, s23, {i*64}")
                a("buffer_load_dwordx4 v6, s[16:19], s20 offen lds")
            vm.op(m, 4)

    def sched(last, tag):
        short = tag == "s"
        ok = lambda m: not (short and (m == "b" or (m != "c" and m >= 8)))
        for n in range(last + 1):
            vm.wait(a, *NEED.get(n, (n,)))
            if n == 8:
                poll_global(a, f"a_ctr{tag}", 9, 24, "0", NRESET, 7, 8, first_loaded=True)
            if n < 11: stamp(a, 2 + n, 2)
            a("s_barrier")
            if n == 0: stamp(a, 3)
            if n == 8: stamp(a, 4)
            for m in PLAN.get(n, []):
                if ok(m):
                    issue(m)
            if n == WARM2:
                for i in range(3):
                    a(f"s_add_u32 s87, s86, {i*16384}")
                    a("s_min_u32 s87, s87, k_exit - k_pc")
                    a(f"s_load_dword s{88+i}, s[84:85], s87")

    a("s_getpc_b64 s[84:85]")
    a.label("k_pc")
    a("s_lshl_b32 s86, s29, 2")
    a("s_add_u32 s86, s86, s30")
    a("s_lshl_b32 s86, s86, 7")
    a("v_mov_b32 v9, 0")
    for m in PLAN[-1]:
        issue(m)
    stamp(a, 2)
    q0 = list(vm.q)
    a("s_cmp_ge_u32 s32, 14")
    a("s_cbranch_scc1 a_short")
    sched(8, "l")
    a("s_branch a_p1done")
    a.label("a_short")
    vm.q = list(q0)
    sched(8, "s")
    a.label("a_p1done")
    stamp(a, 5)
    a("s_lshl_b32 s31, s28, 2")
    a("s_lshr_b32 s20, s29, 3")
    a("s_add_u32 s31, s31, s20                  ; h")
    a("s_and_b32 s32, s29, 7                    ; q chunk")
    a("s_lshl_b32 s33, s32, 2")
    a("s_add_u32 s33, s33, s30                  ; rb = 4c + w")
    a("s_add_u32 s21, s30, s32")
    a("s_and_b32 s21, s21, 7")
    a("s_lshl_b32 s24, s21, 8")
    a("s_lshl_b32 s21, s21, 13")
    a("s_lshl_b32 s22, s31, 17")
    a(f"s_add_u32 s22, s22, {WS_KV}")
    a("s_add_u32 s22, s21, s22")
    QA, QB, NMA, NMB, SA, SB, P, OA, OB = 8, 12, 16, 32, 48, 64, 80, 88, 104
    K0, K1, V0, V1 = 120, 124, 128, 136
    KA, KAN, VA, VAN, VL = 144, 145, 146, 147, 148
    a("s_lshl_b32 s20, s30, 3")
    a(f"s_mov_b32 s4, {KV_TBL_HI}")
    a(f"s_mov_b32 s5, {KV_TBL_HI}")
    a("s_lshr_b64 s[4:5], s[4:5], s20")
    a(f"s_mov_b32 s26, {KV_TBL_LO}")
    a(f"s_mov_b32 s27, {KV_TBL_LO}")
    a("s_lshr_b64 s[26:27], s[26:27], s20")
    a("s_mov_b32 s27, s4")
    def slot_base(dst):
        a("s_lshl_b32 s20, s25, 3")
        a(f"s_lshr_b64 s[{dst}:{dst+1}], s[26:27], s20")
        a(f"s_and_b32 s{dst}, s{dst}, 0xff")
        a(f"s_lshl_b32 s{dst}, s{dst}, 12")
        a("s_add_u32 s25, s25, 1")
        a("s_and_b32 s25, s25, 7")
    a("s_mov_b32 s25, 0")
    slot_base(4)
    a("v_and_b32 v6, 31, v1                     ; m")
    a("v_and_b32 v7, 27, v1                     ; m & ~4")
    a("v_cmp_eq_u32 vcc, 16, v7")
    a("v_mov_b32 v4, 0x3f803f80")
    a("s_nop 0")
    a("v_cndmask_b32 v4, 0, v4, vcc")
    for r in range(V0, V0 + 16):
        a(f"v_mov_b32 v{r}, v4")
    a("v_lshrrev_b32 v7, 5, v1")
    a("v_lshlrev_b32 v7, 8, v7")
    a("v_lshl_add_u32 v7, v6, 4, v7")
    a(f"v_add_u32 v{VL}, 0x2000, v7")
    a("s_mov_b32 s34, 0xffff")
    a("s_mov_b32 s35, 0xffff")
    a("s_mov_b32 s36, 0")
    a("v_lshlrev_b32 v4, 6, v1")
    a("v_add_u32 v4, s24, v4")
    a("v_and_b32 v5, 1, v1")
    a("v_lshlrev_b32 v5, 6, v5")
    a("s_lshr_b32 s20, s33, 1")
    a("s_lshl_b32 s20, s20, 7")
    a("v_add_u32 v5, s20, v5")
    a("v_cmp_gt_u32 vcc, 4, v1")
    a("s_lshr_b32 s38, s31, 2")
    a("v_cndmask_b32 v4, v5, v4, vcc")
    a("s_lshl_b32 s38, s38, 11")
    a(f"s_add_u32 s38, s38, {WS_FKV}")
    a(f"v_mov_b32 v7, {L_FLAGS + F_ST}")
    poll_lds(a, "a_st", 7, 5, "s_cmp_ge_u32 s20, 4", sleep=2)
    stamp(a, 12)
    if PDELAY:
        a(f"s_sleep {PDELAY}")
    poll_global(a, "a_kv", 4, 12, "s38", 1, 6, PSLEEP)
    stamp(a, 6)
    a("s_lshl_b32 s20, s31, 5")
    a("s_add_u32 s20, s20, s33")
    a("s_lshl_b32 s20, s20, 11")
    a(f"s_add_u32 s20, s20, {WS_QF}")
    a(f"buffer_load_dwordx4 {vr(QA, 4)}, v3, s[12:15], s20 offen sc1")
    a(f"buffer_load_dwordx4 {vr(QB, 4)}, v3, s[12:15], s20 offen offset:1024 sc1")
    a(f"buffer_load_dwordx4 {vr(K0, 4)}, v3, s[12:15], s22 offen sc1")
    stamp(a, 7)
    for part in range(4):
        a(f"s_add_u32 m0, s4, {(part >> 1) * 4096 + (part & 1) * 8192}")
        a(f"s_add_u32 s20, s22, {(part >> 1) * 4096 + (part & 1) * 65536}")
        for i in range(4):
            a(f"buffer_load_dwordx4 v3, s[12:15], s20 offen offset:{i*1024} sc1 lds")
    a("s_waitcnt vmcnt(16)")
    a(f"{MFMA} {vr(SA, 16)}, {vr(K0, 4)}, {vr(QA, 4)}, 0")
    a(f"{MFMA} {vr(SB, 16)}, {vr(K0, 4)}, {vr(QB, 4)}, 0")
    a(f"v_mov_b32 v5, {f32(-3.0e38)}")
    a(f"v_mov_b32 v6, {f32(-3.0e38)}")
    a("s_nop 15")
    def rowmax_step():
        for r in range(0, 16, 2):
            a(f"v_max3_f32 v5, v5, v{SA+r}, v{SA+r+1}")
        for r in range(0, 16, 2):
            a(f"v_max3_f32 v6, v6, v{SB+r}, v{SB+r+1}")
    def rowmax_fin():
        for v, NM in ((5, NMA), (6, NMB)):
            a(f"v_mov_b32 v7, v{v}")
            a("s_nop 1")
            a(f"v_permlane32_swap_b32 v{v}, v7")
            a("s_nop 1")
            a(f"v_max_f32 v{v}, v{v}, v7")
            a(f"v_sub_f32 v{v}, 0, v{v}")
            for r in range(16):
                a(f"v_mov_b32 v{NM+r}, v{v}")
    rowmax_step()
    rowmax_fin()
    a("s_mov_b32 s38, 9")
    a("s_waitcnt vmcnt(8)")

    if os.environ.get("APRIO"): a(f"s_setprio {os.environ['APRIO']}")
    a.label("a_start")
    stamp(a, 8)
    for r in range(32):
        a(f"v_mov_b32 v{OA+r}, 0")
    for r in range(4, 8):
        a(f"v_mov_b32 v{P+r}, 0")
    a("s_mov_b32 s37, 0")

    def next_addrs():
        slot_base(8)
        a(f"v_add_u32 v{KAN}, s8, v3")
        a(f"v_add_u32 v{VAN}, s8, v{VL}")
    a(f"v_add_u32 v{KA}, s4, v3")
    a(f"v_add_u32 v{VA}, s4, v{VL}")
    a("s_mov_b32 s25, 1")
    next_addrs()
    Kb = [K0, K1]
    Vb = [V0, V1]
    a(f"ds_read_b128 {vr(K0, 4)}, v{KA}")
    a(f"ds_read_b128 {vr(K1, 4)}, v{KA} offset:1024")
    a("s_mov_b64 exec, s[34:35]")
    a(f"ds_read_b128 {vr(V0, 4)}, v{VA}")
    a(f"ds_read_b128 {vr(V0+4, 4)}, v{VA} offset:512")
    a(f"ds_read_b128 {vr(V1+4, 4)}, v{VA} offset:512")
    a("s_mov_b64 exec, -1")
    a("s_waitcnt lgkmcnt(0)")
    a(f"{MFMA} {vr(SA, 16)}, {vr(K0, 4)}, {vr(QA, 4)}, {vr(NMA, 16)}")
    a("s_nop 7")
    a("s_nop 3")
    SPECIAL = (2, 6)
    a("s_bitcmp1_b32 s38, s37")
    a.raw(".p2align 6")
    a.label("a_loop")
    for u in range(8):
        cur, nxt = u & 1, (u + 1) & 1
        if u in SPECIAL:
            a(f"s_cbranch_scc1 a_sp{u}")
            a.label(f"a_back{u}")
        kread = (f"ds_read_b128 {vr(Kb[cur], 4)}, v{KA} offset:{(u+2)*1024}" if u + 2 < 8
                 else f"ds_read_b128 {vr(Kb[cur], 4)}, v{KAN} offset:{(u+2-8)*1024}")
        va, vo = (VA, (u + 1) * 1024) if u + 1 < 8 else (VAN, 0)
        for ph in range(2):
            S = (SA, SB)[ph]
            e = lambda r: a(f"v_exp_f32 v{S+r}, v{S+r}")
            c = lambda j: a(f"v_cvt_pk_bf16_f32 v{P+j}, v{S+2*j}, v{S+2*j+1}")
            if ph == 0:
                a(f"{MFMA} {vr(SB, 16)}, {vr(Kb[cur], 4)}, {vr(QB, 4)}, {vr(NMB, 16)}")
                a(kread)
                for r in range(5): e(r)
                a(f"{MFMA} {vr(OB, 16)}, {vr(Vb[nxt]+4, 4)}, {vr(P+4, 4)}, {vr(OB, 16)}")
                a("s_mov_b64 exec, s[34:35]")
                a(f"ds_read_b128 {vr(Vb[nxt], 4)}, v{va} offset:{vo}")
                a(f"ds_read_b128 {vr(Vb[nxt]+4, 4)}, v{va} offset:{vo+512}")
                a("s_mov_b64 exec, -1")
                for r in range(5, 8): e(r)
                for j in range(4): c(j)
                e(8); e(9)
                a("s_waitcnt lgkmcnt(3)")
                a(f"{MFMA} {vr(OA, 16)}, {vr(Vb[cur], 4)}, {vr(P, 4)}, {vr(OA, 16)}")
                for r in range(10, 16): e(r)
                for j in range(4, 8): c(j)
            else:
                a(f"{MFMA} {vr(SA, 16)}, {vr(Kb[nxt], 4)}, {vr(QA, 4)}, {vr(NMA, 16)}")
                for r in range(5): e(r)
                a(f"{MFMA} {vr(OA, 16)}, {vr(Vb[cur]+4, 4)}, {vr(P+4, 4)}, {vr(OA, 16)}")
                for r in range(5, 8): e(r)
                for j in range(4): c(j)
                e(8); e(9)
                a(f"{MFMA} {vr(OB, 16)}, {vr(Vb[cur], 4)}, {vr(P, 4)}, {vr(OB, 16)}")
                for r in range(10, 16): e(r)
                for j in range(4, 8): c(j)
                if u == 7:
                    a(f"v_mov_b32 v{KA}, v{KAN}")
                    a(f"v_mov_b32 v{VA}, v{VAN}")
    next_addrs()
    a("s_add_u32 s37, s37, 1")
    a("s_cmp_ge_u32 s37, 8")
    a("s_cbranch_scc1 a_loopend")
    a("s_bitcmp1_b32 s38, s37")
    a("s_branch a_loop")
    a.label("a_sp2")
    a("s_cmp_lg_u32 s37, 0")
    a("s_cbranch_scc1 a_back2")
    a("s_waitcnt vmcnt(0)")
    a(f"v_mov_b32 v4, {L_FLAGS + F_KVL}")
    a("v_mov_b32 v6, 1")
    a("s_mov_b64 exec, 1")
    a("ds_add_u32 v4, v6")
    a("s_mov_b64 exec, -1")
    a("s_cmp_eq_u32 s37, s37                    ; scc = 1")
    a("s_branch a_back2")
    a.label("a_sp6")
    a("s_cmp_eq_u32 s37, 0")
    a(f"s_cselect_b32 s20, {F_KVL}, {F_KVS}")
    a(f"s_add_u32 s20, s20, {L_FLAGS}")
    a("v_mov_b32 v4, s20")
    poll_lds(a, "a_all", 4, 5, "s_cmp_ge_u32 s20, 4")
    if PROF == 1:
        a("s_mov_b32 s73, s74")
        stamp(a, 10)
    a("s_branch a_back6")
    a.label("a_loopend")
    a(f"{MFMA} {vr(OB, 16)}, {vr(Vb[1]+4, 4)}, {vr(P+4, 4)}, {vr(OB, 16)}")
    stamp(a, 11)
    stamp(a, 2, 3)
    a("s_waitcnt lgkmcnt(0)")
    a("s_lshl_b32 s20, s33, 6")
    a("s_add_u32 s20, s20, s31")
    a("s_lshl_b32 s20, s20, 10")
    a(f"s_add_u32 s20, s20, {WS_OF}")
    a(f"s_add_u32 s21, s20, {32*1024}")
    a("s_nop 8")
    a("s_cmp_lg_u32 s36, 0")
    a("s_cbranch_scc1 a_fin")
    a(f"v_add_f32 v7, v{OA+8}, v{OB+8}")
    a(f"v_cmp_nge_f32 vcc, {f32(2.0**60)}, v7")
    a("s_nop 4")
    a("s_cbranch_vccz a_fin")
    a("s_mov_b32 s36, 1")
    a("s_mov_b32 s38, 0")
    a(f"v_mov_b32 v5, {f32(-3.0e38)}")
    a(f"v_mov_b32 v6, {f32(-3.0e38)}")
    a("s_mov_b32 s37, 0")
    a.label("a_mx")
    a("s_and_b32 s20, s37, 7")
    a("s_cmp_lg_u32 s20, 0")
    a("s_cbranch_scc1 a_mx1")
    slot_base(8)
    a("v_add_u32 v4, s8, v3")
    a.label("a_mx1")
    a(f"ds_read_b128 {vr(K0, 4)}, v4")
    a("s_waitcnt lgkmcnt(0)")
    a(f"{MFMA} {vr(SA, 16)}, {vr(K0, 4)}, {vr(QA, 4)}, 0")
    a(f"{MFMA} {vr(SB, 16)}, {vr(K0, 4)}, {vr(QB, 4)}, 0")
    a("s_nop 15")
    rowmax_step()
    a("v_add_u32 v4, 1024, v4")
    a("s_add_u32 s37, s37, 1")
    a("s_cmp_lt_u32 s37, 64")
    a("s_cbranch_scc1 a_mx")
    rowmax_fin()
    a("s_branch a_start")
    a.label("a_fin")
    for i, O in enumerate((OA, OB)):
        a(f"v_rcp_f32 v6, v{O+8}")
        a("s_nop 0")
        for r in range(8):
            a(f"v_mul_f32 v{O+r}, v{O+r}, v6")
        for j in range(4):
            a(f"v_cvt_pk_bf16_f32 v{P+4*i+j}, v{O+2*j}, v{O+2*j+1}")
        for j in range(4):
            a(f"v_min_u32 v{P+4*i+j}, 0xfffeffff, v{P+4*i+j}")
        a(f"buffer_store_dwordx4 {vr(P+4*i, 4)}, v3, s[12:15], s{20+i} offen sc1")
    a(f"v_mov_b32 v4, {L_FLAGS + 48}")
    a("v_mov_b32 v6, 1")
    a("s_mov_b64 exec, 1")
    a("ds_add_u32 v4, v6")
    a("s_mov_b64 exec, -1")
    a("s_waitcnt lgkmcnt(0)")
    if PROF == 3:
        stamp(a, 3, 3)
        a("s_waitcnt vmcnt(0)")
    dump_stamps(a)
    a("s_endpgm")


def gen_g(a):
    a("s_sub_u32 s30, s30, 4                    ; g")
    a("s_lshl_b32 s34, s31, 2")
    a("s_add_u32 s34, s34, s30")
    a("v_lshlrev_b32 v4, 2, v1")
    a(f"v_add_u32 v4, {L_FLAGS}, v4")
    a("v_mov_b32 v5, 0")
    a("ds_write_b32 v4, v5")
    X = 128
    ACC = 64
    WA, WB = 32, 48
    for r in range(4):
        a(f"v_mov_b32 v{WA+r}, -1")
    a("s_lshl_b32 s20, s34, 5")
    a("s_lshl_b32 s21, s32, 1")
    a("s_add_u32 s20, s20, s21")
    a("s_lshl_b32 s20, s20, 10")
    a(f"s_add_u32 s20, s20, {WS_OF}")
    if not os.environ.get("NOSENT"):
        a(f"buffer_store_dwordx4 {vr(WA, 4)}, v3, s[12:15], s20 offen sc1")
        a(f"buffer_store_dwordx4 {vr(WA, 4)}, v3, s[12:15], s20 offen offset:1024 sc1")
    a("s_cmp_ge_u32 s2, 8")
    a("s_cbranch_scc1 g_noreset")
    for r in range(4):
        a(f"v_mov_b32 v{WB+r}, 0")
    a("s_lshl_b32 s20, s2, 2")
    a("s_add_u32 s20, s20, s30")
    a("s_lshl_b32 s20, s20, 10")
    a(f"s_add_u32 s20, s20, {WS_FL}")
    a(f"buffer_store_dwordx4 {vr(WB, 4)}, v3, s[12:15], s20 offen sc1")
    a.label("g_noreset")
    a("v_and_b32 v5, 31, v1                     ; t")
    a("v_lshrrev_b32 v6, 5, v1                  ; hh")
    a("v_bfe_u32 v7, v1, 1, 3")
    a("s_lshl_b32 s20, s30, 12")
    a("v_lshl_add_u32 v12, v5, 7, s20")
    for s in range(4):
        a(f"v_add_u32 v13, {2*s}, v6")
        a("v_xor_b32 v13, v13, v7")
        a(f"v_lshl_add_u32 v{8+s}, v13, 4, v12")
    a("v_bfe_u32 v13, v1, 4, 1")
    a("v_lshlrev_b32 v13, 5, v13")
    a("v_and_b32 v14, 3, v1")
    a("v_lshl_add_u32 v13, v14, 3, v13          ; colhalf*32 + c4*8")
    a("v_bfe_u32 v14, v1, 2, 2                  ; r")
    a("v_lshl_add_u32 v13, v14, 6, v13          ; + r*64")
    a("v_lshl_add_u32 v12, v6, 9, v13")
    a("v_lshl_add_u32 v14, v6, 8, v13")
    for r in range(ACC, ACC + 48):
        a(f"v_mov_b32 v{r}, 0")

    for s_ in range(4):
        a(f"v_add_u32 v{24+s_}, {3*STG}, v{8+s_}")
    a("v_add_u32 v28, 0x10000, v12")
    a("v_add_u32 v29, 0x20000, v12")

    lk = VM("lgkmcnt", 15)

    def stream(first, last, ncb, D, xfirst, bars, hook=None):
        items = [(n, s, c) for n in range(first, last + 1) for s in range(4) for c in range(ncb)]
        def R(k):
            n, s, c = items[k]
            if s == 0 and c == 0 and n in bars:
                a("s_barrier")
                if PROF == 2 and bars[n] is not None:
                    stamp(a, bars[n], 2)
                    lk.clear()
            if n < 8:
                st = n % 5
                page = 7 * st + 4 + c
                if c == 0:
                    xb, xo = (8 + s, st * STG) if st < 3 else (24 + s, (st - 3) * STG)
                    a(f"ds_read_b128 {vr(X + 16*n + 4*s, 4)}, v{xb} offset:{xo}")
                    lk.op(k)
            else:
                page = W1_PAGES[n][c]
            b = (12, 28, 29)[page >> 4]
            o = (page & 15) * 4096 + s * 1024
            w = WA + 4 * (k % 8)
            a(f"ds_read_b64_tr_b16 {vr(w, 2)}, v{b} offset:{o}")
            a(f"ds_read_b64_tr_b16 {vr(w+2, 2)}, v{b} offset:{o + 256}")
            lk.op(k, 2)
            assert len(lk.q) <= 15
        for k in range(D):
            R(k)
        for k, (n, s, c) in enumerate(items):
            lk.wait(a, k)
            xf = vr(X + 16 * (n & 7) + 4 * s, 4)
            w = vr(WA + 4 * (k % 8), 4)
            d = vr(ACC + 16 * c, 16)
            if xfirst(c):
                a(f"{MFMA} {d}, {xf}, {w}, {d}")
            else:
                a(f"{MFMA} {d}, {w}, {xf}, {d}")
            if k + D < len(items):
                R(k + D)
            if hook:
                hook(n, s, c)

    def pack(b):
        for j in range(8):
            a(f"v_cvt_pk_bf16_f32 v{b+j}, v{b+2*j}, v{b+2*j+1}")

    BI = 32
    def bias_reads():
        for c in range(4):
            for q in range(0, 4, 2):
                d = BI + 2 * (c * 4 + q)
                a(f"ds_read2_b64 {vr(d, 4)}, v15 offset0:{(c*64 + q*16)//8} offset1:{(c*64 + q*16 + 16)//8}")

    a(f"v_lshlrev_b32 v15, 3, v6")
    a(f"v_add_u32 v15, {L_BIAS}, v15")
    a("v_mov_b32 v16, 0")
    a("v_mov_b32 v22, 1")
    a("s_lshr_b32 s35, s32, 1")
    a("s_lshl_b32 s35, s35, 2")
    a("s_lshl_b32 s38, s35, 7")
    a("s_add_u32 s38, s38, s34")
    a("s_lshl_b32 s38, s38, 10")
    a(f"s_add_u32 s38, s38, {WS_KV}")
    TOUCH = os.environ.get("TOUCH", "0")
    def touch(tag):
        a("v_lshlrev_b32 v30, 20, v1")
        a("s_cmp_eq_u32 s30, 0")
        a(f"s_cbranch_scc0 g_t1{tag}")
        a("s_mov_b64 exec, 0xffff")
        a("buffer_load_dword v23, v30, s[12:15], 0 offen")
        a("s_mov_b64 exec, -1")
        a.label(f"g_t1{tag}")
        a("s_cmp_eq_u32 s30, 1")
        a(f"s_cbranch_scc0 g_t2{tag}")
        a("s_mov_b64 exec, 3")
        a("buffer_load_dword v23, v30, s[4:7], 0 offen")
        a("buffer_load_dword v23, v30, s[8:11], 0 offen")
        a("s_mov_b64 exec, -1")
        a.label(f"g_t2{tag}")
        a("s_cmp_eq_u32 s30, 2")
        a(f"s_cbranch_scc0 g_t3{tag}")
        a("s_mov_b64 exec, 3")
        a("buffer_load_dword v23, v30, s[16:19], 0 offen")
        a("buffer_load_dword v23, v30, s[80:83], 0 offen")
        a("s_mov_b64 exec, -1")
        a.label(f"g_t3{tag}")
    srd(a, 4, P_W2, 1835008)
    srd(a, 8, P_WO, 524288)
    srd(a, 16, P_B2, 1024)
    srd(a, 80, P_OUT, 2097152)
    if TOUCH == "1":
        touch("a")
    if TOUCH == "3":
        srd(a, 84, P_B1, 3584)
        a("s_cmp_eq_u32 s30, 3")
        a("s_cbranch_scc0 g_t4")
        a("s_mov_b64 exec, 1")
        a("buffer_load_dword v23, v16, s[84:87], 0 offen")
        a("buffer_load_dword v23, v16, s[24:27], 0 offen offset:128")
        a("s_mov_b64 exec, -1")
        a.label("g_t4")
    a(f"v_mov_b32 v17, {L_FLAGS}")
    a("s_waitcnt lgkmcnt(0)")
    bars = {n: 2 + n for n in range(8)}
    def thook(tag):
        def h(n, s, c):
            if TOUCH == "2" and (n, s, c) == (1, 0, 0):
                touch(tag)
            if (n, s, c) == (0, 1, 0):
                a("s_cmp_ge_u32 s2, 8")
                a(f"s_cbranch_scc1 g_nocnt{tag}")
                a("s_waitcnt vmcnt(0)")
                a("s_mov_b64 exec, 1")
                a("buffer_atomic_add v22, v16, s[24:27], 0 offen sc1")
                a("s_mov_b64 exec, -1")
                a.label(f"g_nocnt{tag}")
        return h
    a("s_bitcmp1_b32 s32, 0")
    a("s_cbranch_scc1 g_vpath")
    stream(0, 7, 3, 6, lambda c: False, bars, thook("k"))
    stamp(a, 3)
    a("s_nop 7")
    for c in range(2):
        bk = ACC + 16 * c
        pack(bk)
        for u in range(2):
            a(f"s_add_u32 s20, s38, {(2*c + u) * 131072}")
            a(f"buffer_store_dwordx4 {vr(bk+4*u, 4)}, v3, s[12:15], s20 offen sc1")
    a("s_branch g_qpath")
    a.label("g_vpath")
    lk.clear()
    stream(0, 7, 3, 6, lambda c: c < 2, bars, thook("v"))
    stamp(a, 3)
    a("s_nop 7")
    a("v_bfe_u32 v20, v1, 4, 1")
    a("v_lshlrev_b32 v20, 17, v20")
    a("v_lshl_add_u32 v20, v6, 8, v20")
    a("v_and_b32 v21, 15, v1")
    a("v_lshl_add_u32 v20, v21, 4, v20")
    for c in range(2):
        bv = ACC + 16 * c
        pack(bv)
        a(f"s_add_u32 s20, s38, {65536 + 2*c*131072}")
        a(f"buffer_store_dwordx4 {vr(bv, 4)}, v20, s[12:15], s20 offen sc1")
        a(f"buffer_store_dwordx4 {vr(bv+4, 4)}, v20, s[12:15], s20 offen offset:512 sc1")
    a.label("g_qpath")
    bq = ACC + 32
    a(f"s_mov_b32 s36, {f32(QSCALE)}")
    for r in range(16):
        a(f"v_mul_f32 v{bq+r}, s36, v{bq+r}")
    pack(bq)
    a("s_lshl_b32 s20, s32, 7")
    a("s_add_u32 s20, s20, s34")
    a("s_lshl_b32 s20, s20, 10")
    a(f"s_add_u32 s20, s20, {WS_QF}")
    a(f"s_add_u32 s21, s20, 65536")
    a(f"buffer_store_dwordx4 {vr(bq, 4)}, v3, s[12:15], s20 offen sc1")
    a(f"buffer_store_dwordx4 {vr(bq+4, 4)}, v3, s[12:15], s21 offen sc1")
    a("s_lshl_b32 s36, s31, 4")
    a("s_add_u32 s36, s36, s32")
    a("s_lshl_b32 s36, s36, 6")
    a(f"s_add_u32 s36, s36, {WS_FH}               ; FH[rg][j]")
    a("s_lshl_b32 s35, s35, 2                   ; quad*16")
    a("s_add_u32 s35, s35, s31")
    a("s_lshl_b32 s35, s35, 1")
    a("s_and_b32 s20, s32, 1")
    a("s_add_u32 s35, s35, s20")
    a("s_lshl_b32 s35, s35, 6")
    a(f"s_add_u32 s35, s35, {WS_FKV}              ; FKV[quad][rg][par]")
    stamp(a, 4)

    def send_flag(sreg, younger=0):
        a(f"s_waitcnt vmcnt({younger})")
        a("s_mov_b64 exec, 1")
        a(f"ds_add_rtn_u32 v18, v17, v22 offset:{F_ST}")
        a("s_waitcnt lgkmcnt(0)")
        a("v_cmp_eq_u32 vcc, 3, v18")
        a("s_nop 4")
        a("s_and_b64 exec, exec, vcc")
        lab = f"g_pub{len(a.lines)}"
        a(f"s_cbranch_execz {lab}")
        a(f"buffer_store_dword v22, v16, s[12:15], {sreg} offen sc1")
        a.label(lab)
        a("s_mov_b64 exec, -1")

    a("s_cmp_ge_u32 s32, 14")
    a("s_cbranch_scc1 g_noffn1")
    a("s_barrier                                ; B8")
    stamp(a, 10, 2)
    bias_reads()
    a("s_waitcnt lgkmcnt(0)                     ; bias")
    for c in range(4):
        for q in range(4):
            d = BI + 2 * (c * 4 + q)
            r = ACC + 16 * c + 4 * q
            a(f"v_lshlrev_b32 v{r}, 16, v{d}")
            a(f"v_and_b32 v{r+1}, 0xffff0000, v{d}")
            a(f"v_lshlrev_b32 v{r+2}, 16, v{d+1}")
            a(f"v_and_b32 v{r+3}, 0xffff0000, v{d+1}")
    a("s_mov_b32 s37, 0")
    a(f"s_setprio {GP0}")
    srd(a, 84, P_W1, 1835008)
    a("v_lshrrev_b32 v19, 2, v1")
    a("v_and_b32 v20, 3, v1")
    a("v_mul_u32_u24 v30, 3584, v19")
    a("v_lshl_add_u32 v30, v20, 4, v30")
    a(f"s_mul_i32 s39, s30, {16*3584}")
    a("s_lshl_b32 s20, s32, 8")
    a("s_add_u32 s39, s39, s20")
    a("s_lshl_b32 s88, s30, 10")
    lk.clear()
    def lds_signal(off):
        a("s_mov_b64 exec, 1")
        a(f"ds_add_u32 v17, v22 offset:{off}")
        a("s_mov_b64 exec, -1")
        lk.op("sig")
    dma = {2 * x: (11 + x // 4, x % 4) for x in range(8)}
    dma.update({53 + x: (13 + x // 4, x % 4) for x in range(12)})
    nl = [0]
    def hook(n, s, c):
        k = (n - 8) * 16 + s * 4 + c
        if k in dma:
            m, i = dma[k]
            if i == 0:
                a(f"s_add_u32 s21, s33, {m & 7}")
                a("s_and_b32 s21, s21, 7")
                a(f"s_mul_i32 s89, s21, {64*3584}")
                a("s_add_u32 s89, s89, s39")
            a(f"s_add_u32 m0, s88, {W1_PAGES[m][i]*4096}")
            a(f"s_add_u32 s20, s89, {i*64}")
            a("buffer_load_dwordx4 v30, s[84:87], s20 offen lds")
            nl[0] += 1
        if k <= PUBK and k % 4 == 3:
            lab = f"g_fl{k}"
            a("s_cmp_eq_u32 s37, 0")
            a(f"s_cbranch_scc0 {lab}")
            if k < PUBK:
                a("s_getreg_b32 s20, hwreg(HW_REG_IB_STS)")
                a("s_lshr_b32 s21, s20, 18")
                a("s_and_b32 s21, s21, 0x30")
                a("s_and_b32 s20, s20, 15")
                a("s_or_b32 s20, s20, s21")
                a(f"s_cmp_le_u32 s20, {nl[0]}")
                a(f"s_cbranch_scc0 {lab}")
            send_flag("s35", nl[0])
            a("s_mov_b32 s37, 1")
            stamp(a, 5)
            a.label(lab)
        for ks, kc, off, cnt in ((PUBK, 40, F_W1, 8), (47, 52, F_C10, 0), (68, 73, F_W1B, 12), (84, 89, F_W1C, 20)):
            if k == ks:
                if cnt:
                    a(f"s_waitcnt vmcnt({nl[0] - cnt})")
                lds_signal(off)
            if k == kc - 3:
                a(f"ds_read_b32 v20, v17 offset:{off}")
                lk.op("w1")
            if k == kc:
                lk.wait(a, "w1")
                a("v_readfirstlane_b32 s20, v20")
                a("s_nop 3")
                a("s_cmp_ge_u32 s20, 4")
                a(f"s_cbranch_scc1 g_w1ok{kc}")
                a(f"v_mov_b32 v19, {L_FLAGS + off}")
                poll_lds(a, f"g_w1{kc}", 19, 20, "s_cmp_ge_u32 s20, 4", sleep=1)
                a.label(f"g_w1ok{kc}")
    PUBK = 31
    FD = 6
    assert 48 - FD > 40 and 80 - FD > 73 and 96 - FD > 89
    stream(8, 15, 4, FD, lambda c: False, {}, hook)
    stamp(a, 6)
    a(f"s_setprio {GP1}")
    a("s_nop 15")
    a("s_mul_i32 s20, s34, 112")
    a("s_lshl_b32 s21, s32, 3")
    a("s_add_u32 s20, s20, s21")
    a("s_lshl_b32 s20, s20, 10")
    a(f"s_add_u32 s20, s20, {WS_HF}")
    a("s_add_u32 s21, s20, 4096")
    for c in range(4):
        b = ACC + 16 * c
        for r in range(16):
            a(f"v_max_f32 v{b+r}, 0, v{b+r}")
        for r in range(0, 16, 2):
            a(f"v_pk_mul_f32 {vr(b+r, 2)}, {vr(b+r, 2)}, {vr(b+r, 2)}")
        pack(b)
        for u in range(2):
            a(f"buffer_store_dwordx4 {vr(b+4*u, 4)}, v3, s[12:15], s{20 + (c >> 1)} offen offset:{((c & 1)*2 + u)*1024} sc1")
    a("s_branch g_p1done")
    a.label("g_noffn1")
    a("s_waitcnt lgkmcnt(0)")
    a("s_barrier                                ; B8")
    send_flag("s35")
    a("s_cmp_eq_u32 s32, 15")
    a("s_cbranch_scc1 g_p1done")
    srd(a, 16, P_GATE, 1024)
    for r in range(16):
        a(f"v_mov_b32 v{ACC+r}, 0")
    a("v_lshlrev_b32 v15, 4, v6                 ; hh*16")
    for n in range(8):
        a(f"s_add_u32 s21, s33, {n}")
        a("s_and_b32 s21, s21, 7")
        a("s_lshl_b32 s21, s21, 7")
        for s in range(4):
            a(f"buffer_load_dwordx4 {vr(WA + 4*s, 4)}, v15, s[16:19], s21 offen offset:{s*32}")
        a("s_waitcnt vmcnt(0)")
        for s in range(4):
            a(f"{MFMA} {vr(ACC, 16)}, {vr(WA + 4*s, 4)}, {vr(X + 16*n + 4*s, 4)}, {vr(ACC, 16)}")
    a("s_nop 15")
    a("v_lshlrev_b32 v15, 2, v1")
    a("s_lshl_b32 s20, s34, 7")
    a(f"s_add_u32 s20, s20, {WS_G}")
    a("s_mov_b32 exec_hi, 0")
    a(f"buffer_store_dword v{ACC}, v15, s[12:15], s20 offen sc1")
    a("s_mov_b64 exec, -1")
    a.label("g_p1done")
    lds_signal(F_F7)
    a("s_lshl_b32 s22, s28, 2")
    a("s_lshr_b32 s20, s29, 3")
    a("s_add_u32 s22, s22, s20                  ; h")
    a("s_add_u32 s21, s30, s29")
    a("s_add_u32 s21, s21, 4")
    a("s_and_b32 s21, s21, 7")
    a("s_lshr_b32 s23, s22, 2")
    a("s_lshl_b32 s23, s23, 3")
    a("s_add_u32 s23, s23, s21")
    a("s_lshl_b32 s23, s23, 8")
    a(f"s_add_u32 s23, s23, {WS_FKV}")
    a("s_lshl_b32 s22, s22, 17")
    a("s_lshl_b32 s21, s21, 13")
    a("s_add_u32 s22, s22, s21")
    a(f"s_add_u32 s22, s22, {WS_KV}")
    a("s_lshl_b32 s20, s30, 3")
    a(f"s_lshr_b32 s21, {KV_TBL_HI}, s20")
    a("s_and_b32 s21, s21, 0xff")
    a("s_lshl_b32 s21, s21, 12")
    a("v_and_b32 v8, 3, v1")
    a("v_lshlrev_b32 v8, 6, v8")
    a(f"s_setprio {GP2}")
    poll_global(a, "g_kv", 8, 12, "s23", 1, 9, HSLEEP)
    a("s_mov_b64 exec, 1")
    a(f"ds_add_rtn_u32 v10, v17, v22 offset:{F_HS}")
    a("s_waitcnt lgkmcnt(0)")
    a("v_readfirstlane_b32 s20, v10")
    a("s_nop 3")
    a("s_cmp_lg_u32 s20, 3")
    a("s_cbranch_scc1 g_nohpub")
    a("buffer_store_dword v22, v16, s[12:15], s36 offen sc1")
    a.label("g_nohpub")
    a("s_mov_b64 exec, -1")
    stamp(a, 7)
    a(f"v_mov_b32 v8, {L_FLAGS + F_F7}")
    poll_lds(a, "g_f7", 8, 9, "s_cmp_ge_u32 s20, 4", sleep=4)
    for part in range(4):
        a(f"s_add_u32 m0, s21, {(part >> 1) * 4096 + (part & 1) * 8192}")
        a(f"s_add_u32 s20, s22, {(part >> 1) * 4096 + (part & 1) * 65536}")
        for i in range(4):
            a(f"buffer_load_dwordx4 v3, s[12:15], s20 offen offset:{i*1024} sc1 lds")
    if os.environ.get("GEXIT"):
        a("s_waitcnt vmcnt(0)")
        lds_signal(F_KVS)
        dump_stamps(a)
        a("s_endpgm")
    srd(a, 4, P_W2, 1835008)
    srd(a, 8, P_WO, 524288)
    srd(a, 16, P_B2, 1024)
    srd(a, 24, P_OUT, 2097152)
    a("s_lshl_b32 s31, s28, 2")
    a("s_lshr_b32 s20, s29, 3")
    a("s_add_u32 s31, s31, s20                  ; rb")
    a("s_and_b32 s32, s29, 7                    ; cp")
    a("s_and_b32 s38, s30, 1")
    a("s_lshr_b32 s39, s30, 1")
    a("s_lshl_b32 s41, s31, 1")
    a("s_add_u32 s41, s41, s38")
    a("s_xor_b32 s42, s41, 1")
    a("s_lshl_b32 s40, s32, 1")
    a("s_add_u32 s40, s40, s39")
    a("s_xor_b32 s43, s40, 1")
    a("s_mul_i32 s21, s30, 28")
    a("s_lshl_b32 s20, s21, 14")
    a("s_lshl_b32 s33, s40, 6")
    a("s_add_u32 s33, s33, s20")
    a("s_lshl_b32 s35, s43, 6")
    a("s_add_u32 s35, s35, s20")
    a("v_lshrrev_b32 v8, 2, v1")
    a("v_and_b32 v9, 3, v1")
    a("v_lshlrev_b32 v8, 10, v8")
    a("v_lshl_add_u32 v4, v9, 4, v8")
    AF = 16
    HB = 80
    WF = 112
    WO = 128
    ND = 7
    ST = lambda i: 128 + 16 * i
    vm = VM()
    vm.op("hst")
    def ldW(k):
        i = k % ND
        a(f"buffer_load_dwordx4 {vr(ST(i), 4)}, v4, s[4:7], s33 offen")
        a(f"buffer_load_dwordx4 {vr(ST(i)+4, 4)}, v4, s[4:7], s35 offen")
        a("s_add_u32 s33, s33, 16384")
        a("s_add_u32 s35, s35, 16384")
        vm.op(("w", k), 2)
    def ldH(k):
        i = k % ND
        a(f"buffer_load_dwordx4 {vr(ST(i)+8, 4)}, v3, s[12:15], s22 offen sc1")
        a(f"buffer_load_dwordx4 {vr(ST(i)+12, 4)}, v3, s[12:15], s23 offen sc1")
        a("s_add_u32 s22, s22, 1024")
        a("s_add_u32 s23, s23, 1024")
        vm.op(("h", k), 2)
    def ldWo(k):
        a(f"s_add_u32 s20, s98, {k*16384}")
        a(f"buffer_load_dwordx4 {vr(WO+8*k, 4)}, v4, s[8:11], s20 offen")
        a(f"s_add_u32 s20, s99, {k*16384}")
        a(f"buffer_load_dwordx4 {vr(WO+8*k+4, 4)}, v4, s[8:11], s20 offen")
        vm.op(("o", k), 2)
    for k in range(ND):
        ldW(k)
    a("s_lshl_b32 s20, s39, 18")
    a("s_lshl_b32 s98, s40, 6")
    a("s_add_u32 s98, s98, s20")
    a("s_lshl_b32 s99, s43, 6")
    a("s_add_u32 s99, s99, s20")
    ldWo(14)
    ldWo(15)
    for sd, st in ((22, 41), (23, 42)):
        a(f"s_mul_i32 s{sd}, s{st}, 112")
        a(f"s_add_u32 s{sd}, s{sd}, s21")
        a(f"s_lshl_b32 s{sd}, s{sd}, 10")
        a(f"s_add_u32 s{sd}, s{sd}, {WS_HF}")
    a("s_lshl_b32 s34, s30, 12")
    a(f"s_add_u32 s34, s34, {36*4096}")
    a("v_add_u32 v7, s34, v14")
    a("v_add_u32 v12, s34, v3")
    vm.wait(a, "hst")
    lds_signal(F_KVS)
    a("v_and_b32 v8, 15, v1")
    a("v_lshlrev_b32 v8, 6, v8")
    a("s_lshr_b32 s36, s31, 1")
    a("s_lshl_b32 s36, s36, 10")
    a(f"s_add_u32 s36, s36, {WS_FH}")
    poll_global(a, "g_hw", 8, 12, "s36", 1, 9, HSLEEP)
    vm.clear()
    stamp(a, 8)
    for k in range(ND):
        ldH(k)
    def prep(k):
        i = k % ND
        w = WF + 8 * (k & 1)
        vm.wait(a, ("w", k))
        a(f"ds_write_b128 v12, {vr(ST(i), 4)}")
        a(f"ds_write_b128 v12, {vr(ST(i)+4, 4)} offset:1024")
        for cl in range(2):
            a(f"ds_read_b64_tr_b16 {vr(w+4*cl, 2)}, v7 offset:{cl*1024}")
            a(f"ds_read_b64_tr_b16 {vr(w+4*cl+2, 2)}, v7 offset:{cl*1024+512}")
    prep(0)
    for k in range(28):
        i = k % ND
        w = WF + 8 * (k & 1)
        if k + 1 < 28:
            prep(k + 1)
            a("s_waitcnt lgkmcnt(6)")
        else:
            a("s_waitcnt lgkmcnt(0)")
        if k + ND < 28:
            ldW(k + ND)
        else:
            ldWo(2 * i)
        vm.wait(a, ("h", k))
        for cl in range(2):
            for tl in range(2):
                d = vr(AF + 16 * (tl + 2 * cl), 16)
                if not os.environ.get("NOF2"):
                    a(f"{MFMA} {d}, {vr(w + 4*cl, 4)}, {vr(ST(i) + 8 + 4*tl, 4)}, {d if k else 0}")
        if k + ND < 28:
            ldH(k + ND)
        else:
            ldWo(2 * i + 1)
    stamp(a, 9)
    for k in list(range(14, 16)) + list(range(14)):
        vm.wait(a, ("o", k))
        a(f"ds_write_b128 v12, {vr(WO+8*k, 4)}")
        a(f"ds_write_b128 v12, {vr(WO+8*k+4, 4)} offset:1024")
        for cl in range(2):
            a(f"ds_read_b64_tr_b16 {vr(WO+8*k+4*cl, 2)}, v7 offset:{cl*1024}")
            a(f"ds_read_b64_tr_b16 {vr(WO+8*k+4*cl+2, 2)}, v7 offset:{cl*1024+512}")
        if k & 1:
            a("s_waitcnt lgkmcnt(0)")
    stamp(a, 10)
    a("v_lshlrev_b32 v8, 2, v5")
    a("s_lshl_b32 s20, s41, 7")
    a(f"s_add_u32 s20, s20, {WS_G}")
    a("buffer_load_dword v10, v8, s[12:15], s20 offen sc1")
    a("v_lshlrev_b32 v8, 3, v6")
    a("s_lshl_b32 s20, s40, 6")
    for q in range(4):
        a(f"buffer_load_dwordx2 {vr(WF+2*q, 2)}, v8, s[16:19], s20 offen offset:{q*16}")
    a("s_lshl_b32 s20, s30, 2")
    a(f"s_add_u32 s20, s20, {L_FLAGS + 16}")
    a("v_mov_b32 v13, s20")
    def partner(r):
        a(f"s_xor_b32 s36, s30, {r}")
        a("s_lshl_b32 s21, s36, 12")
        a(f"s_add_u32 s21, s21, {36*4096}")
        a("s_lshl_b32 s36, s36, 2")
        a(f"s_add_u32 s36, s36, {L_FLAGS + 16}")
    def xchg(r, seq, src, dst_tmp, tag, need_ack):
        if need_ack:
            a("v_add_u32 v8, 16, v13")
            poll_lds(a, f"{tag}a", 8, 9, f"s_cmp_ge_u32 s20, {seq-1}")
        for q in range(4):
            a(f"ds_write_b128 v12, {vr(src+4*q, 4)} offset:{q*1024}")
        partner(r)
        a(f"v_mov_b32 v9, {seq}")
        a("s_waitcnt lgkmcnt(0)")
        a("ds_write_b32 v13, v9")
        a("v_mov_b32 v8, s36")
        poll_lds(a, f"{tag}f", 8, 11, f"s_cmp_ge_u32 s20, {seq}")
        a("v_add_u32 v11, s21, v3")
        for q in range(4):
            a(f"ds_read_b128 {vr(dst_tmp+4*q, 4)}, v11 offset:{q*1024}")
        a("s_waitcnt lgkmcnt(0)")
        a("ds_write_b32 v8, v9 offset:16")
    a(f"s_setprio {GP3}")
    T0, T1 = AF, AF + 32
    for seq, (src, dst) in enumerate(((AF + 16, T0), (AF + 48, T1)), 1):
        xchg(1, seq, src, HB, f"g_r{seq}", seq > 1)
        vadd16(a, dst, HB, "a")
    a("s_waitcnt vmcnt(0)")
    a(f"v_max_f32 v10, {f32(-60.0)}, v10")
    a(f"v_mul_f32 v10, {f32(-LOG2E)}, v10")
    a("v_exp_f32 v14, v10                       ; e^-z")
    a("s_nop 0")
    a("v_add_f32 v10, 1.0, v14")
    a("v_rcp_f32 v10, v10                       ; g")
    for q in range(4):
        d = WF + 2 * q
        a(f"v_lshlrev_b32 v8, 16, v{d}")
        a(f"v_add_f32 v{AF+4*q}, v{AF+4*q}, v8")
        a(f"v_and_b32 v8, 0xffff0000, v{d}")
        a(f"v_add_f32 v{AF+4*q+1}, v{AF+4*q+1}, v8")
        a(f"v_lshlrev_b32 v8, 16, v{d+1}")
        a(f"v_add_f32 v{AF+4*q+2}, v{AF+4*q+2}, v8")
        a(f"v_and_b32 v8, 0xffff0000, v{d+1}")
        a(f"v_add_f32 v{AF+4*q+3}, v{AF+4*q+3}, v8")
    for T in (T0, T1):
        vscale16(a, T, 14, "b")
    OBF = AF + 48
    a("s_lshl_b32 s22, s41, 5")
    a("s_lshl_b32 s20, s39, 4")
    a("s_add_u32 s22, s22, s20")
    a("s_lshl_b32 s22, s22, 10")
    a(f"s_add_u32 s22, s22, {WS_OF}")
    for i in range(1, 4):
        a(f"s_add_u32 s{44+i}, s22, {i*4096}")
    a("s_mov_b32 s44, s22")
    a("v_add_u32 v8, 16, v13")
    poll_lds(a, "g_ak", 8, 9, "s_cmp_ge_u32 s20, 2", sleep=2)
    stamp(a, 11)
    a(f"v_mov_b32 v8, {L_FLAGS + F_AD}")
    poll_lds(a, "g_ad", 8, 9, f"s_cmp_ge_u32 s20, {ADN}", sleep=4)
    stamp(a, 12)
    stamp(a, 2, 3)
    ldO = lambda k: a(f"buffer_load_dwordx4 {vr(OBF+4*k, 4)}, v3, s[12:15], s{44 + k//4} offen offset:{(k%4)*1024} sc1")
    for k in range(16):
        ldO(k)
    a("s_mov_b32 s37, 0xffff")
    a("s_mov_b32 s96, 0")
    a.label("g_oround")
    if os.environ.get("OWAIT"): a("s_waitcnt vmcnt(0)")
    for k in range(16):
        b = OBF + 4 * k
        a(f"s_bitcmp1_b32 s37, {k}")
        a(f"s_cbranch_scc0 g_onext{k}")
        a(f"s_waitcnt vmcnt({15-k})")
        a(f"v_max3_u32 v8, v{b}, v{b+1}, v{b+2}")
        a(f"v_max_u32 v8, v8, v{b+3}")
        a("v_cmp_eq_u32 vcc, -1, v8")
        a("s_nop 4")
        a(f"s_cbranch_vccnz g_oretry{k}")
        for cl, T in enumerate((T0, T1)):
            d = vr(T, 16)
            a(f"{MFMA} {d}, {vr(WO + 8*k + 4*cl, 4)}, {vr(b, 4)}, {d}")
        a(f"s_bitset0_b32 s37, {k}")
        a.label(f"g_onext{k}")
    a("s_cmp_eq_u32 s37, 0")
    a("s_cbranch_scc1 g_odone")
    a("s_add_u32 s96, s96, 1")
    a(f"s_cmp_lt_u32 s96, {SPIN_MAX}")
    a("s_waitcnt vmcnt(0)")
    a("s_cbranch_scc1 g_oround")
    a("s_branch g_odone")
    for k in range(16):
        a.label(f"g_oretry{k}")
        ldO(k)
        a(f"s_branch g_onext{k}")
    a.label("g_odone")
    a("s_nop 15")
    stamp(a, 6, 3)
    xchg(2, 3, T1, AF + 16, "g_r4", False)
    stamp(a, 7, 3)
    vadd16(a, AF, AF + 16, "c")
    vscale16(a, AF, 10, "d")
    P = OBF
    for j in range(8):
        a(f"v_cvt_pk_bf16_f32 v{P+j}, v{AF+2*j}, v{AF+2*j+1}")
    a("v_lshlrev_b32 v8, 10, v5")
    a("v_lshl_add_u32 v8, v6, 4, v8")
    for pa in (0, 2):
        a(f"v_permlane32_swap_b32 v{P+2*pa}, v{P+2*pa+2}")
        a(f"v_permlane32_swap_b32 v{P+2*pa+1}, v{P+2*pa+3}")
    a("s_lshl_b32 s20, s41, 15")
    a("s_lshl_b32 s21, s40, 6")
    a("s_add_u32 s20, s20, s21")
    a(f"buffer_store_dwordx4 {vr(P, 4)}, v8, s[24:27], s20 offen")
    a(f"buffer_store_dwordx4 {vr(P+4, 4)}, v8, s[24:27], s20 offen offset:32")
    a("s_waitcnt lgkmcnt(0)")
    if PROF == 3:
        a("s_mul_i32 s73, s96, 100")
        a("s_add_u32 s73, s73, s64")
        stamp(a, 8, 3)
        a("s_waitcnt vmcnt(0)")
    dump_stamps(a)
    a("s_endpgm")


def main(path):
    a = Asm()
    hdr = f"""; gated_mix: MHA block + squared-relu FFN, gated mix.  Generated by gen/gen7.py
; @launch grid=(256,1,1) block=(512,1,1) lds={LDS_BYTES}
.amdgcn_target "amdgcn-amd-amdhsa--gfx950"
.text
.globl {NAME}_kernel
.type {NAME}_kernel,@function
"""
    gen(a)
    tail = f""".section .rodata,"a"
.p2align 6
.amdhsa_kernel {NAME}_kernel
  .amdhsa_next_free_vgpr 256
  .amdhsa_next_free_sgpr 102
  .amdhsa_accum_offset 256
  .amdhsa_group_segment_fixed_size 0
  .amdhsa_kernarg_size 96
  .amdhsa_user_sgpr_count 2
  .amdhsa_user_sgpr_kernarg_segment_ptr 1
  .amdhsa_system_sgpr_workgroup_id_x 1
.end_amdhsa_kernel
"""
    open(path, "w").write(hdr + a.text() + tail)


if __name__ == "__main__":
    main(sys.argv[1] if len(sys.argv) > 1 else f"cdna_kernels/{NAME}.s")
```

```python
import struct, math, sys, os

NAME = "gated_mix__mha_block__dense_activation_squared_relu__prompt"

WS_QF = 0x000000
WS_KV = 0x200000
WS_OF = 0x600000
WS_HF = 0x800000
WS_G = 0xF02000
WS_FL = 0xF04000
WS_FKV = WS_FL
WS_FH = WS_FL + 16384
WS_SIZE = 0xF0C000
NRESET = 32

QSCALE = 0.25 * math.log2(math.e)
LOG2E = math.log2(math.e)
PROF = int(os.environ.get("PROF", "0"))
WS_PROF = 0x2000000
if PROF:
    WS_SIZE = 0x2400000
SPIN_MAX = 1 << 15
MFMA = "v_mfma_f32_32x32x16_bf16"

STG = 28672
L_FLAGS = 143360
L_F7 = 147456
LDS_BYTES = 163840
def g_stage(j):
    return (131072, 131072 + 6144, 147456, 147456 + 6144)[j]


def f32(x):
    return "0x%08x" % struct.unpack("<I", struct.pack("<f", x))[0]


class Asm:
    def __init__(self):
        self.lines = []

    def __call__(self, s):
        for l in s.strip("\n").split("\n"):
            self.lines.append("    " + l.strip())

    def label(self, l):
        self.lines.append(l + ":")

    def raw(self, s):
        self.lines.append(s)

    def text(self):
        return "\n".join(self.lines) + "\n"


class VM:
    def __init__(self, cnt="vmcnt", mx=63):
        self.q = []
        self.cnt, self.mx = cnt, mx

    def op(self, tag, n=1):
        self.q += [tag] * n

    def wait(self, a, *tags):
        idx = [i for i, t in enumerate(self.q) if t in tags]
        if not idx:
            return
        n = len(self.q) - 1 - max(idx)
        a(f"s_waitcnt {self.cnt}({min(n, self.mx)})")
        self.q = self.q[max(idx) + 1:]

    def clear(self):
        self.q = []


L_BIAS = L_FLAGS + 256
W1_PAGES = {8: (21, 22, 23, 24), 9: (25, 26, 27, 28), 10: (29, 30, 31, 32), 11: (33, 34, 36, 37),
            12: (38, 39, 0, 1), 13: (2, 3, 4, 5), 14: (6, 7, 8, 9), 15: (10, 11, 20, 21)}
PLANS = {
    "a": {-1: [0, 1], 0: [2], 1: [3], 2: [4], 3: [5], 4: [6], 5: [7], 6: [8], 7: ["b", "c", 9], 8: [10, 11, 12, 13, 14, 15]},
    "b": {-1: [0, 1], 0: [2], 1: [3], 2: [4], 3: [5], 4: [6], 5: [7], 6: [8, "b", "c"], 7: [9, 10], 8: [11, 12, 13, 14, 15]},
    "c": {-1: [0, 1], 0: [2], 1: [3], 2: [4], 3: [5], 4: [6], 5: [7, 8], 6: ["b", "c", 9], 7: [10, 11], 8: [12, 13, 14, 15]},
}
PLAN = PLANS[os.environ.get("PLAN", "a")]
NEED = {8: (8, 9, "b", "c")}
F_KVL, F_F7, F_C8, F_KVS, F_FULL, F_ACK, F_AD, F_W1, F_ST, F_HS, F_W1B, F_W1C = 72, 4, 8, 12, 16, 32, 48, 52, 56, 60, 64, 68
PSLEEP = int(os.environ.get("PSLEEP", "6"))
HSLEEP = int(os.environ.get("HSLEEP", "24"))
WARM2 = int(os.environ.get("WARM2", "1"))
ADN = int(os.environ.get("ADN", "4"))
GP0, GP1, GP2, GP3 = [int(x) for x in os.environ.get("GP", "0,2,0,2").split(",")]
PDELAY = int(os.environ.get("PDELAY", "0"))
HDELAY = int(os.environ.get("HDELAY", "1"))


PK = os.environ.get("PK", "abcd")
def vadd16(a, dst, src, tag):
    if tag in PK:
        for i in range(0, 16, 2):
            a(f"v_pk_add_f32 {vr(dst+i, 2)}, {vr(dst+i, 2)}, {vr(src+i, 2)}")
    else:
        for i in range(16):
            a(f"v_add_f32 v{dst+i}, v{dst+i}, v{src+i}")


def vscale16(a, dst, sreg, tag):
    if tag in PK:
        a(f"v_mov_b32 v{sreg+1}, v{sreg}")
        for i in range(0, 16, 2):
            a(f"v_pk_mul_f32 {vr(dst+i, 2)}, {vr(dst+i, 2)}, {vr(sreg, 2)}")
    else:
        for i in range(16):
            a(f"v_mul_f32 v{dst+i}, v{dst+i}, v{sreg}")


def vr(b, n):
    return f"v[{b}:{b+n-1}]" if n > 1 else f"v{b}"


def srd(a, d, base, size):
    a(f"s_mov_b32 s{d}, s{base}")
    a(f"s_and_b32 s{d+1}, s{base+1}, 0xffff")
    a(f"s_mov_b32 s{d+2}, {size}")
    a(f"s_mov_b32 s{d+3}, 0x00020000")


TIMER = "s_memtime" if os.environ.get("CYC") else "s_memrealtime"
NSTAMP = 14
def stamp(a, slot, mode=1):
    if not PROF or (mode != PROF and slot not in (1, NSTAMP - 1)):
        return
    a(f"{TIMER} s[92:93]")
    a("s_waitcnt lgkmcnt(0)")
    a(f"s_mov_b32 s{64+slot}, s92")


DBG_A = [True]
def init_stamps(a):
    if not PROF:
        return
    a("s_memtime s[94:95]")
    a(f"{TIMER} s[92:93]")
    a("s_waitcnt lgkmcnt(0)")
    a("s_mov_b32 s78, s94")
    for i in range(NSTAMP):
        a(f"s_mov_b32 s{64+i}, s92")


def dump_stamps(a):
    if not PROF:
        return
    if os.environ.get("DBGT"):
        stamp(a, NSTAMP - 1)
        srd(a, 24, P_DBG, 256)
        a("s_getreg_b32 s20, hwreg(HW_REG_XCC_ID, 0, 4)")
        a("s_sub_u32 s20, s20, s2")
        a("s_and_b32 s20, s20, 7")
        a("s_lshl_b32 s20, 1, s20")
        a("s_mov_b64 exec, 1")
        a("v_mov_b32 v2, 0")
        a("v_mov_b32 v4, s20")
        a("buffer_atomic_or v4, v2, s[24:27], 0 offen offset:4 sc1")
        a("s_not_b32 s20, s64")
        a("v_mov_b32 v5, s20")
        a("buffer_atomic_umax v5, v2, s[24:27], 0 offen offset:8 sc1")
        for i, sl in enumerate((0, 3, 4, 5, 8, 9, 10, 11, 13) if DBG_A[0] else (3, 5, 8, 13)):
            a(f"v_mov_b32 v{6+i}, s{64+sl}")
            a(f"buffer_atomic_umax v{6+i}, v2, s[24:27], 0 offen offset:{(12 if DBG_A[0] else 48) + 4*i} sc1")
        DBG_A[0] = False
        a("s_mov_b64 exec, -1")
        return
    a("s_memtime s[94:95]")
    stamp(a, NSTAMP - 1)
    a("s_mov_b32 s79, s94")
    a("v_lshrrev_b32 v2, 6, v0")
    a("v_lshlrev_b32 v2, 6, v2")
    a("s_lshl_b32 s20, s2, 10")
    a(f"s_add_u32 s20, s20, {WS_PROF}")
    a("s_mov_b64 exec, 1")
    for i in range(0, 16, 2):
        a(f"v_mov_b32 v4, s{64+i}")
        a(f"v_mov_b32 v5, s{65+i}")
        a(f"buffer_store_dwordx2 v[4:5], v2, s[12:15], s20 offen offset:{4*i}")
        a("s_nop 1")
    a("s_mov_b64 exec, -1")


P_X, P_WQKV, P_WO, P_BX, P_W1, P_B1, P_W2, P_B2, P_GATE, P_OUT, P_DBG, P_WS = [40 + 2 * i for i in range(12)]


def half_max(a, v, t):
    for sh in (8, 4, 2, 1):
        a("s_nop 1")
        a(f"v_max_f32_dpp v{v}, v{v}, v{v} row_ror:{sh} row_mask:0xf bank_mask:0xf")
    a("s_nop 0")
    a(f"v_mov_b32 v{t}, v{v}")
    a("s_nop 1")
    a(f"v_permlane16_swap_b32 v{v}, v{t}")
    a("s_nop 1")
    a(f"v_max_f32 v{v}, v{v}, v{t}")


def wave_max(a, v, t):
    half_max(a, v, t)
    a(f"v_mov_b32 v{t}, v{v}")
    a("s_nop 1")
    a(f"v_permlane32_swap_b32 v{v}, v{t}")
    a("s_nop 1")
    a(f"v_max_f32 v{v}, v{v}, v{t}")


def poll_global(a, name, voff, srdn, soff, want, vtmp, sleep, first_loaded=False, two=False):
    a("s_mov_b32 s96, 0")
    if first_loaded:
        a(f"s_branch {name}_chk")
    a.label(f"{name}_ld")
    if two:
        a(f"buffer_load_dwordx2 v[{vtmp}:{vtmp+1}], v{voff}, s[{srdn}:{srdn+3}], {soff} offen sc1")
        a("s_waitcnt vmcnt(0)")
        a(f"v_and_b32 v{vtmp}, v{vtmp}, v{vtmp+1}")
    else:
        a(f"buffer_load_dword v{vtmp}, v{voff}, s[{srdn}:{srdn+3}], {soff} offen sc1")
        a("s_waitcnt vmcnt(0)")
    a.label(f"{name}_chk")
    a(f"v_cmp_ne_u32 vcc, {want}, v{vtmp}")
    a("s_nop 4")
    a(f"s_cbranch_vccz {name}_ok")
    a("s_add_u32 s96, s96, 1")
    a(f"s_cmp_gt_u32 s96, {SPIN_MAX}")
    a(f"s_cbranch_scc1 {name}_ok")
    a(f"s_sleep {sleep}")
    a(f"s_branch {name}_ld")
    a.label(f"{name}_ok")


def poll_lds(a, name, vaddr, vtmp, cmp_instr, sleep=1):
    a("s_mov_b32 s97, 0")
    a.label(f"{name}_ld")
    a(f"ds_read_b32 v{vtmp}, v{vaddr}")
    a("s_waitcnt lgkmcnt(0)")
    a(f"v_readfirstlane_b32 s20, v{vtmp}")
    a("s_nop 3")
    a(cmp_instr)
    a(f"s_cbranch_scc1 {name}_ok")
    a("s_add_u32 s97, s97, 1")
    a(f"s_cmp_gt_u32 s97, {SPIN_MAX * 8}")
    a(f"s_cbranch_scc1 {name}_ok")
    a(f"s_sleep {sleep}")
    a(f"s_branch {name}_ld")
    a.label(f"{name}_ok")


def gen(a):
    a.raw(".p2align 8")
    a.label(f"{NAME}_kernel")
    a("s_cmp_ge_u32 s2, 256")
    a("s_cbranch_scc1 k_exit")
    init_stamps(a)
    if os.environ.get("SCR"):
        if os.environ["SCR"] == "1":
            a("s_and_b32 s20, s2, 7")
            a("s_lshl_b32 s20, s20, 5")
            a("s_lshr_b32 s2, s2, 3")
            a("s_or_b32 s2, s2, s20")
        else:
            a("s_lshr_b32 s20, s2, 3")
            a("s_lshr_b32 s21, s2, 5")
            a("s_xor_b32 s20, s20, s21")
            a("s_and_b32 s20, s20, 7")
            a("s_xor_b32 s2, s2, s20")
    a("s_load_dwordx16 s[40:55], s[0:1], 0")
    a("s_load_dwordx8 s[56:63], s[0:1], 64")
    a("v_and_b32 v1, 63, v0                    ; lane")
    a("v_lshrrev_b32 v2, 6, v0                 ; wave")
    a("s_and_b32 s28, s2, 7")
    a("v_readfirstlane_b32 s30, v2")
    a("s_lshr_b32 s29, s2, 3                   ; idx")
    a("v_lshlrev_b32 v3, 4, v1                 ; lane*16")
    a("s_and_b32 s20, s28, 1")
    a("s_lshl_b32 s20, s20, 3")
    a("s_and_b32 s21, s29, 7")
    a("s_add_u32 s31, s20, s21                 ; rg")
    a("s_lshr_b32 s20, s28, 1")
    a("s_lshl_b32 s20, s20, 2")
    a("s_lshr_b32 s22, s29, 3")
    a("s_add_u32 s32, s20, s22")
    a("s_lshl_b32 s22, s22, 1")
    a("s_add_u32 s33, s21, s22")
    a("s_and_b32 s33, s33, 7                   ; rot")
    a("s_waitcnt lgkmcnt(0)")
    stamp(a, 1)
    srd(a, 12, P_WS, WS_SIZE)
    srd(a, 24, P_DBG, 256)
    a("s_cmp_ge_u32 s30, 4")
    a("s_cbranch_scc1 k_g")
    gen_a(a)
    a.label("k_g")
    gen_g(a)
    a.label("k_exit")
    a("s_endpgm")


def gen_a(a):
    srd(a, 4, P_X, 2097152)
    srd(a, 8, P_WQKV, 1572864)
    srd(a, 16, P_W1, 1835008)
    a("v_lshrrev_b32 v8, 3, v1")
    a("v_lshrrev_b32 v5, 1, v8")
    a("s_and_b32 s20, s30, 1")
    a("s_lshl_b32 s20, s20, 2")
    a("v_add_u32 v5, s20, v5")
    a("v_and_b32 v6, 7, v1")
    a("v_xor_b32 v5, v5, v6")
    a("v_lshlrev_b32 v5, 4, v5")
    a("v_lshl_add_u32 v4, v8, 10, v5")
    a("v_lshrrev_b32 v8, 2, v1")
    a("v_and_b32 v9, 3, v1")
    a("v_lshlrev_b32 v9, 4, v9")
    a("v_mul_u32_u24 v5, 3072, v8")
    a("v_add_u32 v5, v5, v9")
    a("v_mul_u32_u24 v6, 3584, v8")
    a("v_add_u32 v6, v6, v9")
    a("s_lshl_b32 s34, s31, 17")
    a("s_lshl_b32 s20, s30, 13")
    a("s_add_u32 s34, s34, s20")
    a(f"s_mul_i32 s35, s30, {16*3072}")
    a("s_lshl_b32 s20, s32, 6")
    a("s_add_u32 s37, s35, s20                  ; q pair j")
    a("s_lshr_b32 s20, s32, 1")
    a("s_lshl_b32 s20, s20, 7")
    a("s_add_u32 s35, s35, s20")
    a("s_and_b32 s20, s32, 1")
    a("s_add_u32 s20, s20, 1")
    a("s_lshl_b32 s20, s20, 10")
    a("s_add_u32 s35, s35, s20")
    a(f"s_mul_i32 s36, s30, {16*3584}")
    a("s_lshl_b32 s20, s32, 8")
    a("s_add_u32 s36, s36, s20")
    a("s_lshl_b32 s38, s30, 10")

    srd(a, 80, P_B1, 3584)
    a("v_lshlrev_b32 v10, 2, v1                 ; lane*4")
    a("s_lshl_b32 s39, s32, 8")
    vm = VM()

    def issue(m):
        if m == "b":
            a(f"s_mov_b32 m0, {L_BIAS}")
            a("s_nop 0")
            a("buffer_load_dword v10, s[80:83], s39 offen lds")
            vm.op("b")
            return
        if m == "c":
            a("buffer_load_dword v7, v9, s[24:27], 0 offen sc1")
            vm.op("c")
            return
        a(f"s_add_u32 s21, s33, {m & 7}")
        a("s_and_b32 s21, s21, 7                    ; kc")
        if m < 8:
            st = (m % 5) * STG
            a("s_lshl_b32 s22, s21, 7")
            a("s_add_u32 s22, s22, s34")
            a(f"s_mul_i32 s23, s21, {64*3072}")
            for kind, i in (("x", 0), ("w", 0), ("w", 1), ("x", 1), ("x", 2), ("w", 2), ("x", 3)):
                if kind == "x":
                    a(f"s_add_u32 m0, s38, {st + i*4096}")
                    a(f"s_add_u32 s20, s22, {i*32768}")
                    a("buffer_load_dwordx4 v4, s[4:7], s20 offen lds")
                else:
                    a(f"s_add_u32 m0, s38, {st + 16384 + i*4096 - (64 if i == 1 else 0)}")
                    a(f"s_add_u32 s20, s23, s{37 if i == 2 else 35}")
                    a(f"buffer_load_dwordx4 v5, s[8:11], s20 offen{' offset:64' if i == 1 else ''} lds")
            vm.op(m, 7)
        else:
            a(f"s_mul_i32 s23, s21, {64*3584}")
            a("s_add_u32 s23, s23, s36")
            for i in range(3 if m == 15 else 4):
                a(f"s_add_u32 m0, s38, {W1_PAGES[m][i]*4096}")
                a(f"s_add_u32 s20, s23, {i*64}")
                a("buffer_load_dwordx4 v6, s[16:19], s20 offen lds")
                vm.op(m)

    def sched(last, tag):
        short = tag == "s"
        ok = lambda m: not (short and (m == "b" or (m != "c" and m >= 8)))
        for n in range(last + 1):
            vm.wait(a, *NEED.get(n, (n,)))
            if n == 8:
                poll_global(a, f"a_ctr{tag}", 9, 24, "0", NRESET, 7, 8, first_loaded=True)
            if n < 11: stamp(a, 2 + n, 2)
            a("s_barrier")
            if n == 0: stamp(a, 3)
            if n == 8: stamp(a, 4)
            for m in PLAN.get(n, []):
                if ok(m):
                    issue(m)
            if n == WARM2:
                for i in range(3):
                    a(f"s_add_u32 s87, s86, {i*16384}")
                    a("s_min_u32 s87, s87, k_exit - k_pc")
                    a(f"s_load_dword s{88+i}, s[84:85], s87")

    a("s_getpc_b64 s[84:85]")
    a.label("k_pc")
    a("s_lshl_b32 s86, s29, 2")
    a("s_add_u32 s86, s86, s30")
    a("s_lshl_b32 s86, s86, 7")
    a("v_mov_b32 v9, 0")
    for m in PLAN[-1]:
        issue(m)
    stamp(a, 2)
    q0 = list(vm.q)
    a("s_cmp_ge_u32 s32, 14")
    a("s_cbranch_scc1 a_short")
    sched(8, "l")
    a(f"v_mov_b32 v4, {L_FLAGS}")
    a("v_mov_b32 v6, 1")
    a("s_mov_b64 exec, 1")
    stamp(a, 2, 4)
    vm.wait(a, 10, 11, 12)
    stamp(a, 3, 4)
    a(f"ds_add_u32 v4, v6 offset:{F_W1}")
    a("s_waitcnt vmcnt(0)")
    a(f"ds_add_u32 v4, v6 offset:{F_W1B}")
    a("s_mov_b64 exec, -1")
    a("s_branch a_p1done")
    a.label("a_short")
    vm.q = list(q0)
    sched(8, "s")
    a.label("a_p1done")
    stamp(a, 5)
    stamp(a, 4, 4)
    a("s_lshl_b32 s31, s28, 2")
    a("s_lshr_b32 s20, s29, 3")
    a("s_add_u32 s31, s31, s20                  ; h")
    a("s_and_b32 s32, s29, 7                    ; q chunk")
    a("s_lshl_b32 s33, s32, 2")
    a("s_add_u32 s33, s33, s30                  ; rb = 4c + w")
    a("s_lshl_b32 s21, s32, 1")
    a("s_add_u32 s21, s21, s30")
    a("s_and_b32 s21, s21, 15")
    a("s_lshl_b32 s24, s21, 7")
    a("s_lshl_b32 s21, s21, 12")
    a("s_lshl_b32 s22, s31, 17")
    a(f"s_add_u32 s22, s22, {WS_KV}")
    a("s_add_u32 s22, s21, s22")
    QA, QB, NMA, NMB, SA, SB, P, OA, OB = 8, 12, 16, 32, 48, 64, 80, 88, 104
    K0, K1, V0, V1 = 120, 124, 128, 136
    KA, KB, KAN, VA, VB, VAN, KL, VL = 144, 145, 146, 147, 148, 149, 150, 151
    a("s_lshr_b32 s27, s30, 1")
    a("s_cmp_eq_u32 s27, 0")
    a("s_mov_b32 s26, 0x76521034")
    a("s_cselect_b32 s26, 0x76521043, s26")
    a("s_lshl_b32 s27, s27, 2")
    a("s_and_b32 s5, s30, 1")
    a("s_lshl_b32 s5, s5, 13")
    a(f"s_add_u32 s4, s30, 6")
    a("s_lshl_b32 s4, s4, 13")
    def slot_base(dst):
        a(f"s_lshr_b32 s{dst}, s26, s25")
        a(f"s_and_b32 s{dst}, s{dst}, 7")
        a(f"s_lshl_b32 s{dst}, s{dst}, 14")
        a("s_add_u32 s25, s25, 4")
        a("s_and_b32 s25, s25, 31")
    a("v_and_b32 v6, 31, v1                     ; m")
    a("v_and_b32 v7, 27, v1                     ; m & ~4")
    a("v_cmp_eq_u32 vcc, 16, v7")
    a("v_mov_b32 v4, 0x3f803f80")
    a("s_nop 0")
    a("v_cndmask_b32 v4, 0, v4, vcc")
    for r in range(V0, V0 + 16):
        a(f"v_mov_b32 v{r}, v4")
    a("v_lshrrev_b32 v7, 5, v1")
    a("v_lshlrev_b32 v7, 8, v7")
    a("v_lshl_add_u32 v7, v6, 4, v7")
    a(f"v_add_u32 v{VL}, 0x1000, v7")
    a(f"v_add_u32 v{VL}, s5, v{VL}")
    a(f"v_add_u32 v{KL}, s5, v3")
    a("s_mov_b32 s34, 0xffff")
    a("s_mov_b32 s35, 0xffff")
    a("s_mov_b32 s36, 0")
    a("v_lshlrev_b32 v4, 6, v1")
    a("v_add_u32 v4, s24, v4")
    a("v_and_b32 v5, 1, v1")
    a("v_lshlrev_b32 v5, 6, v5")
    a("s_lshr_b32 s20, s33, 1")
    a("s_lshl_b32 s20, s20, 7")
    a("v_add_u32 v5, s20, v5")
    a("v_cmp_gt_u32 vcc, 2, v1")
    a("s_lshr_b32 s38, s31, 2")
    a("v_cndmask_b32 v4, v5, v4, vcc")
    a("s_lshl_b32 s38, s38, 11")
    a(f"s_add_u32 s38, s38, {WS_FKV}")
    a(f"v_mov_b32 v7, {L_FLAGS + F_ST}")
    poll_lds(a, "a_st", 7, 5, "s_cmp_ge_u32 s20, 4", sleep=2)
    stamp(a, 12)
    stamp(a, 5, 4)
    if PDELAY:
        a(f"s_sleep {PDELAY}")
    poll_global(a, "a_kv", 4, 12, "s38", 1, 6, PSLEEP)
    stamp(a, 6)
    stamp(a, 6, 4)
    a("s_lshl_b32 s20, s31, 5")
    a("s_add_u32 s20, s20, s33")
    a("s_lshl_b32 s20, s20, 11")
    a(f"s_add_u32 s20, s20, {WS_QF}")
    a(f"buffer_load_dwordx4 {vr(QA, 4)}, v3, s[12:15], s20 offen sc1")
    a(f"buffer_load_dwordx4 {vr(QB, 4)}, v3, s[12:15], s20 offen offset:1024 sc1")
    a(f"buffer_load_dwordx4 {vr(K0, 4)}, v3, s[12:15], s22 offen sc1")
    stamp(a, 7)
    for part in range(2):
        a(f"s_add_u32 m0, s4, {part * 4096}")
        a(f"s_add_u32 s20, s22, {part * 65536}")
        for i in range(4):
            a(f"buffer_load_dwordx4 v3, s[12:15], s20 offen offset:{i*1024} sc1 lds")
    a("s_waitcnt vmcnt(8)")
    stamp(a, 7, 4)
    a(f"{MFMA} {vr(SA, 16)}, {vr(K0, 4)}, {vr(QA, 4)}, 0")
    a(f"{MFMA} {vr(SB, 16)}, {vr(K0, 4)}, {vr(QB, 4)}, 0")
    a(f"v_mov_b32 v5, {f32(-3.0e38)}")
    a(f"v_mov_b32 v6, {f32(-3.0e38)}")
    a("s_nop 15")
    def rowmax_step():
        for r in range(0, 16, 2):
            a(f"v_max3_f32 v5, v5, v{SA+r}, v{SA+r+1}")
        for r in range(0, 16, 2):
            a(f"v_max3_f32 v6, v6, v{SB+r}, v{SB+r+1}")
    def rowmax_fin():
        for v, NM in ((5, NMA), (6, NMB)):
            a(f"v_mov_b32 v7, v{v}")
            a("s_nop 1")
            a(f"v_permlane32_swap_b32 v{v}, v7")
            a("s_nop 1")
            a(f"v_max_f32 v{v}, v{v}, v7")
            a(f"v_sub_f32 v{v}, 0, v{v}")
            for r in range(16):
                a(f"v_mov_b32 v{NM+r}, v{v}")
    rowmax_step()
    rowmax_fin()
    a("s_mov_b32 s38, 3")
    a(f"s_add_u32 s20, s27, {L_FLAGS + F_KVL}")
    a("v_mov_b32 v4, s20")
    a("v_mov_b32 v6, 1")
    stamp(a, 8, 4)
    a("s_waitcnt vmcnt(0)")
    stamp(a, 9, 4)
    a("s_mov_b64 exec, 1")
    a("ds_add_u32 v4, v6")
    a("s_mov_b64 exec, -1")

    if os.environ.get("APRIO"): a(f"s_setprio {os.environ['APRIO']}")
    a.label("a_start")
    stamp(a, 8)
    for r in range(32):
        a(f"v_mov_b32 v{OA+r}, 0")
    for r in range(4, 8):
        a(f"v_mov_b32 v{P+r}, 0")
    a("s_mov_b32 s37, 0")

    def next_addrs():
        a(f"v_xor_b32 v{KB}, 0x2000, v{KA}")
        a(f"v_xor_b32 v{VB}, 0x2000, v{VA}")
        slot_base(8)
        a(f"v_add_u32 v{KAN}, s8, v{KL}")
        a(f"v_add_u32 v{VAN}, s8, v{VL}")
    a("s_mov_b32 s25, 0")
    slot_base(8)
    a(f"v_add_u32 v{KA}, s8, v{KL}")
    a(f"v_add_u32 v{VA}, s8, v{VL}")
    next_addrs()
    Kb = [K0, K1]
    Vb = [V0, V1]
    a(f"ds_read_b128 {vr(K0, 4)}, v{KA}")
    a(f"ds_read_b128 {vr(K1, 4)}, v{KA} offset:1024")
    a("s_mov_b64 exec, s[34:35]")
    a(f"ds_read_b128 {vr(V0, 4)}, v{VA}")
    a(f"ds_read_b128 {vr(V0+4, 4)}, v{VA} offset:512")
    a(f"ds_read_b128 {vr(V1+4, 4)}, v{VA} offset:512")
    a("s_mov_b64 exec, -1")
    a("s_waitcnt lgkmcnt(0)")
    a(f"{MFMA} {vr(SA, 16)}, {vr(K0, 4)}, {vr(QA, 4)}, {vr(NMA, 16)}")
    a("s_nop 7")
    a("s_nop 3")
    SPECIAL = (2, 6)
    a("s_bitcmp1_b32 s38, s37")
    a.raw(".p2align 6")
    a.label("a_loop")
    for u in range(8):
        cur, nxt = u & 1, (u + 1) & 1
        if u in SPECIAL:
            a(f"s_cbranch_scc1 a_sp{u}")
            a.label(f"a_back{u}")
        kread = f"ds_read_b128 {vr(Kb[cur], 4)}, v{(KA, KB, KAN)[(u+2) >> 2]} offset:{((u+2) & 3)*1024}"
        va, vo = (VA, VB, VAN)[(u + 1) >> 2], ((u + 1) & 3) * 1024
        for ph in range(2):
            S = (SA, SB)[ph]
            e = lambda r: a(f"v_exp_f32 v{S+r}, v{S+r}")
            c = lambda j: a(f"v_cvt_pk_bf16_f32 v{P+j}, v{S+2*j}, v{S+2*j+1}")
            if ph == 0:
                a(f"{MFMA} {vr(SB, 16)}, {vr(Kb[cur], 4)}, {vr(QB, 4)}, {vr(NMB, 16)}")
                a(kread)
                for r in range(5): e(r)
                a(f"{MFMA} {vr(OB, 16)}, {vr(Vb[nxt]+4, 4)}, {vr(P+4, 4)}, {vr(OB, 16)}")
                a("s_mov_b64 exec, s[34:35]")
                a(f"ds_read_b128 {vr(Vb[nxt], 4)}, v{va} offset:{vo}")
                a(f"ds_read_b128 {vr(Vb[nxt]+4, 4)}, v{va} offset:{vo+512}")
                a("s_mov_b64 exec, -1")
                for r in range(5, 8): e(r)
                for j in range(4): c(j)
                e(8); e(9)
                a("s_waitcnt lgkmcnt(3)")
                a(f"{MFMA} {vr(OA, 16)}, {vr(Vb[cur], 4)}, {vr(P, 4)}, {vr(OA, 16)}")
                for r in range(10, 16): e(r)
                for j in range(4, 8): c(j)
            else:
                a(f"{MFMA} {vr(SA, 16)}, {vr(Kb[nxt], 4)}, {vr(QA, 4)}, {vr(NMA, 16)}")
                for r in range(5): e(r)
                a(f"{MFMA} {vr(OA, 16)}, {vr(Vb[cur]+4, 4)}, {vr(P+4, 4)}, {vr(OA, 16)}")
                for r in range(5, 8): e(r)
                for j in range(4): c(j)
                e(8); e(9)
                a(f"{MFMA} {vr(OB, 16)}, {vr(Vb[cur], 4)}, {vr(P, 4)}, {vr(OB, 16)}")
                for r in range(10, 16): e(r)
                for j in range(4, 8): c(j)
                if u == 7:
                    a(f"v_mov_b32 v{KA}, v{KAN}")
                    a(f"v_mov_b32 v{VA}, v{VAN}")
    next_addrs()
    a("s_add_u32 s37, s37, 1")
    a("s_cmp_ge_u32 s37, 8")
    a("s_cbranch_scc1 a_loopend")
    a("s_bitcmp1_b32 s38, s37")
    a("s_branch a_loop")
    a.label("a_sp2")
    a("s_cmp_lg_u32 s37, 0")
    a("s_cbranch_scc1 a_back2")
    a(f"s_add_u32 s20, s27, {L_FLAGS + F_KVL}")
    a("v_mov_b32 v4, s20")
    stamp(a, 10, 4)
    poll_lds(a, "a_pair", 4, 5, "s_cmp_ge_u32 s20, 2")
    stamp(a, 11, 4)
    a("s_cmp_eq_u32 s37, s37                    ; scc = 1")
    a("s_branch a_back2")
    a.label("a_sp6")
    a("s_xor_b32 s20, s27, 4")
    a(f"s_add_u32 s20, s20, {F_KVL}")
    a("s_cmp_eq_u32 s37, 0")
    a(f"s_cselect_b32 s20, s20, {F_KVS}")
    a(f"s_cselect_b32 s21, 2, 4")
    a(f"s_add_u32 s20, s20, {L_FLAGS}")
    a("v_mov_b32 v4, s20")
    poll_lds(a, "a_all", 4, 5, "s_cmp_ge_u32 s20, s21")
    if PROF == 1:
        a("s_mov_b32 s73, s74")
        stamp(a, 10)
    a("s_branch a_back6")
    a.label("a_loopend")
    a(f"{MFMA} {vr(OB, 16)}, {vr(Vb[1]+4, 4)}, {vr(P+4, 4)}, {vr(OB, 16)}")
    stamp(a, 11)
    stamp(a, 2, 3)
    a("s_waitcnt lgkmcnt(0)")
    a("s_lshl_b32 s20, s33, 6")
    a("s_add_u32 s20, s20, s31")
    a("s_lshl_b32 s20, s20, 10")
    a(f"s_add_u32 s20, s20, {WS_OF}")
    a(f"s_add_u32 s21, s20, {32*1024}")
    a("s_nop 8")
    a("s_cmp_lg_u32 s36, 0")
    a("s_cbranch_scc1 a_fin")
    a(f"v_add_f32 v7, v{OA+8}, v{OB+8}")
    a(f"v_cmp_nge_f32 vcc, {f32(2.0**60)}, v7")
    a("s_nop 4")
    a("s_cbranch_vccz a_fin")
    a("s_mov_b32 s36, 1")
    a("s_mov_b32 s38, 0")
    a(f"v_mov_b32 v5, {f32(-3.0e38)}")
    a(f"v_mov_b32 v6, {f32(-3.0e38)}")
    a("s_mov_b32 s37, 0")
    a.label("a_mx")
    a("s_lshr_b32 s20, s37, 2")
    a("s_lshl_b32 s20, s20, 13")
    a("s_and_b32 s21, s37, 3")
    a("s_lshl_b32 s21, s21, 10")
    a("s_add_u32 s20, s20, s21")
    a("v_add_u32 v4, s20, v3")
    a(f"ds_read_b128 {vr(K0, 4)}, v4")
    a("s_waitcnt lgkmcnt(0)")
    a(f"{MFMA} {vr(SA, 16)}, {vr(K0, 4)}, {vr(QA, 4)}, 0")
    a(f"{MFMA} {vr(SB, 16)}, {vr(K0, 4)}, {vr(QB, 4)}, 0")
    a("s_nop 15")
    rowmax_step()
    a("s_add_u32 s37, s37, 1")
    a("s_cmp_lt_u32 s37, 64")
    a("s_cbranch_scc1 a_mx")
    rowmax_fin()
    a("s_branch a_start")
    a.label("a_fin")
    for i, O in enumerate((OA, OB)):
        a(f"v_rcp_f32 v6, v{O+8}")
        a("s_nop 0")
        for r in range(8):
            a(f"v_mul_f32 v{O+r}, v{O+r}, v6")
        for j in range(4):
            a(f"v_cvt_pk_bf16_f32 v{P+4*i+j}, v{O+2*j}, v{O+2*j+1}")
        for j in range(4):
            a(f"v_min_u32 v{P+4*i+j}, 0xfffeffff, v{P+4*i+j}")
        a(f"buffer_store_dwordx4 {vr(P+4*i, 4)}, v3, s[12:15], s{20+i} offen sc1")
    a(f"v_mov_b32 v4, {L_FLAGS + 48}")
    a("v_mov_b32 v6, 1")
    a("s_mov_b64 exec, 1")
    a("ds_add_u32 v4, v6")
    a("s_mov_b64 exec, -1")
    a("s_waitcnt lgkmcnt(0)")
    if PROF == 3:
        stamp(a, 3, 3)
        a("s_waitcnt vmcnt(0)")
    dump_stamps(a)
    a("s_endpgm")


def gen_g(a):
    a("s_sub_u32 s30, s30, 4                    ; g")
    a("s_lshl_b32 s34, s31, 2")
    a("s_add_u32 s34, s34, s30")
    a("v_lshlrev_b32 v4, 2, v1")
    a(f"v_add_u32 v4, {L_FLAGS}, v4")
    a("v_mov_b32 v5, 0")
    a("ds_write_b32 v4, v5")
    X = 128
    ACC = 64
    WA, WB = 32, 48
    for r in range(4):
        a(f"v_mov_b32 v{WA+r}, -1")
    a("s_lshl_b32 s20, s34, 5")
    a("s_lshl_b32 s21, s32, 1")
    a("s_add_u32 s20, s20, s21")
    a("s_lshl_b32 s20, s20, 10")
    a(f"s_add_u32 s20, s20, {WS_OF}")
    if not os.environ.get("NOSENT"):
        a(f"buffer_store_dwordx4 {vr(WA, 4)}, v3, s[12:15], s20 offen sc1")
        a(f"buffer_store_dwordx4 {vr(WA, 4)}, v3, s[12:15], s20 offen offset:1024 sc1")
    a("s_cmp_ge_u32 s2, 8")
    a("s_cbranch_scc1 g_noreset")
    for r in range(4):
        a(f"v_mov_b32 v{WB+r}, 0")
    a("s_lshl_b32 s20, s2, 2")
    a("s_add_u32 s20, s20, s30")
    a("s_lshl_b32 s20, s20, 10")
    a(f"s_add_u32 s20, s20, {WS_FL}")
    a(f"buffer_store_dwordx4 {vr(WB, 4)}, v3, s[12:15], s20 offen sc1")
    a.label("g_noreset")
    a("v_and_b32 v5, 31, v1                     ; t")
    a("v_lshrrev_b32 v6, 5, v1                  ; hh")
    a("v_bfe_u32 v7, v1, 1, 3")
    a("s_lshl_b32 s20, s30, 12")
    a("v_lshl_add_u32 v12, v5, 7, s20")
    for s in range(4):
        a(f"v_add_u32 v13, {2*s}, v6")
        a("v_xor_b32 v13, v13, v7")
        a(f"v_lshl_add_u32 v{8+s}, v13, 4, v12")
    a("v_bfe_u32 v13, v1, 4, 1")
    a("v_lshlrev_b32 v13, 5, v13")
    a("v_and_b32 v14, 3, v1")
    a("v_lshl_add_u32 v13, v14, 3, v13          ; colhalf*32 + c4*8")
    a("v_bfe_u32 v14, v1, 2, 2                  ; r")
    a("v_lshl_add_u32 v13, v14, 6, v13          ; + r*64")
    a("v_lshl_add_u32 v12, v6, 9, v13")
    a("v_lshl_add_u32 v14, v6, 8, v13")
    for r in range(ACC, ACC + 48):
        a(f"v_mov_b32 v{r}, 0")

    for s_ in range(4):
        a(f"v_add_u32 v{24+s_}, {3*STG}, v{8+s_}")
    a("v_add_u32 v28, 0x10000, v12")
    a("v_add_u32 v29, 0x20000, v12")

    lk = VM("lgkmcnt", 15)

    def stream(first, last, ncb, D, xfirst, bars, hook=None):
        items = [(n, s, c) for n in range(first, last + 1) for s in range(4) for c in range(ncb)]
        def R(k):
            n, s, c = items[k]
            if s == 0 and c == 0 and n in bars:
                a("s_barrier")
                if PROF == 2 and bars[n] is not None:
                    stamp(a, bars[n], 2)
                    lk.clear()
            if n < 8:
                st = n % 5
                page = 7 * st + 4 + c
                if c == 0:
                    xb, xo = (8 + s, st * STG) if st < 3 else (24 + s, (st - 3) * STG)
                    a(f"ds_read_b128 {vr(X + 16*n + 4*s, 4)}, v{xb} offset:{xo}")
                    lk.op(k)
            else:
                page = W1_PAGES[n][c]
            b = (12, 28, 29)[page >> 4]
            o = (page & 15) * 4096 + s * 1024
            w = WA + 4 * (k % 8)
            a(f"ds_read_b64_tr_b16 {vr(w, 2)}, v{b} offset:{o}")
            a(f"ds_read_b64_tr_b16 {vr(w+2, 2)}, v{b} offset:{o + 256}")
            lk.op(k, 2)
            assert len(lk.q) <= 15
        for k in range(D):
            R(k)
        for k, (n, s, c) in enumerate(items):
            lk.wait(a, k)
            xf = vr(X + 16 * (n & 7) + 4 * s, 4)
            w = vr(WA + 4 * (k % 8), 4)
            d = vr(ACC + 16 * c, 16)
            if xfirst(c):
                a(f"{MFMA} {d}, {xf}, {w}, {d}")
            else:
                a(f"{MFMA} {d}, {w}, {xf}, {d}")
            if k + D < len(items):
                R(k + D)
            if hook:
                hook(n, s, c)

    def pack(b):
        for j in range(8):
            a(f"v_cvt_pk_bf16_f32 v{b+j}, v{b+2*j}, v{b+2*j+1}")

    BI = 32
    def bias_reads():
        for c in range(4):
            for q in range(0, 4, 2):
                d = BI + 2 * (c * 4 + q)
                a(f"ds_read2_b64 {vr(d, 4)}, v15 offset0:{(c*64 + q*16)//8} offset1:{(c*64 + q*16 + 16)//8}")

    a(f"v_lshlrev_b32 v15, 3, v6")
    a(f"v_add_u32 v15, {L_BIAS}, v15")
    a("v_mov_b32 v16, 0")
    a("v_mov_b32 v22, 1")
    a("s_lshr_b32 s35, s32, 1")
    a("s_lshl_b32 s35, s35, 2")
    a("s_lshl_b32 s38, s35, 7")
    a("s_add_u32 s38, s38, s34")
    a("s_lshl_b32 s38, s38, 10")
    a(f"s_add_u32 s38, s38, {WS_KV}")
    TOUCH = os.environ.get("TOUCH", "0")
    def touch(tag):
        a("v_lshlrev_b32 v30, 20, v1")
        a("s_cmp_eq_u32 s30, 0")
        a(f"s_cbranch_scc0 g_t1{tag}")
        a("s_mov_b64 exec, 0xffff")
        a("buffer_load_dword v23, v30, s[12:15], 0 offen")
        a("s_mov_b64 exec, -1")
        a.label(f"g_t1{tag}")
        a("s_cmp_eq_u32 s30, 1")
        a(f"s_cbranch_scc0 g_t2{tag}")
        a("s_mov_b64 exec, 3")
        a("buffer_load_dword v23, v30, s[4:7], 0 offen")
        a("buffer_load_dword v23, v30, s[8:11], 0 offen")
        a("s_mov_b64 exec, -1")
        a.label(f"g_t2{tag}")
        a("s_cmp_eq_u32 s30, 2")
        a(f"s_cbranch_scc0 g_t3{tag}")
        a("s_mov_b64 exec, 3")
        a("buffer_load_dword v23, v30, s[16:19], 0 offen")
        a("buffer_load_dword v23, v30, s[80:83], 0 offen")
        a("s_mov_b64 exec, -1")
        a.label(f"g_t3{tag}")
    srd(a, 4, P_W2, 1835008)
    srd(a, 8, P_WO, 524288)
    srd(a, 16, P_B2, 1024)
    srd(a, 80, P_OUT, 2097152)
    if TOUCH == "1":
        touch("a")
    if TOUCH == "3":
        srd(a, 84, P_B1, 3584)
        a("s_cmp_eq_u32 s30, 3")
        a("s_cbranch_scc0 g_t4")
        a("s_mov_b64 exec, 1")
        a("buffer_load_dword v23, v16, s[84:87], 0 offen")
        a("buffer_load_dword v23, v16, s[24:27], 0 offen offset:128")
        a("s_mov_b64 exec, -1")
        a.label("g_t4")
    a(f"v_mov_b32 v17, {L_FLAGS}")
    a("s_waitcnt lgkmcnt(0)")
    bars = {n: 2 + n for n in range(8)}
    def thook(tag):
        def h(n, s, c):
            if TOUCH == "2" and (n, s, c) == (1, 0, 0):
                touch(tag)
            if (n, s, c) == (0, 1, 0):
                a("s_cmp_ge_u32 s2, 8")
                a(f"s_cbranch_scc1 g_nocnt{tag}")
                a("s_waitcnt vmcnt(0)")
                a("s_mov_b64 exec, 1")
                a("buffer_atomic_add v22, v16, s[24:27], 0 offen sc1")
                a("s_mov_b64 exec, -1")
                a.label(f"g_nocnt{tag}")
        return h
    a("s_bitcmp1_b32 s32, 0")
    a("s_cbranch_scc1 g_vpath")
    stream(0, 7, 3, 6, lambda c: False, bars, thook("k"))
    stamp(a, 3)
    a("s_nop 7")
    for c in range(2):
        bk = ACC + 16 * c
        pack(bk)
        for u in range(2):
            a(f"s_add_u32 s20, s38, {(2*c + u) * 131072}")
            a(f"buffer_store_dwordx4 {vr(bk+4*u, 4)}, v3, s[12:15], s20 offen sc1")
    a("s_branch g_qpath")
    a.label("g_vpath")
    lk.clear()
    stream(0, 7, 3, 6, lambda c: c < 2, bars, thook("v"))
    stamp(a, 3)
    a("s_nop 7")
    a("v_bfe_u32 v20, v1, 4, 1")
    a("v_lshlrev_b32 v20, 17, v20")
    a("v_lshl_add_u32 v20, v6, 8, v20")
    a("v_and_b32 v21, 15, v1")
    a("v_lshl_add_u32 v20, v21, 4, v20")
    for c in range(2):
        bv = ACC + 16 * c
        pack(bv)
        a(f"s_add_u32 s20, s38, {65536 + 2*c*131072}")
        a(f"buffer_store_dwordx4 {vr(bv, 4)}, v20, s[12:15], s20 offen sc1")
        a(f"buffer_store_dwordx4 {vr(bv+4, 4)}, v20, s[12:15], s20 offen offset:512 sc1")
    a.label("g_qpath")
    bq = ACC + 32
    a(f"s_mov_b32 s36, {f32(QSCALE)}")
    for r in range(16):
        a(f"v_mul_f32 v{bq+r}, s36, v{bq+r}")
    pack(bq)
    a("s_lshl_b32 s20, s32, 7")
    a("s_add_u32 s20, s20, s34")
    a("s_lshl_b32 s20, s20, 10")
    a(f"s_add_u32 s20, s20, {WS_QF}")
    a(f"s_add_u32 s21, s20, 65536")
    a(f"buffer_store_dwordx4 {vr(bq, 4)}, v3, s[12:15], s20 offen sc1")
    a(f"buffer_store_dwordx4 {vr(bq+4, 4)}, v3, s[12:15], s21 offen sc1")
    a("s_lshl_b32 s36, s31, 4")
    a("s_add_u32 s36, s36, s32")
    a("s_lshl_b32 s36, s36, 6")
    a(f"s_add_u32 s36, s36, {WS_FH}               ; FH[rg][j]")
    a("s_lshl_b32 s35, s35, 2                   ; quad*16")
    a("s_add_u32 s35, s35, s31")
    a("s_lshl_b32 s35, s35, 1")
    a("s_and_b32 s20, s32, 1")
    a("s_add_u32 s35, s35, s20")
    a("s_lshl_b32 s35, s35, 6")
    a(f"s_add_u32 s35, s35, {WS_FKV}              ; FKV[quad][rg][par]")
    stamp(a, 4)
    stamp(a, 2, 4)

    def send_flag(sreg, younger=0):
        a(f"s_waitcnt vmcnt({younger})")
        a("s_mov_b64 exec, 1")
        a(f"ds_add_rtn_u32 v18, v17, v22 offset:{F_ST}")
        a("s_waitcnt lgkmcnt(0)")
        a("v_cmp_eq_u32 vcc, 3, v18")
        a("s_nop 4")
        a("s_and_b64 exec, exec, vcc")
        lab = f"g_pub{len(a.lines)}"
        a(f"s_cbranch_execz {lab}")
        a(f"buffer_store_dword v22, v16, s[12:15], {sreg} offen sc1")
        a.label(lab)
        a("s_mov_b64 exec, -1")

    a("s_cmp_ge_u32 s32, 14")
    a("s_cbranch_scc1 g_noffn1")
    a("s_barrier                                ; B8")
    stamp(a, 10, 2)
    stamp(a, 3, 4)
    bias_reads()
    a("s_waitcnt lgkmcnt(0)                     ; bias")
    for c in range(4):
        for q in range(4):
            d = BI + 2 * (c * 4 + q)
            r = ACC + 16 * c + 4 * q
            a(f"v_lshlrev_b32 v{r}, 16, v{d}")
            a(f"v_and_b32 v{r+1}, 0xffff0000, v{d}")
            a(f"v_lshlrev_b32 v{r+2}, 16, v{d+1}")
            a(f"v_and_b32 v{r+3}, 0xffff0000, v{d+1}")
    a("s_mov_b32 s37, 0")
    a(f"s_setprio {GP0}")
    srd(a, 84, P_W1, 1835008)
    a("v_lshrrev_b32 v19, 2, v1")
    a("v_and_b32 v20, 3, v1")
    a("v_mul_u32_u24 v30, 3584, v19")
    a("v_lshl_add_u32 v30, v20, 4, v30")
    a(f"s_mul_i32 s39, s30, {16*3584}")
    a("s_lshl_b32 s20, s32, 8")
    a("s_add_u32 s39, s39, s20")
    a("s_lshl_b32 s88, s30, 10")
    lk.clear()
    def lds_signal(off):
        a("s_mov_b64 exec, 1")
        a(f"ds_add_u32 v17, v22 offset:{off}")
        a("s_mov_b64 exec, -1")
        lk.op("sig")
    dma = {45: (15, 3)}
    nl = [0]
    def hook(n, s, c):
        k = (n - 8) * 16 + s * 4 + c
        if k in dma:
            m, i = dma[k]
            if True:
                a(f"s_add_u32 s21, s33, {m & 7}")
                a("s_and_b32 s21, s21, 7")
                a(f"s_mul_i32 s89, s21, {64*3584}")
                a("s_add_u32 s89, s89, s39")
            a(f"s_add_u32 m0, s88, {W1_PAGES[m][i]*4096}")
            a(f"s_add_u32 s20, s89, {i*64}")
            a("buffer_load_dwordx4 v30, s[84:87], s20 offen lds")
            nl[0] += 1
        if k <= PUBK and k % 4 == 3:
            lab = f"g_fl{k}"
            a("s_cmp_eq_u32 s37, 0")
            a(f"s_cbranch_scc0 {lab}")
            if k < PUBK:
                a("s_getreg_b32 s20, hwreg(HW_REG_IB_STS)")
                a("s_lshr_b32 s21, s20, 18")
                a("s_and_b32 s21, s21, 0x30")
                a("s_and_b32 s20, s20, 15")
                a("s_or_b32 s20, s20, s21")
                a(f"s_cmp_le_u32 s20, {nl[0]}")
                a(f"s_cbranch_scc0 {lab}")
            send_flag("s35", nl[0])
            a("s_mov_b32 s37, 1")
            stamp(a, 5)
            a.label(lab)
        for ks, kc, off, cnt in ((-1, 24, F_W1, 0), (15, 44, F_C8, 0), (-1, 72, F_W1B, 0), (84, 100, F_W1C, 1)):
            if k == ks:
                if cnt:
                    a(f"s_waitcnt vmcnt({nl[0] - cnt})")
                lds_signal(off)
            if k == kc - 3:
                a(f"ds_read_b32 v20, v17 offset:{off}")
                lk.op("w1")
            if k == kc:
                lk.wait(a, "w1")
                a("v_readfirstlane_b32 s20, v20")
                a("s_nop 3")
                a("s_cmp_ge_u32 s20, 4")
                a(f"s_cbranch_scc1 g_w1ok{kc}")
                a(f"v_mov_b32 v19, {L_FLAGS + off}")
                poll_lds(a, f"g_w1{kc}", 19, 20, "s_cmp_ge_u32 s20, 4", sleep=1)
                a.label(f"g_w1ok{kc}")
        if PROF == 4 and k in P4:
            stamp(a, 4 + P4.index(k), 4)
            lk.clear()
    P4 = (0, 12, 23, 24, 48, 71, 72, 100, 127)
    PUBK = 43
    FD = 6
    assert 32 - FD > 24 and 80 - FD > 72 and 112 - FD > 100
    stream(8, 15, 4, FD, lambda c: False, {}, hook)
    stamp(a, 6)
    a(f"s_setprio {GP1}")
    a("s_branch g_p1done")
    a.label("g_noffn1")
    a("s_waitcnt lgkmcnt(0)")
    a("s_barrier                                ; B8")
    send_flag("s35")
    a("s_cmp_eq_u32 s32, 15")
    a("s_cbranch_scc1 g_p1done")
    srd(a, 16, P_GATE, 1024)
    for r in range(16):
        a(f"v_mov_b32 v{ACC+r}, 0")
    a("v_lshlrev_b32 v15, 4, v6                 ; hh*16")
    for n in range(8):
        a(f"s_add_u32 s21, s33, {n}")
        a("s_and_b32 s21, s21, 7")
        a("s_lshl_b32 s21, s21, 7")
        for s in range(4):
            a(f"buffer_load_dwordx4 {vr(WA + 4*s, 4)}, v15, s[16:19], s21 offen offset:{s*32}")
        a("s_waitcnt vmcnt(0)")
        for s in range(4):
            a(f"{MFMA} {vr(ACC, 16)}, {vr(WA + 4*s, 4)}, {vr(X + 16*n + 4*s, 4)}, {vr(ACC, 16)}")
    a("s_nop 15")
    a("v_lshlrev_b32 v15, 2, v1")
    a("s_lshl_b32 s20, s34, 7")
    a(f"s_add_u32 s20, s20, {WS_G}")
    a("s_mov_b32 exec_hi, 0")
    a(f"buffer_store_dword v{ACC}, v15, s[12:15], s20 offen sc1")
    a("s_mov_b64 exec, -1")
    a.label("g_p1done")
    lds_signal(F_F7)
    a("s_lshl_b32 s22, s28, 2")
    a("s_lshr_b32 s20, s29, 3")
    a("s_add_u32 s22, s22, s20                  ; h")
    a("s_and_b32 s21, s29, 7")
    a("s_lshl_b32 s21, s21, 1")
    a("s_mul_i32 s40, s30, 3                    ; i0 = 3g")
    a("s_add_u32 s21, s21, s40")
    a("s_add_u32 s41, s21, 4")
    a("s_lshr_b32 s23, s22, 2")
    a("s_lshl_b32 s23, s23, 11")
    a(f"s_add_u32 s23, s23, {WS_FKV}")
    a("s_lshl_b32 s22, s22, 17")
    a(f"s_add_u32 s22, s22, {WS_KV}")
    a("s_lshr_b32 s20, s30, 1")
    a("s_lshl_b32 s20, s20, 2")
    a("s_add_u32 s40, s40, s20")
    a("s_lshl_b32 s40, s40, 13")
    a("v_min_u32 v8, 5, v1")
    a("v_lshlrev_b32 v8, 6, v8")
    a("s_lshl_b32 s20, s41, 7")
    a("v_add_u32 v8, s20, v8")
    a("v_and_b32 v8, 0x7ff, v8")
    poll_global(a, "g_kv", 8, 12, "s23", 1, 9, HSLEEP)
    a(f"v_mov_b32 v8, {L_FLAGS + F_F7}")
    poll_lds(a, "g_f7", 8, 9, "s_cmp_ge_u32 s20, 4", sleep=4)
    for hs in range(3):
        a(f"s_add_u32 s21, s41, {hs}")
        a("s_and_b32 s21, s21, 15")
        a("s_lshl_b32 s21, s21, 12")
        a("s_add_u32 s21, s21, s22")
        for part in range(2):
            a(f"s_add_u32 m0, s40, {hs * 8192 + part * 4096}")
            a(f"s_add_u32 s20, s21, {part * 65536}")
            for i in range(4):
                a(f"buffer_load_dwordx4 v3, s[12:15], s20 offen offset:{i*1024} sc1 lds")
    a("s_cmp_ge_u32 s32, 14")
    a("s_cbranch_scc1 g_nohst")
    a("s_mul_i32 s20, s34, 112")
    a("s_lshl_b32 s21, s32, 3")
    a("s_add_u32 s20, s20, s21")
    a("s_lshl_b32 s20, s20, 10")
    a(f"s_add_u32 s20, s20, {WS_HF}")
    a("s_add_u32 s21, s20, 4096")
    for c in range(4):
        b = ACC + 16 * c
        for r in range(16):
            a(f"v_max_f32 v{b+r}, 0, v{b+r}")
        for r in range(0, 16, 2):
            a(f"v_pk_mul_f32 {vr(b+r, 2)}, {vr(b+r, 2)}, {vr(b+r, 2)}")
        pack(b)
        for u in range(2):
            a(f"buffer_store_dwordx4 {vr(b+4*u, 4)}, v3, s[12:15], s{20 + (c >> 1)} offen offset:{((c & 1)*2 + u)*1024} sc1")
    a("s_waitcnt vmcnt(8)")
    a("s_branch g_hst")
    a.label("g_nohst")
    a("s_waitcnt vmcnt(0)")
    a.label("g_hst")
    lds_signal(F_KVS)
    a(f"s_setprio {GP2}")
    if os.environ.get("GEXIT"):
        dump_stamps(a)
        a("s_endpgm")
    srd(a, 4, P_W2, 1835008)
    srd(a, 8, P_WO, 524288)
    srd(a, 16, P_B2, 1024)
    srd(a, 24, P_OUT, 2097152)
    a("s_lshl_b32 s31, s28, 2")
    a("s_lshr_b32 s20, s29, 3")
    a("s_add_u32 s31, s31, s20                  ; rb")
    a("s_and_b32 s32, s29, 7                    ; cp")
    a("s_and_b32 s38, s30, 1")
    a("s_lshr_b32 s39, s30, 1")
    a("s_lshl_b32 s41, s31, 1")
    a("s_add_u32 s41, s41, s38")
    a("s_xor_b32 s42, s41, 1")
    a("s_lshl_b32 s40, s32, 1")
    a("s_add_u32 s40, s40, s39")
    a("s_xor_b32 s43, s40, 1")
    a("s_mul_i32 s21, s30, 28")
    a("s_lshl_b32 s20, s21, 14")
    a("s_lshl_b32 s33, s40, 6")
    a("s_add_u32 s33, s33, s20")
    a("s_lshl_b32 s35, s43, 6")
    a("s_add_u32 s35, s35, s20")
    a("v_lshrrev_b32 v8, 2, v1")
    a("v_and_b32 v9, 3, v1")
    a("v_lshlrev_b32 v8, 10, v8")
    a("v_lshl_add_u32 v4, v9, 4, v8")
    AF = 16
    HB = 80
    WF = 112
    WO = 128
    ND = 7
    ST = lambda i: 128 + 16 * i
    vm = VM()
    vm.op("hst")
    def ldW(k):
        i = k % ND
        a(f"buffer_load_dwordx4 {vr(ST(i), 4)}, v4, s[4:7], s33 offen")
        a(f"buffer_load_dwordx4 {vr(ST(i)+4, 4)}, v4, s[4:7], s35 offen")
        a("s_add_u32 s33, s33, 16384")
        a("s_add_u32 s35, s35, 16384")
        vm.op(("w", k), 2)
    def ldH(k):
        i = k % ND
        a(f"buffer_load_dwordx4 {vr(ST(i)+8, 4)}, v3, s[12:15], s22 offen sc1")
        a(f"buffer_load_dwordx4 {vr(ST(i)+12, 4)}, v3, s[12:15], s23 offen sc1")
        a("s_add_u32 s22, s22, 1024")
        a("s_add_u32 s23, s23, 1024")
        vm.op(("h", k), 2)
    def ldWo(k):
        a(f"s_add_u32 s20, s98, {k*16384}")
        a(f"buffer_load_dwordx4 {vr(WO+8*k, 4)}, v4, s[8:11], s20 offen")
        a(f"s_add_u32 s20, s99, {k*16384}")
        a(f"buffer_load_dwordx4 {vr(WO+8*k+4, 4)}, v4, s[8:11], s20 offen")
        vm.op(("o", k), 2)
    for k in range(ND):
        ldW(k)
    a("s_lshl_b32 s20, s39, 18")
    a("s_lshl_b32 s98, s40, 6")
    a("s_add_u32 s98, s98, s20")
    a("s_lshl_b32 s99, s43, 6")
    a("s_add_u32 s99, s99, s20")
    ldWo(14)
    ldWo(15)
    for sd, st in ((22, 41), (23, 42)):
        a(f"s_mul_i32 s{sd}, s{st}, 112")
        a(f"s_add_u32 s{sd}, s{sd}, s21")
        a(f"s_lshl_b32 s{sd}, s{sd}, 10")
        a(f"s_add_u32 s{sd}, s{sd}, {WS_HF}")
    a("s_lshl_b32 s34, s30, 12")
    a(f"s_add_u32 s34, s34, {36*4096}")
    a("v_add_u32 v7, s34, v14")
    a("v_add_u32 v12, s34, v3")
    vm.wait(a, "hst")
    a("s_mov_b64 exec, 1")
    a(f"ds_add_rtn_u32 v10, v17, v22 offset:{F_HS}")
    a("s_waitcnt lgkmcnt(0)")
    a("v_readfirstlane_b32 s20, v10")
    a("s_nop 3")
    a("s_cmp_lg_u32 s20, 3")
    a("s_cbranch_scc1 g_nohpub")
    a("buffer_store_dword v22, v16, s[12:15], s36 offen sc1")
    a.label("g_nohpub")
    a("s_mov_b64 exec, -1")
    stamp(a, 7)
    a("v_and_b32 v8, 15, v1")
    a("v_lshlrev_b32 v8, 6, v8")
    a("s_lshr_b32 s36, s31, 1")
    a("s_lshl_b32 s36, s36, 10")
    a(f"s_add_u32 s36, s36, {WS_FH}")
    poll_global(a, "g_hw", 8, 12, "s36", 1, 9, HSLEEP)
    vm.clear()
    stamp(a, 8)
    for k in range(ND):
        ldH(k)
    def prep(k):
        i = k % ND
        w = WF + 8 * (k & 1)
        vm.wait(a, ("w", k))
        a(f"ds_write_b128 v12, {vr(ST(i), 4)}")
        a(f"ds_write_b128 v12, {vr(ST(i)+4, 4)} offset:1024")
        for cl in range(2):
            a(f"ds_read_b64_tr_b16 {vr(w+4*cl, 2)}, v7 offset:{cl*1024}")
            a(f"ds_read_b64_tr_b16 {vr(w+4*cl+2, 2)}, v7 offset:{cl*1024+512}")
    prep(0)
    for k in range(28):
        i = k % ND
        w = WF + 8 * (k & 1)
        if k + 1 < 28:
            prep(k + 1)
            a("s_waitcnt lgkmcnt(6)")
        else:
            a("s_waitcnt lgkmcnt(0)")
        if k + ND < 28:
            ldW(k + ND)
        else:
            ldWo(2 * i)
        vm.wait(a, ("h", k))
        for cl in range(2):
            for tl in range(2):
                d = vr(AF + 16 * (tl + 2 * cl), 16)
                if not os.environ.get("NOF2"):
                    a(f"{MFMA} {d}, {vr(w + 4*cl, 4)}, {vr(ST(i) + 8 + 4*tl, 4)}, {d if k else 0}")
        if k + ND < 28:
            ldH(k + ND)
        else:
            ldWo(2 * i + 1)
    stamp(a, 9)
    for k in list(range(14, 16)) + list(range(14)):
        vm.wait(a, ("o", k))
        a(f"ds_write_b128 v12, {vr(WO+8*k, 4)}")
        a(f"ds_write_b128 v12, {vr(WO+8*k+4, 4)} offset:1024")
        for cl in range(2):
            a(f"ds_read_b64_tr_b16 {vr(WO+8*k+4*cl, 2)}, v7 offset:{cl*1024}")
            a(f"ds_read_b64_tr_b16 {vr(WO+8*k+4*cl+2, 2)}, v7 offset:{cl*1024+512}")
        if k & 1:
            a("s_waitcnt lgkmcnt(0)")
    stamp(a, 10)
    a("v_lshlrev_b32 v8, 2, v5")
    a("s_lshl_b32 s20, s41, 7")
    a(f"s_add_u32 s20, s20, {WS_G}")
    a("buffer_load_dword v10, v8, s[12:15], s20 offen sc1")
    a("v_lshlrev_b32 v8, 3, v6")
    a("s_lshl_b32 s20, s40, 6")
    for q in range(4):
        a(f"buffer_load_dwordx2 {vr(WF+2*q, 2)}, v8, s[16:19], s20 offen offset:{q*16}")
    a("s_lshl_b32 s20, s30, 2")
    a(f"s_add_u32 s20, s20, {L_FLAGS + 16}")
    a("v_mov_b32 v13, s20")
    def partner(r):
        a(f"s_xor_b32 s36, s30, {r}")
        a("s_lshl_b32 s21, s36, 12")
        a(f"s_add_u32 s21, s21, {36*4096}")
        a("s_lshl_b32 s36, s36, 2")
        a(f"s_add_u32 s36, s36, {L_FLAGS + 16}")
    def xchg(r, seq, src, dst_tmp, tag, need_ack):
        if need_ack:
            a("v_add_u32 v8, 16, v13")
            poll_lds(a, f"{tag}a", 8, 9, f"s_cmp_ge_u32 s20, {seq-1}")
        for q in range(4):
            a(f"ds_write_b128 v12, {vr(src+4*q, 4)} offset:{q*1024}")
        partner(r)
        a(f"v_mov_b32 v9, {seq}")
        a("s_waitcnt lgkmcnt(0)")
        a("ds_write_b32 v13, v9")
        a("v_mov_b32 v8, s36")
        poll_lds(a, f"{tag}f", 8, 11, f"s_cmp_ge_u32 s20, {seq}")
        a("v_add_u32 v11, s21, v3")
        for q in range(4):
            a(f"ds_read_b128 {vr(dst_tmp+4*q, 4)}, v11 offset:{q*1024}")
        a("s_waitcnt lgkmcnt(0)")
        a("ds_write_b32 v8, v9 offset:16")
    a(f"s_setprio {GP3}")
    T0, T1 = AF, AF + 32
    for seq, (src, dst) in enumerate(((AF + 16, T0), (AF + 48, T1)), 1):
        xchg(1, seq, src, HB, f"g_r{seq}", seq > 1)
        vadd16(a, dst, HB, "a")
    a("s_waitcnt vmcnt(0)")
    a(f"v_max_f32 v10, {f32(-60.0)}, v10")
    a(f"v_mul_f32 v10, {f32(-LOG2E)}, v10")
    a("v_exp_f32 v14, v10                       ; e^-z")
    a("s_nop 0")
    a("v_add_f32 v10, 1.0, v14")
    a("v_rcp_f32 v10, v10                       ; g")
    for q in range(4):
        d = WF + 2 * q
        a(f"v_lshlrev_b32 v8, 16, v{d}")
        a(f"v_add_f32 v{AF+4*q}, v{AF+4*q}, v8")
        a(f"v_and_b32 v8, 0xffff0000, v{d}")
        a(f"v_add_f32 v{AF+4*q+1}, v{AF+4*q+1}, v8")
        a(f"v_lshlrev_b32 v8, 16, v{d+1}")
        a(f"v_add_f32 v{AF+4*q+2}, v{AF+4*q+2}, v8")
        a(f"v_and_b32 v8, 0xffff0000, v{d+1}")
        a(f"v_add_f32 v{AF+4*q+3}, v{AF+4*q+3}, v8")
    for T in (T0, T1):
        vscale16(a, T, 14, "b")
    OBF = AF + 48
    a("s_lshl_b32 s22, s41, 5")
    a("s_lshl_b32 s20, s39, 4")
    a("s_add_u32 s22, s22, s20")
    a("s_lshl_b32 s22, s22, 10")
    a(f"s_add_u32 s22, s22, {WS_OF}")
    for i in range(1, 4):
        a(f"s_add_u32 s{44+i}, s22, {i*4096}")
    a("s_mov_b32 s44, s22")
    a("v_add_u32 v8, 16, v13")
    poll_lds(a, "g_ak", 8, 9, "s_cmp_ge_u32 s20, 2", sleep=2)
    stamp(a, 11)
    a(f"v_mov_b32 v8, {L_FLAGS + F_AD}")
    poll_lds(a, "g_ad", 8, 9, f"s_cmp_ge_u32 s20, {ADN}", sleep=4)
    stamp(a, 12)
    stamp(a, 2, 3)
    ldO = lambda k: a(f"buffer_load_dwordx4 {vr(OBF+4*k, 4)}, v3, s[12:15], s{44 + k//4} offen offset:{(k%4)*1024} sc1")
    for k in range(16):
        ldO(k)
    a("s_mov_b32 s37, 0xffff")
    a("s_mov_b32 s96, 0")
    a.label("g_oround")
    if os.environ.get("OWAIT"): a("s_waitcnt vmcnt(0)")
    for k in range(16):
        b = OBF + 4 * k
        a(f"s_bitcmp1_b32 s37, {k}")
        a(f"s_cbranch_scc0 g_onext{k}")
        a(f"s_waitcnt vmcnt({15-k})")
        a(f"v_max3_u32 v8, v{b}, v{b+1}, v{b+2}")
        a(f"v_max_u32 v8, v8, v{b+3}")
        a("v_cmp_eq_u32 vcc, -1, v8")
        a("s_nop 4")
        a(f"s_cbranch_vccnz g_oretry{k}")
        for cl, T in enumerate((T0, T1)):
            d = vr(T, 16)
            a(f"{MFMA} {d}, {vr(WO + 8*k + 4*cl, 4)}, {vr(b, 4)}, {d}")
        a(f"s_bitset0_b32 s37, {k}")
        a.label(f"g_onext{k}")
    a("s_cmp_eq_u32 s37, 0")
    a("s_cbranch_scc1 g_odone")
    a("s_add_u32 s96, s96, 1")
    a(f"s_cmp_lt_u32 s96, {SPIN_MAX}")
    a("s_waitcnt vmcnt(0)")
    a("s_cbranch_scc1 g_oround")
    a("s_branch g_odone")
    for k in range(16):
        a.label(f"g_oretry{k}")
        ldO(k)
        a(f"s_branch g_onext{k}")
    a.label("g_odone")
    a("s_nop 15")
    stamp(a, 6, 3)
    xchg(2, 3, T1, AF + 16, "g_r4", False)
    stamp(a, 7, 3)
    vadd16(a, AF, AF + 16, "c")
    vscale16(a, AF, 10, "d")
    P = OBF
    for j in range(8):
        a(f"v_cvt_pk_bf16_f32 v{P+j}, v{AF+2*j}, v{AF+2*j+1}")
    a("v_lshlrev_b32 v8, 10, v5")
    a("v_lshl_add_u32 v8, v6, 4, v8")
    for pa in (0, 2):
        a(f"v_permlane32_swap_b32 v{P+2*pa}, v{P+2*pa+2}")
        a(f"v_permlane32_swap_b32 v{P+2*pa+1}, v{P+2*pa+3}")
    a("s_lshl_b32 s20, s41, 15")
    a("s_lshl_b32 s21, s40, 6")
    a("s_add_u32 s20, s20, s21")
    a(f"buffer_store_dwordx4 {vr(P, 4)}, v8, s[24:27], s20 offen")
    a(f"buffer_store_dwordx4 {vr(P+4, 4)}, v8, s[24:27], s20 offen offset:32")
    a("s_waitcnt lgkmcnt(0)")
    if PROF == 3:
        a("s_mul_i32 s73, s96, 100")
        a("s_add_u32 s73, s73, s64")
        stamp(a, 8, 3)
        a("s_waitcnt vmcnt(0)")
    dump_stamps(a)
    a("s_endpgm")


def main(path):
    a = Asm()
    hdr = f"""; gated_mix: MHA block + squared-relu FFN, gated mix.  Generated by gen/gen8.py
; @launch grid=(256,1,1) block=(512,1,1) lds={LDS_BYTES}
.amdgcn_target "amdgcn-amd-amdhsa--gfx950"
.text
.globl {NAME}_kernel
.type {NAME}_kernel,@function
"""
    gen(a)
    tail = f""".section .rodata,"a"
.p2align 6
.amdhsa_kernel {NAME}_kernel
  .amdhsa_next_free_vgpr 256
  .amdhsa_next_free_sgpr 102
  .amdhsa_accum_offset 256
  .amdhsa_group_segment_fixed_size 0
  .amdhsa_kernarg_size 96
  .amdhsa_user_sgpr_count 2
  .amdhsa_user_sgpr_kernarg_segment_ptr 1
  .amdhsa_system_sgpr_workgroup_id_x 1
.end_amdhsa_kernel
"""
    open(path, "w").write(hdr + a.text() + tail)


if __name__ == "__main__":
    main(sys.argv[1] if len(sys.argv) > 1 else f"cdna_kernels/{NAME}.s")
```

```python
import struct, math, sys, os

NAME = "gated_mix__mha_block__dense_activation_squared_relu__prompt"

WS_QF = 0x000000
WS_KV = 0x200000
WS_OF = 0x600000
WS_HF = 0x800000
WS_G = 0xF02000
WS_FL = 0xF04000
WS_FKV = WS_FL
WS_FH = WS_FL + 16384
WS_SIZE = 0xF0C000
NRESET = 32

QSCALE = 0.25 * math.log2(math.e)
LOG2E = math.log2(math.e)
PROF = int(os.environ.get("PROF", "0"))
WS_PROF = 0x2000000
if PROF:
    WS_SIZE = 0x2400000
SPIN_MAX = 1 << 15
MFMA = "v_mfma_f32_32x32x16_bf16"

STG = 28672
L_FLAGS = 143360
L_F7 = 147456
LDS_BYTES = 163840
def g_stage(j):
    return (131072, 131072 + 6144, 147456, 147456 + 6144)[j]


def f32(x):
    return "0x%08x" % struct.unpack("<I", struct.pack("<f", x))[0]


class Asm:
    def __init__(self):
        self.lines = []

    def __call__(self, s):
        for l in s.strip("\n").split("\n"):
            self.lines.append("    " + l.strip())

    def label(self, l):
        self.lines.append(l + ":")

    def raw(self, s):
        self.lines.append(s)

    def text(self):
        return "\n".join(self.lines) + "\n"


class VM:
    def __init__(self, cnt="vmcnt", mx=63):
        self.q = []
        self.cnt, self.mx = cnt, mx

    def op(self, tag, n=1):
        self.q += [tag] * n

    def wait(self, a, *tags):
        idx = [i for i, t in enumerate(self.q) if t in tags]
        if not idx:
            return
        n = len(self.q) - 1 - max(idx)
        a(f"s_waitcnt {self.cnt}({min(n, self.mx)})")
        self.q = self.q[max(idx) + 1:]

    def clear(self):
        self.q = []


L_BIAS = L_FLAGS + 256
W1_PAGES = {8: (21, 22, 23, 24), 9: (25, 26, 27, 28), 10: (29, 30, 31, 32), 11: (33, 34, 36, 37),
            12: (38, 39, 0, 1), 13: (2, 3, 4, 5), 14: (6, 7, 8, 9), 15: (10, 11, 20, 21)}
PLANS = {
    "a": {-1: [0, 1], 0: [2], 1: [3], 2: [4], 3: [5], 4: [6], 5: [7], 6: [8], 7: ["b", "c", 9], 8: [10, 11, 12, 13, 14, 15]},
    "b": {-1: [0, 1], 0: [2], 1: [3], 2: [4], 3: [5], 4: [6], 5: [7], 6: [8, "b", "c"], 7: [9, 10], 8: [11, 12, 13, 14, 15]},
    "c": {-1: [0, 1], 0: [2], 1: [3], 2: [4], 3: [5], 4: [6], 5: [7, 8], 6: ["b", "c", 9], 7: [10, 11], 8: [12, 13, 14, 15]},
    "d": {-1: [0, 1], 0: [2], 1: [3], 2: [4], 3: [5], 4: [6], 5: [7], 6: [8, "b", "c"], 7: [], 8: [9, 10, 11, 12, 13, 14, 15]},
    "e": {-1: [0, 1], 0: [2], 1: [3], 2: [4], 3: [5], 4: [6], 5: [7, 8], 6: ["b", "c"], 7: [], 8: [9, 10, 11, 12, 13, 14, 15]},
    "g": {-1: [0, 1], 0: [2], 1: [3], 2: [4], 3: [5], 4: [6], 5: [7, 8], 6: ["b", "c", 9], 7: [10, 11], 8: []},
    "h": {-1: [0, 1], 0: [2], 1: [3], 2: [4], 3: [5], 4: [6], 5: [7, 8], 6: ["b", "c", 9], 7: [10], 8: [11]},
    "z": {-1: [0, 1], 0: [2], 1: [3, "b"], 2: [4], 3: [5], 4: [6, "c"], 5: [7], 6: [], 7: [], 8: [8, 9, 10, 11, 12, 13, 14, 15]},
    "y": {-1: [0, 1], 0: [2], 1: [3, "b"], 2: [4], 3: [5], 4: [6], 5: [7, "c"], 6: [], 7: [], 8: [8, 9, 10, 11, 12, 13, 14, 15]},
    "i": {-1: [0, 1, 2], 0: [3], 1: [4], 2: [5], 3: [6], 4: [7], 5: [8], 6: ["b", "c", 9], 7: [10, 11], 8: [12, 13, 14, 15]},
    "j": {-1: [0, 1], 0: [2, 3], 1: [4], 2: [5], 3: [6], 4: [7], 5: [8], 6: ["b", "c", 9], 7: [10, 11], 8: [12, 13, 14, 15]},
    "k": {-1: [0, 1], 0: [2, 3], 1: [4], 2: [5], 3: [6], 4: [7], 5: [8, "b", "c"], 6: [9, 10], 7: [11, 12], 8: [13, 14, 15]},
    "l": {-1: [0, 1], 0: [2, 3, 4], 1: [], 2: [5], 3: [6], 4: [7], 5: [8, "b", "c"], 6: [9, 10, 11], 7: [12, 13], 8: [14, 15]},
    "m": {-1: [0], 0: [1, 2, 3], 1: [4], 2: [5], 3: [6], 4: [7], 5: [8], 6: ["b", "c", 9], 7: [10, 11], 8: [12, 13, 14, 15]},
    "f": {-1: [0, 1], 0: [2], 1: [3], 2: [4], 3: [5], 4: [6], 5: [7, 8], 6: ["b", "c", 9], 7: [], 8: [10, 11, 12, 13, 14, 15]},
}
PLAN = PLANS[os.environ.get("PLAN", "c")]
MAP = int(os.environ.get("MAP", "0"))
LDKV = os.environ.get("LDKV", " sc1")
LDH = os.environ.get("LDH", " sc1")
STKV = os.environ.get("STKV", " sc1")
PLKV = os.environ.get("PLKV", " sc1")
LATE9 = 9 in PLAN[8]
GW1 = not any(12 in v for v in PLAN.values())
L_CONST = L_FLAGS + 128
NEWLOOP = int(os.environ.get("NEWLOOP", "1"))
KVFIRST = int(os.environ.get("KVFIRST", "1"))
HF = int(os.environ.get("HF", "1"))
F2I = int(os.environ.get("F2I", "1"))
WOP = int(os.environ.get("WOP", "1"))
W1T = int(os.environ.get("W1T", "-9"))
TLBW = int(os.environ.get("TLBW", "-9"))
TLBS = os.environ.get("TLBS", "1")
SENT = int(os.environ.get("SENT", "-1"))
GSTEP = int(os.environ.get("GSTEP", "2"))
LATE8 = 8 in PLAN[8]
F_W1Z = 84
F_AS = 88
EARLYP = int(os.environ.get("EARLYP", "1"))
assert not (EARLYP and GW1)
KSLEEP = int(os.environ.get("KSLEEP", "12"))
ASW = int(os.environ.get("ASW", "1"))
EPI0 = int(os.environ.get("EPI0", "1"))
NEED = {8: ("b", "c") if LATE8 else (8, "b", "c") if LATE9 else (8, 9, "b", "c")}
F_W1A = 80
WARMG = int(os.environ.get("WARMG", "0"))
WARMG0 = 0
NWARM = int(os.environ.get("NWARM", "3"))
WARMH = int(os.environ.get("WARMH", "2"))
W1WARM = int(os.environ.get("W1WARM", "-1"))
F_KVL, F_F7, F_C8, F_KVS, F_FULL, F_ACK, F_AD, F_W1, F_ST, F_HS, F_W1B, F_W1C = 72, 4, 8, 12, 16, 32, 48, 52, 56, 60, 64, 68
SIGAFTER = {10: (8, F_W1Z), 11: (9, F_W1A), 14: (12, F_W1)}
PSLEEP = int(os.environ.get("PSLEEP", "6"))
HSLEEP = int(os.environ.get("HSLEEP", "24"))
WARM2 = int(os.environ.get("WARM2", "1"))
ADN = int(os.environ.get("ADN", "4"))
GP0, GP1, GP2, GP3 = [int(x) for x in os.environ.get("GP", "0,2,0,2").split(",")]
PDELAY = int(os.environ.get("PDELAY", "0"))
HDELAY = int(os.environ.get("HDELAY", "1"))


PK = os.environ.get("PK", "abcd")
def vadd16(a, dst, src, tag):
    if tag in PK:
        for i in range(0, 16, 2):
            a(f"v_pk_add_f32 {vr(dst+i, 2)}, {vr(dst+i, 2)}, {vr(src+i, 2)}")
    else:
        for i in range(16):
            a(f"v_add_f32 v{dst+i}, v{dst+i}, v{src+i}")


def vscale16(a, dst, sreg, tag):
    if tag in PK:
        a(f"v_mov_b32 v{sreg+1}, v{sreg}")
        for i in range(0, 16, 2):
            a(f"v_pk_mul_f32 {vr(dst+i, 2)}, {vr(dst+i, 2)}, {vr(sreg, 2)}")
    else:
        for i in range(16):
            a(f"v_mul_f32 v{dst+i}, v{dst+i}, v{sreg}")


def vr(b, n):
    return f"v[{b}:{b+n-1}]" if n > 1 else f"v{b}"


def srd(a, d, base, size):
    a(f"s_mov_b32 s{d}, s{base}")
    a(f"s_and_b32 s{d+1}, s{base+1}, 0xffff")
    a(f"s_mov_b32 s{d+2}, {size}")
    a(f"s_mov_b32 s{d+3}, 0x00020000")


TIMER = "s_memtime" if os.environ.get("CYC") else "s_memrealtime"
NSTAMP = 14
def stamp(a, slot, mode=1):
    if not PROF or (mode != PROF and slot not in (1, NSTAMP - 1)):
        return
    a(f"{TIMER} s[92:93]")
    a("s_waitcnt lgkmcnt(0)")
    a(f"s_mov_b32 s{64+slot}, s92")


DBG_A = [True]
def init_stamps(a):
    if not PROF:
        return
    a("s_memtime s[94:95]")
    a(f"{TIMER} s[92:93]")
    a("s_waitcnt lgkmcnt(0)")
    a("s_mov_b32 s78, s94")
    for i in range(NSTAMP):
        a(f"s_mov_b32 s{64+i}, s92")


def dump_stamps(a):
    if not PROF:
        return
    if os.environ.get("DBGT"):
        stamp(a, NSTAMP - 1)
        srd(a, 24, P_DBG, 256)
        a("s_getreg_b32 s20, hwreg(HW_REG_XCC_ID, 0, 4)")
        a("s_sub_u32 s20, s20, s2")
        a("s_and_b32 s20, s20, 7")
        a("s_lshl_b32 s20, 1, s20")
        a("s_mov_b64 exec, 1")
        a("v_mov_b32 v2, 0")
        a("v_mov_b32 v4, s20")
        a("buffer_atomic_or v4, v2, s[24:27], 0 offen offset:4 sc1")
        a("s_not_b32 s20, s64")
        a("v_mov_b32 v5, s20")
        a("buffer_atomic_umax v5, v2, s[24:27], 0 offen offset:8 sc1")
        for i, sl in enumerate((0, 3, 4, 5, 8, 9, 10, 11, 13) if DBG_A[0] else (3, 5, 8, 13)):
            a(f"v_mov_b32 v{6+i}, s{64+sl}")
            a(f"buffer_atomic_umax v{6+i}, v2, s[24:27], 0 offen offset:{(12 if DBG_A[0] else 48) + 4*i} sc1")
        DBG_A[0] = False
        a("s_mov_b64 exec, -1")
        return
    a("s_memtime s[94:95]")
    stamp(a, NSTAMP - 1)
    a("s_mov_b32 s79, s94")
    a("v_lshrrev_b32 v2, 6, v0")
    a("v_lshlrev_b32 v2, 6, v2")
    a("s_lshl_b32 s20, s2, 10")
    a(f"s_add_u32 s20, s20, {WS_PROF}")
    a("s_mov_b64 exec, 1")
    for i in range(0, 16, 2):
        a(f"v_mov_b32 v4, s{64+i}")
        a(f"v_mov_b32 v5, s{65+i}")
        a(f"buffer_store_dwordx2 v[4:5], v2, s[12:15], s20 offen offset:{4*i}")
        a("s_nop 1")
    a("s_mov_b64 exec, -1")


P_X, P_WQKV, P_WO, P_BX, P_W1, P_B1, P_W2, P_B2, P_GATE, P_OUT, P_DBG, P_WS = [40 + 2 * i for i in range(12)]


def half_max(a, v, t):
    for sh in (8, 4, 2, 1):
        a("s_nop 1")
        a(f"v_max_f32_dpp v{v}, v{v}, v{v} row_ror:{sh} row_mask:0xf bank_mask:0xf")
    a("s_nop 0")
    a(f"v_mov_b32 v{t}, v{v}")
    a("s_nop 1")
    a(f"v_permlane16_swap_b32 v{v}, v{t}")
    a("s_nop 1")
    a(f"v_max_f32 v{v}, v{v}, v{t}")


def wave_max(a, v, t):
    half_max(a, v, t)
    a(f"v_mov_b32 v{t}, v{v}")
    a("s_nop 1")
    a(f"v_permlane32_swap_b32 v{v}, v{t}")
    a("s_nop 1")
    a(f"v_max_f32 v{v}, v{v}, v{t}")


def poll_global(a, name, voff, srdn, soff, want, vtmp, sleep, first_loaded=False, two=False, sc=" sc1"):
    a("s_mov_b32 s96, 0")
    if first_loaded:
        a(f"s_branch {name}_chk")
    a.label(f"{name}_ld")
    if two:
        a(f"buffer_load_dwordx2 v[{vtmp}:{vtmp+1}], v{voff}, s[{srdn}:{srdn+3}], {soff} offen sc1")
        a("s_waitcnt vmcnt(0)")
        a(f"v_and_b32 v{vtmp}, v{vtmp}, v{vtmp+1}")
    else:
        a(f"buffer_load_dword v{vtmp}, v{voff}, s[{srdn}:{srdn+3}], {soff} offen{sc}")
        a("s_waitcnt vmcnt(0)")
    a.label(f"{name}_chk")
    a(f"v_cmp_ne_u32 vcc, {want}, v{vtmp}")
    a("s_nop 4")
    a(f"s_cbranch_vccz {name}_ok")
    a("s_add_u32 s96, s96, 1")
    a(f"s_cmp_gt_u32 s96, {SPIN_MAX}")
    a(f"s_cbranch_scc1 {name}_ok")
    a(f"s_sleep {sleep}")
    a(f"s_branch {name}_ld")
    a.label(f"{name}_ok")


def poll_lds(a, name, vaddr, vtmp, cmp_instr, sleep=1):
    a("s_mov_b32 s97, 0")
    a.label(f"{name}_ld")
    a(f"ds_read_b32 v{vtmp}, v{vaddr}")
    a("s_waitcnt lgkmcnt(0)")
    a(f"v_readfirstlane_b32 s20, v{vtmp}")
    a("s_nop 3")
    a(cmp_instr)
    a(f"s_cbranch_scc1 {name}_ok")
    a("s_add_u32 s97, s97, 1")
    a(f"s_cmp_gt_u32 s97, {SPIN_MAX * 8}")
    a(f"s_cbranch_scc1 {name}_ok")
    a(f"s_sleep {sleep}")
    a(f"s_branch {name}_ld")
    a.label(f"{name}_ok")


def gen(a):
    a.raw(".p2align 8")
    a.label(f"{NAME}_kernel")
    a("s_cmp_ge_u32 s2, 256")
    a("s_cbranch_scc1 k_exit")
    init_stamps(a)
    if os.environ.get("SCR"):
        if os.environ["SCR"] == "1":
            a("s_and_b32 s20, s2, 7")
            a("s_lshl_b32 s20, s20, 5")
            a("s_lshr_b32 s2, s2, 3")
            a("s_or_b32 s2, s2, s20")
        else:
            a("s_lshr_b32 s20, s2, 3")
            a("s_lshr_b32 s21, s2, 5")
            a("s_xor_b32 s20, s20, s21")
            a("s_and_b32 s20, s20, 7")
            a("s_xor_b32 s2, s2, s20")
    a("s_load_dwordx16 s[40:55], s[0:1], 0")
    a("s_load_dwordx8 s[56:63], s[0:1], 64")
    a("v_and_b32 v1, 63, v0                    ; lane")
    a("v_lshrrev_b32 v2, 6, v0                 ; wave")
    a("s_and_b32 s28, s2, 7")
    a("v_readfirstlane_b32 s30, v2")
    a("s_lshr_b32 s29, s2, 3                   ; idx")
    a("v_lshlrev_b32 v3, 4, v1                 ; lane*16")
    if MAP == 0:
        a("s_and_b32 s20, s28, 1")
        a("s_lshl_b32 s20, s20, 3")
        a("s_and_b32 s21, s29, 7")
        a("s_add_u32 s31, s20, s21                 ; rg")
        a("s_lshr_b32 s20, s28, 1")
        a("s_lshl_b32 s20, s20, 2")
        a("s_lshr_b32 s22, s29, 3")
        a("s_add_u32 s32, s20, s22")
        a("s_lshl_b32 s22, s22, 1")
        a("s_add_u32 s33, s21, s22")
        a("s_and_b32 s33, s33, 7                   ; rot")
    else:
        if MAP == 1:
            a("s_and_b32 s20, s29, 1")
            a("s_lshr_b32 s31, s29, 1")
        else:
            a("s_lshr_b32 s20, s29, 4")
            a("s_and_b32 s31, s29, 15")
        a("s_lshl_b32 s32, s28, 1")
        a("s_add_u32 s32, s32, s20")
        a("s_lshl_b32 s20, s20, 2")
        a("s_add_u32 s33, s31, s28")
        a("s_add_u32 s33, s33, s20")
        a("s_and_b32 s33, s33, 7")
    a("s_waitcnt lgkmcnt(0)")
    stamp(a, 1)
    srd(a, 12, P_WS, WS_SIZE)
    srd(a, 24, P_DBG, 256)
    a("s_cmp_ge_u32 s30, 4")
    a("s_cbranch_scc1 k_g")
    gen_a(a)
    a.label("k_g")
    gen_g(a)
    a.label("k_exit")
    a("s_endpgm")


def gen_a(a):
    srd(a, 4, P_X, 2097152)
    srd(a, 8, P_WQKV, 1572864)
    srd(a, 16, P_W1, 1835008)
    a("v_lshrrev_b32 v8, 3, v1")
    a("v_lshrrev_b32 v5, 1, v8")
    a("s_and_b32 s20, s30, 1")
    a("s_lshl_b32 s20, s20, 2")
    a("v_add_u32 v5, s20, v5")
    a("v_and_b32 v6, 7, v1")
    a("v_xor_b32 v5, v5, v6")
    a("v_lshlrev_b32 v5, 4, v5")
    a("v_lshl_add_u32 v4, v8, 10, v5")
    a("v_lshrrev_b32 v8, 2, v1")
    a("v_and_b32 v9, 3, v1")
    a("v_lshlrev_b32 v9, 4, v9")
    a("v_mul_u32_u24 v5, 3072, v8")
    a("v_add_u32 v5, v5, v9")
    a("v_mul_u32_u24 v6, 3584, v8")
    a("v_add_u32 v6, v6, v9")
    a("s_lshl_b32 s34, s31, 17")
    a("s_lshl_b32 s20, s30, 13")
    a("s_add_u32 s34, s34, s20")
    a(f"s_mul_i32 s35, s30, {16*3072}")
    a("s_lshl_b32 s20, s32, 6")
    a("s_add_u32 s37, s35, s20                  ; q pair j")
    a("s_lshr_b32 s20, s32, 1")
    a("s_lshl_b32 s20, s20, 7")
    a("s_add_u32 s35, s35, s20")
    a("s_and_b32 s20, s32, 1")
    a("s_add_u32 s20, s20, 1")
    a("s_lshl_b32 s20, s20, 10")
    a("s_add_u32 s35, s35, s20")
    a(f"s_mul_i32 s36, s30, {16*3584}")
    a("s_lshl_b32 s20, s32, 8")
    a("s_add_u32 s36, s36, s20")
    a("s_lshl_b32 s38, s30, 10")

    srd(a, 80, P_B1, 3584)
    a("v_lshlrev_b32 v10, 2, v1                 ; lane*4")
    a("s_lshl_b32 s39, s32, 8")
    vm = VM()

    def issue(m):
        if m == "b":
            a(f"s_mov_b32 m0, {L_BIAS}")
            a("s_nop 0")
            a("buffer_load_dword v10, s[80:83], s39 offen lds")
            vm.op("b")
            return
        if m == "c":
            a("buffer_load_dword v7, v9, s[24:27], 0 offen sc1")
            vm.op("c")
            return
        a(f"s_add_u32 s21, s33, {m & 7}")
        a("s_and_b32 s21, s21, 7                    ; kc")
        if m < 8:
            st = (m % 5) * STG
            a("s_lshl_b32 s22, s21, 7")
            a("s_add_u32 s22, s22, s34")
            a(f"s_mul_i32 s23, s21, {64*3072}")
            for kind, i in (("x", 0), ("w", 0), ("w", 1), ("x", 1), ("x", 2), ("w", 2), ("x", 3)):
                if kind == "x":
                    a(f"s_add_u32 m0, s38, {st + i*4096}")
                    a(f"s_add_u32 s20, s22, {i*32768}")
                    a("buffer_load_dwordx4 v4, s[4:7], s20 offen lds")
                else:
                    a(f"s_add_u32 m0, s38, {st + 16384 + i*4096 - (64 if i == 1 else 0)}")
                    a(f"s_add_u32 s20, s23, s{37 if i == 2 else 35}")
                    a(f"buffer_load_dwordx4 v5, s[8:11], s20 offen{' offset:64' if i == 1 else ''} lds")
            vm.op(m, 7)
        else:
            a(f"s_mul_i32 s23, s21, {64*3584}")
            a("s_add_u32 s23, s23, s36")
            for i in range(3 if m == 15 else 4):
                a(f"s_add_u32 m0, s38, {W1_PAGES[m][i]*4096}")
                a(f"s_add_u32 s20, s23, {i*64}")
                a("buffer_load_dwordx4 v6, s[16:19], s20 offen lds")
                vm.op(m)

    def tlbw():
        a("s_lshr_b32 s87, s86, 7                   ; 4 idx + w")
        for ch in TLBS:
            ptr, step = {"1": (P_W1, 14336), "2": (P_W2, 14336), "o": (P_WO, 4096), "w": (P_WS, 0x1E000), "d": (P_OUT, 16384)}[ch]
            a(f"s_mul_i32 s98, s87, {step}")
            a(f"s_load_dword s91, s[{ptr}:{ptr+1}], s98")

    def sched(last, tag):
        short = tag == "s"
        ok = lambda m: not (short and (m == "b" or (m != "c" and m >= 8)))
        for n in range(last + 1):
            vm.wait(a, *NEED.get(n, (n,)))
            if n == 8:
                poll_global(a, f"a_ctr{tag}", 9, 24, "0", NRESET, 7, 8, first_loaded=True)
            if n < 11: stamp(a, 2 + n, 2)
            if n < 3: stamp(a, 5 + 3 * n, 6)
            a("s_barrier")
            if n < 3: stamp(a, 6 + 3 * n, 6)
            if n == 0: stamp(a, 3)
            if n == 8: stamp(a, 4)
            for m in PLAN.get(n, []):
                if ok(m):
                    issue(m)
                    if LATE8 and n == 8 and m in SIGAFTER:
                        wm, fl = SIGAFTER[m]
                        vm.wait(a, wm)
                        a("s_mov_b64 exec, 1")
                        a(f"ds_add_u32 v11, v12 offset:{fl}")
                        a("s_mov_b64 exec, -1")
            if n == W1WARM and not short:
                a("s_and_b32 s20, s29, 7")
                a(f"s_mul_i32 s20, s20, {64*3584}")
                a("s_add_u32 s20, s20, s36")
                a(f"s_add_u32 s98, s{P_W1}, s20")
                a(f"s_addc_u32 s99, s{P_W1+1}, 0")
                for i in range(16):
                    for q in range(4):
                        a(f"s_load_dword s{88 + (q & 1)}, s[98:99], {i*3584 + q*64}")
            if n < 2: stamp(a, 7 + 3 * n, 6)
            if n == TLBW:
                tlbw()
            if n == WARM2:
                for i in range(NWARM):
                    for hf in range(WARMH):
                        a(f"s_add_u32 s87, s86, {i*16384 + hf*64}")
                        a("s_min_u32 s87, s87, k_exit - k_pc")
                        a(f"s_load_dword s{88+(i % 3)}, s[84:85], s87")

    a("s_getpc_b64 s[84:85]")
    a.label("k_pc")
    a("s_lshl_b32 s86, s29, 2")
    a("s_add_u32 s86, s86, s30")
    a("s_lshl_b32 s86, s86, 7")
    a("v_mov_b32 v9, 0")
    a(f"v_mov_b32 v11, {L_FLAGS}")
    a("v_mov_b32 v12, 1")
    if TLBW == -2:
        tlbw()
    stamp(a, 2, 6)
    for m in PLAN[-1]:
        issue(m)
        if m < 2: stamp(a, 3 + m, 6)
    if TLBW == -1:
        tlbw()
    stamp(a, 2)
    q0 = list(vm.q)
    a("s_cmp_ge_u32 s32, 14")
    a("s_cbranch_scc1 a_short")
    sched(8, "l")
    a(f"v_mov_b32 v4, {L_FLAGS}")
    a("v_mov_b32 v6, 1")
    a("s_mov_b64 exec, 1")
    stamp(a, 2, 4)
    if LATE9 and not LATE8:
        vm.wait(a, 9)
        a(f"ds_add_u32 v4, v6 offset:{F_W1A}")
    vm.wait(a, 10, 11, 12)
    stamp(a, 3, 4)
    if not LATE8:
        a(f"ds_add_u32 v4, v6 offset:{F_W1}")
    if not GW1 and not EARLYP:
        a("s_waitcnt vmcnt(0)")
        a(f"ds_add_u32 v4, v6 offset:{F_W1B}")
    a("s_mov_b64 exec, -1")
    a("s_branch a_p1done")
    a.label("a_short")
    vm.q = list(q0)
    sched(8, "s")
    a.label("a_p1done")
    stamp(a, 5)
    stamp(a, 4, 4)
    a("s_lshl_b32 s31, s28, 2")
    a("s_lshr_b32 s20, s29, 3")
    a("s_add_u32 s31, s31, s20                  ; h")
    a("s_and_b32 s32, s29, 7                    ; q chunk")
    a("s_lshl_b32 s33, s32, 2")
    a("s_add_u32 s33, s33, s30                  ; rb = 4c + w")
    a("s_lshl_b32 s21, s32, 1")
    a("s_add_u32 s21, s21, s30")
    a("s_and_b32 s21, s21, 15")
    a("s_lshl_b32 s24, s21, 7")
    a("s_lshl_b32 s21, s21, 12")
    a("s_lshl_b32 s22, s31, 17")
    a(f"s_add_u32 s22, s22, {WS_KV}")
    a("s_add_u32 s22, s21, s22")
    QA, QB, NMA, NMB, SA, SB, P, OA, OB = 8, 12, 16, 32, 48, 64, 80, 88, 104
    K0, K1, V0, V1 = 120, 124, 128, 136
    KA, KB, KAN, VA, VB, VAN, KL, VL = 144, 145, 146, 147, 148, 149, 150, 151
    a("s_lshr_b32 s27, s30, 1")
    a("s_cmp_eq_u32 s27, 0")
    a("s_mov_b32 s26, 0x76521034")
    a("s_cselect_b32 s26, 0x76521043, s26")
    a("s_lshl_b32 s27, s27, 2")
    a("s_and_b32 s5, s30, 1")
    a("s_lshl_b32 s5, s5, 13")
    a(f"s_add_u32 s4, s30, 6")
    a("s_lshl_b32 s4, s4, 13")
    M14, X2K = KAN, VAN
    a("v_and_b32 v6, 31, v1                     ; m")
    a("v_and_b32 v7, 27, v1                     ; m & ~4")
    a("v_cmp_eq_u32 vcc, 16, v7")
    a(f"v_mov_b32 v4, {L_CONST + 16}")
    a(f"v_mov_b32 v5, {L_CONST}")
    a("v_cndmask_b32 v4, v4, v5, vcc")
    a("v_lshrrev_b32 v7, 5, v1")
    a("v_lshlrev_b32 v7, 8, v7")
    a("v_lshl_add_u32 v7, v6, 4, v7")
    a(f"v_add_u32 v7, 0x1000, v7")
    a(f"v_add_u32 v7, s5, v7")
    a("v_cmp_gt_u32 vcc, 16, v6")
    a(f"v_mov_b32 v5, 0x4000")
    a(f"v_cndmask_b32 v{VL}, v4, v7, vcc")
    a(f"v_cndmask_b32 v{M14}, 0, v5, vcc")
    a(f"v_lshrrev_b32 v{X2K}, 1, v{M14}")
    a(f"v_add_u32 v{KL}, s5, v3")
    a("v_and_b32 v5, 1, v1")
    a("v_lshrrev_b32 v4, 1, v1")
    a("v_lshlrev_b32 v4, 9, v4")
    a("v_lshl_add_u32 v4, v5, 4, v4")
    a("v_cmp_eq_u32 vcc, 0, v5")
    a("v_mov_b32 v5, 0x3f803f80")
    a(f"v_cndmask_b32 v{V0}, 0, v5, vcc")
    for r in range(1, 4):
        a(f"v_mov_b32 v{V0+r}, v{V0}")
    a(f"v_add_u32 v4, {L_CONST}, v4")
    a("s_mov_b64 exec, 0xffff")
    a(f"ds_write_b128 v4, {vr(V0, 4)}")
    a("s_mov_b64 exec, -1")
    a("s_mov_b32 s36, 0")
    def zero_o():
        for r in range(0, 32, 2):
            a(f"v_mov_b64 {vr(OA+r, 2)}, 0")
        for r in range(4, 8):
            a(f"v_mov_b32 v{P+r}, 0")
    def next_slot():
        a("s_bfe_u32 s8, s26, s25")
        a("s_add_u32 s25, s25, 4")
    def first_addrs():
        a("s_mov_b32 s25, 0x30000")
        next_slot()
        a(f"v_lshl_add_u32 v{KA}, s8, 14, v{KL}")
        a(f"v_mad_u32_u24 v{VA}, s8, v{M14}, v{VL}")
        a(f"v_xor_b32 v{KB}, 0x2000, v{KA}")
        a(f"v_xor_b32 v{VB}, v{X2K}, v{VA}")
    zero_o()
    first_addrs()
    a("v_lshlrev_b32 v4, 6, v1")
    a("v_add_u32 v4, s24, v4")
    a("v_and_b32 v5, 1, v1")
    a("v_lshlrev_b32 v5, 6, v5")
    a("s_lshr_b32 s20, s33, 1")
    a("s_lshl_b32 s20, s20, 7")
    a("v_add_u32 v5, s20, v5")
    a("v_cmp_gt_u32 vcc, 2, v1")
    a("s_lshr_b32 s38, s31, 2")
    a("v_cndmask_b32 v4, v5, v4, vcc")
    a("s_lshl_b32 s38, s38, 11")
    a(f"s_add_u32 s38, s38, {WS_FKV}")
    a("s_lshl_b32 s34, s31, 5")
    a("s_add_u32 s34, s34, s33")
    a("s_lshl_b32 s34, s34, 11")
    a(f"s_add_u32 s34, s34, {WS_QF}")
    a("s_add_u32 s35, s22, 65536")
    a("s_mov_b32 m0, s4")
    if EARLYP:
        a(f"buffer_load_dword v6, v4, s[12:15], s38 offen{PLKV}")
        a("s_waitcnt vmcnt(1)")
        a("s_mov_b64 exec, 1")
        a(f"ds_add_u32 v11, v12 offset:{F_W1B}")
        a("s_mov_b64 exec, -1")
        stamp(a, 5)
        a("s_waitcnt vmcnt(0)")
        a("v_cmp_ne_u32 vcc, 1, v6")
        a("s_nop 4")
        a("s_cbranch_vccz a_kv_ok")
    a(f"v_mov_b32 v7, {L_FLAGS + F_ST}")
    poll_lds(a, "a_st", 7, 5, "s_cmp_ge_u32 s20, 4", sleep=2)
    stamp(a, 12)
    stamp(a, 5, 4)
    if PDELAY:
        a(f"s_sleep {PDELAY}")
    poll_global(a, "a_kv", 4, 12, "s38", 1, 6, PSLEEP, sc=PLKV)
    stamp(a, 6)
    stamp(a, 6, 4)
    a(f"buffer_load_dwordx4 {vr(K0, 4)}, v3, s[12:15], s22 offen{LDKV}")
    a(f"buffer_load_dwordx4 {vr(QA, 4)}, v3, s[12:15], s34 offen{LDKV}")
    a(f"buffer_load_dwordx4 {vr(QB, 4)}, v3, s[12:15], s34 offen offset:1024{LDKV}")
    stamp(a, 7)
    for part in range(2):
        if part:
            a(f"s_add_u32 m0, s4, {part * 4096}")
            a("s_nop 0")
        for i in range(4):
            a(f"buffer_load_dwordx4 v3, s[12:15], s{(22, 35)[part]} offen offset:{i*1024}{LDKV} lds")
    a(f"s_add_u32 s20, s27, {L_FLAGS + F_KVL}")
    a("v_mov_b32 v2, s20")
    a("v_mov_b32 v152, 1")
    a(f"v_mov_b32 v153, {L_FLAGS}")
    a("s_waitcnt vmcnt(9)")
    stamp(a, 7, 4)
    a(f"{MFMA} {vr(SA, 16)}, {vr(K0, 4)}, {vr(QA, 4)}, 0")
    a("s_waitcnt vmcnt(8)")
    a(f"{MFMA} {vr(SB, 16)}, {vr(K0, 4)}, {vr(QB, 4)}, 0")
    a("s_mov_b64 vcc, -1")
    a("s_nop 9")
    def rowmax(v, S, first):
        if first:
            a(f"v_max3_f32 v{v}, v{S}, v{S+1}, v{S+2}")
            for r in range(3, 15, 2):
                a(f"v_max3_f32 v{v}, v{v}, v{S+r}, v{S+r+1}")
            a(f"v_max_f32 v{v}, v{v}, v{S+15}")
        else:
            for r in range(0, 16, 2):
                a(f"v_max3_f32 v{v}, v{v}, v{S+r}, v{S+r+1}")
    def rowmax_step():
        rowmax(4, SA, False)
        rowmax(6, SB, False)
    def rowmax_fin(v, NM):
        a(f"v_mov_b32 v{v+1}, v{v}")
        a("s_nop 1")
        a(f"v_permlane32_swap_b32 v{v}, v{v+1}")
        a("s_nop 1")
        a(f"v_min_f32 v{v}, -v{v}, -v{v+1}")
        a(f"v_mov_b32 v{v+1}, v{v}")
        for r in range(0, 16, 2):
            a(f"v_mov_b64 {vr(NM+r, 2)}, {vr(v, 2)}")
    rowmax(4, SA, True)
    rowmax_fin(4, NMA)
    rowmax(6, SB, True)
    a(f"{MFMA} {vr(SA, 16)}, {vr(K0, 4)}, {vr(QA, 4)}, {vr(NMA, 16)}")
    rowmax_fin(6, NMB)
    stamp(a, 8, 4)
    a("s_waitcnt vmcnt(0)")
    stamp(a, 9, 4)
    Kb = [K0, K1]
    Vb = [V0, V1]
    def first_reads():
        a(f"ds_read_b128 {vr(V1+4, 4)}, v{VA} offset:512")
        a(f"ds_read_b128 {vr(V0, 4)}, v{VA}")
        a(f"ds_read_b128 {vr(K1, 4)}, v{KA} offset:1024")
        a(f"ds_read_b128 {vr(V0+4, 4)}, v{VA} offset:512")
    first_reads()
    a("s_mov_b64 exec, 1")
    a("ds_add_u32 v2, v152")
    a(f"ds_add_u32 v153, v152 offset:{F_AS}")
    a("s_mov_b64 exec, -1")
    if os.environ.get("APRIO"): a(f"s_setprio {os.environ['APRIO']}")
    a.label("a_start")
    a("s_waitcnt lgkmcnt(0)")
    stamp(a, 8)
    a.raw(".p2align 6")
    a.label("a_loop")
    for u in range(8):
        cur, nxt = u & 1, (u + 1) & 1
        kread = f"ds_read_b128 {vr(Kb[cur], 4)}, v{(KA, KB, KA)[(u+2) >> 2]} offset:{((u+2) & 3)*1024}"
        va, vo = (VA, VB, VA)[(u + 1) >> 2], ((u + 1) & 3) * 1024
        s4 = {1: "s_cbranch_vccnz a_sp2", 2: "s_bfe_u32 s8, s26, s25", 5: "s_cbranch_vccnz a_sp6", 7: f"s_cmp_lt_u32 s25, {0x30000 + 36}"}.get(u)
        s5 = {2: "s_add_u32 s25, s25, 4"}.get(u)
        for ph in range(2):
            S = (SA, SB)[ph]
            e = lambda r: a(f"v_exp_f32 v{S+r}, v{S+r}")
            c = lambda j: a(f"v_cvt_pk_bf16_f32 v{P+j}, v{S+2*j}, v{S+2*j+1}")
            if ph == 0:
                a(f"{MFMA} {vr(SB, 16)}, {vr(Kb[cur], 4)}, {vr(QB, 4)}, {vr(NMB, 16)}")
                a(kread)
                for r in range(5): e(r)
                a(f"{MFMA} {vr(OB, 16)}, {vr(Vb[nxt]+4, 4)}, {vr(P+4, 4)}, {vr(OB, 16)}")
                a(f"ds_read_b128 {vr(Vb[nxt], 4)}, v{va} offset:{vo}")
                for r in range(5, 8): e(r)
                for j in range(4): c(j)
                e(8); e(9)
                a(f"{MFMA} {vr(OA, 16)}, {vr(Vb[cur], 4)}, {vr(P, 4)}, {vr(OA, 16)}")
                a(f"ds_read_b128 {vr(Vb[nxt]+4, 4)}, v{va} offset:{vo+512}")
                for r in range(10, 16): e(r)
                for j in range(4, 8): c(j)
            else:
                a(f"{MFMA} {vr(SA, 16)}, {vr(Kb[nxt], 4)}, {vr(QA, 4)}, {vr(NMA, 16)}")
                if s4:
                    a(s4)
                    if "a_sp" in s4:
                        a.label(f"a_back{u+1}")
                for r in range(5): e(r)
                a(f"{MFMA} {vr(OA, 16)}, {vr(Vb[cur]+4, 4)}, {vr(P+4, 4)}, {vr(OA, 16)}")
                if s5: a(s5)
                for r in range(5, 8): e(r)
                for j in range(4): c(j)
                e(8); e(9)
                a(f"{MFMA} {vr(OB, 16)}, {vr(Vb[cur], 4)}, {vr(P, 4)}, {vr(OB, 16)}")
                a("s_waitcnt lgkmcnt(0)")
                for r in range(10, 16): e(r)
                for j in range(4, 8): c(j)
                if u == 3:
                    a(f"v_lshl_add_u32 v{KA}, s8, 14, v{KL}")
                    a(f"v_mad_u32_u24 v{VA}, s8, v{M14}, v{VL}")
                if u == 6:
                    a(f"v_xor_b32 v{KB}, 0x2000, v{KA}")
                    a(f"v_xor_b32 v{VB}, v{X2K}, v{VA}")
    a("s_cbranch_scc1 a_loop")
    a("s_branch a_loopend")
    a.label("a_sp2")
    a(f"s_cmp_lg_u32 s25, {0x30000 + 4}")
    a("s_cbranch_scc1 a_back2")
    stamp(a, 10, 4)
    poll_lds(a, "a_pair", 2, 5, "s_cmp_ge_u32 s20, 2")
    stamp(a, 11, 4)
    a("s_branch a_back2")
    a.label("a_sp6")
    a("s_xor_b32 s20, s27, 4")
    a(f"s_add_u32 s20, s20, {F_KVL}")
    a(f"s_cmp_eq_u32 s25, {0x30000 + 8}")
    a(f"s_cselect_b32 s20, s20, {F_KVS}")
    a(f"s_cselect_b32 s21, 2, 4")
    a("s_cselect_b64 vcc, -1, 0")
    a(f"s_add_u32 s20, s20, {L_FLAGS}")
    a("v_mov_b32 v4, s20")
    poll_lds(a, "a_all", 4, 5, "s_cmp_ge_u32 s20, s21")
    if PROF == 1:
        a("s_mov_b32 s73, s74")
        stamp(a, 10)
    a("s_branch a_back6")
    a.label("a_loopend")
    a(f"{MFMA} {vr(OB, 16)}, {vr(Vb[1]+4, 4)}, {vr(P+4, 4)}, {vr(OB, 16)}")
    stamp(a, 11)
    stamp(a, 2, 3)
    a("s_waitcnt lgkmcnt(0)")
    a("s_lshl_b32 s20, s33, 6")
    a("s_add_u32 s20, s20, s31")
    a("s_lshl_b32 s20, s20, 10")
    a(f"s_add_u32 s20, s20, {WS_OF}")
    a(f"s_add_u32 s21, s20, {32*1024}")
    a("s_nop 8")
    a("s_cmp_lg_u32 s36, 0")
    a("s_cbranch_scc1 a_fin")
    a(f"v_add_f32 v7, v{OA+8}, v{OB+8}")
    a(f"v_cmp_nge_f32 vcc, {f32(2.0**60)}, v7")
    a("s_nop 4")
    a("s_cbranch_vccz a_fin")
    a("s_mov_b32 s36, 1")
    a(f"v_mov_b32 v4, {f32(-3.0e38)}")
    a(f"v_mov_b32 v6, {f32(-3.0e38)}")
    a("s_mov_b32 s37, 0")
    a.label("a_mx")
    a("s_lshr_b32 s20, s37, 2")
    a("s_lshl_b32 s20, s20, 13")
    a("s_and_b32 s21, s37, 3")
    a("s_lshl_b32 s21, s21, 10")
    a("s_add_u32 s20, s20, s21")
    a("v_add_u32 v5, s20, v3")
    a(f"ds_read_b128 {vr(K0, 4)}, v5")
    a("s_waitcnt lgkmcnt(0)")
    a(f"{MFMA} {vr(SA, 16)}, {vr(K0, 4)}, {vr(QA, 4)}, 0")
    a(f"{MFMA} {vr(SB, 16)}, {vr(K0, 4)}, {vr(QB, 4)}, 0")
    a("s_nop 15")
    rowmax_step()
    a("s_add_u32 s37, s37, 1")
    a("s_cmp_lt_u32 s37, 64")
    a("s_cbranch_scc1 a_mx")
    rowmax_fin(4, NMA)
    rowmax_fin(6, NMB)
    zero_o()
    first_addrs()
    a("s_mov_b64 vcc, 0")
    a(f"ds_read_b128 {vr(K0, 4)}, v{KA}")
    first_reads()
    a("s_waitcnt lgkmcnt(0)")
    a(f"{MFMA} {vr(SA, 16)}, {vr(K0, 4)}, {vr(QA, 4)}, {vr(NMA, 16)}")
    a("s_nop 15")
    a("s_branch a_start")
    a.label("a_fin")
    for i, O in enumerate((OA, OB)):
        a(f"v_rcp_f32 v6, v{O+8}")
        a("s_nop 0")
        for r in range(8):
            a(f"v_mul_f32 v{O+r}, v{O+r}, v6")
        for j in range(4):
            a(f"v_cvt_pk_bf16_f32 v{P+4*i+j}, v{O+2*j}, v{O+2*j+1}")
        for j in range(4):
            a(f"v_min_u32 v{P+4*i+j}, 0xfffeffff, v{P+4*i+j}")
        a(f"buffer_store_dwordx4 {vr(P+4*i, 4)}, v3, s[12:15], s{20+i} offen sc1")
    a(f"v_mov_b32 v4, {L_FLAGS + 48}")
    a("v_mov_b32 v6, 1")
    a("s_mov_b64 exec, 1")
    a("ds_add_u32 v4, v6")
    a("s_mov_b64 exec, -1")
    a("s_waitcnt lgkmcnt(0)")
    if PROF == 3:
        stamp(a, 3, 3)
        a("s_waitcnt vmcnt(0)")
    dump_stamps(a)
    a("s_endpgm")


def code_warm(a, lab):
    a("s_getpc_b64 s[84:85]")
    a.label(lab)
    a(f"s_sub_u32 s84, s84, {lab} - {NAME}_kernel")
    a("s_subb_u32 s85, s85, 0")
    a("s_lshl_b32 s86, s29, 2")
    a("s_add_u32 s86, s86, s30")
    a("s_lshl_b32 s86, s86, 6")
    for i in range(WARMG):
        a(f"s_add_u32 s87, s86, {WARMG0 + i*8192}")
        a(f"s_min_u32 s87, s87, k_exit - {NAME}_kernel")
        a(f"s_load_dword s{98+(i % 2)}, s[84:85], s87")


def gen_g(a):
    a("s_sub_u32 s30, s30, 4                    ; g")
    if WARMG:
        code_warm(a, "g_pc")
    a("s_lshl_b32 s34, s31, 2")
    a("s_add_u32 s34, s34, s30")
    a("v_lshlrev_b32 v4, 2, v1")
    a(f"v_add_u32 v4, {L_FLAGS}, v4")
    a("v_mov_b32 v5, 0")
    a("ds_write_b32 v4, v5")
    X = 128
    ACC = 64
    WA, WB = 32, 48
    SR = WA if SENT < 0 else ACC + 48
    for r in range(4):
        a(f"v_mov_b32 v{SR+r}, -1")
    a("s_lshl_b32 s20, s34, 5")
    a("s_lshl_b32 s21, s32, 1")
    a("s_add_u32 s20, s20, s21")
    a("s_lshl_b32 s20, s20, 10")
    a(f"s_add_u32 s42, s20, {WS_OF}")
    def sentinel():
        if not os.environ.get("NOSENT"):
            a(f"buffer_store_dwordx4 {vr(SR, 4)}, v3, s[12:15], s42 offen sc1")
            a(f"buffer_store_dwordx4 {vr(SR, 4)}, v3, s[12:15], s42 offen offset:1024 sc1")
    if SENT < 0:
        sentinel()
    a("s_cmp_ge_u32 s2, 8")
    a("s_cbranch_scc1 g_noreset")
    for r in range(4):
        a(f"v_mov_b32 v{WB+r}, 0")
    a("s_lshl_b32 s20, s2, 2")
    a("s_add_u32 s20, s20, s30")
    a("s_lshl_b32 s20, s20, 10")
    a(f"s_add_u32 s20, s20, {WS_FL}")
    a(f"buffer_store_dwordx4 {vr(WB, 4)}, v3, s[12:15], s20 offen sc1")
    a.label("g_noreset")
    a("v_and_b32 v5, 31, v1                     ; t")
    a("v_lshrrev_b32 v6, 5, v1                  ; hh")
    a("v_bfe_u32 v7, v1, 1, 3")
    a("s_lshl_b32 s20, s30, 12")
    a("v_lshl_add_u32 v12, v5, 7, s20")
    for s in range(4):
        a(f"v_add_u32 v13, {2*s}, v6")
        a("v_xor_b32 v13, v13, v7")
        a(f"v_lshl_add_u32 v{8+s}, v13, 4, v12")
    a("v_bfe_u32 v13, v1, 4, 1")
    a("v_lshlrev_b32 v13, 5, v13")
    a("v_and_b32 v14, 3, v1")
    a("v_lshl_add_u32 v13, v14, 3, v13          ; colhalf*32 + c4*8")
    a("v_bfe_u32 v14, v1, 2, 2                  ; r")
    a("v_lshl_add_u32 v13, v14, 6, v13          ; + r*64")
    a("v_lshl_add_u32 v12, v6, 9, v13")
    a("v_lshl_add_u32 v14, v6, 8, v13")
    for r in range(ACC, ACC + 48):
        a(f"v_mov_b32 v{r}, 0")

    for s_ in range(4):
        a(f"v_add_u32 v{24+s_}, {3*STG}, v{8+s_}")
    a("v_add_u32 v28, 0x10000, v12")
    a("v_add_u32 v29, 0x20000, v12")

    lk = VM("lgkmcnt", 15)

    def stream(first, last, ncb, D, xfirst, bars, hook=None):
        items = [(n, s, c) for n in range(first, last + 1) for s in range(4) for c in range(ncb)]
        if KVFIRST and last == 7:
            items = items[:-12] + [(7, s, c) for s in range(4) for c in range(2)] + [(7, s, 2) for s in range(4)]
        def R(k):
            n, s, c = items[k]
            if s == 0 and c == 0 and n in bars:
                a("s_barrier")
                if PROF == 2 and bars[n] is not None:
                    stamp(a, bars[n], 2)
                    lk.clear()
            if n < 8:
                st = n % 5
                page = 7 * st + 4 + c
                if c == 0:
                    xb, xo = (8 + s, st * STG) if st < 3 else (24 + s, (st - 3) * STG)
                    a(f"ds_read_b128 {vr(X + 16*n + 4*s, 4)}, v{xb} offset:{xo}")
                    lk.op(k)
            else:
                page = W1_PAGES[n][c]
            b = (12, 28, 29)[page >> 4]
            o = (page & 15) * 4096 + s * 1024
            w = WA + 4 * (k % 8)
            a(f"ds_read_b64_tr_b16 {vr(w, 2)}, v{b} offset:{o}")
            a(f"ds_read_b64_tr_b16 {vr(w+2, 2)}, v{b} offset:{o + 256}")
            lk.op(k, 2)
            assert len(lk.q) <= 15
        for k in range(D):
            R(k)
        for k, (n, s, c) in enumerate(items):
            lk.wait(a, k)
            xf = vr(X + 16 * (n & 7) + 4 * s, 4)
            w = vr(WA + 4 * (k % 8), 4)
            d = vr(ACC + 16 * c, 16)
            if xfirst(c):
                a(f"{MFMA} {d}, {xf}, {w}, {d}")
            else:
                a(f"{MFMA} {d}, {w}, {xf}, {d}")
            if k + D < len(items):
                R(k + D)
            if hook:
                hook(n, s, c)

    def pack(b):
        for j in range(8):
            a(f"v_cvt_pk_bf16_f32 v{b+j}, v{b+2*j}, v{b+2*j+1}")

    BI = 32
    def bias_reads():
        for c in range(4):
            for q in range(0, 4, 2):
                d = BI + 2 * (c * 4 + q)
                a(f"ds_read2_b64 {vr(d, 4)}, v15 offset0:{(c*64 + q*16)//8} offset1:{(c*64 + q*16 + 16)//8}")

    a(f"v_lshlrev_b32 v15, 3, v6")
    a(f"v_add_u32 v15, {L_BIAS}, v15")
    a("v_mov_b32 v16, 0")
    a("v_mov_b32 v22, 1")
    a("s_lshr_b32 s35, s32, 1")
    a("s_lshl_b32 s35, s35, 2")
    a("s_lshl_b32 s38, s35, 7")
    a("s_add_u32 s38, s38, s34")
    a("s_lshl_b32 s38, s38, 10")
    a(f"s_add_u32 s38, s38, {WS_KV}")
    a("s_lshl_b32 s22, s28, 2")
    a("s_lshr_b32 s20, s29, 3")
    a("s_add_u32 s22, s22, s20                  ; h")
    a("s_and_b32 s21, s29, 7")
    a("s_lshl_b32 s21, s21, 1")
    a("s_mul_i32 s40, s30, 3                    ; i0 = 3g")
    a("s_add_u32 s21, s21, s40")
    a("s_add_u32 s41, s21, 4")
    a("s_lshr_b32 s23, s22, 2")
    a("s_lshl_b32 s23, s23, 11")
    a(f"s_add_u32 s23, s23, {WS_FKV}")
    a("s_lshl_b32 s22, s22, 17")
    a(f"s_add_u32 s22, s22, {WS_KV}")
    a("s_lshr_b32 s20, s30, 1")
    a("s_lshl_b32 s20, s20, 2")
    a("s_add_u32 s40, s40, s20")
    a("s_lshl_b32 s40, s40, 13")
    a("v_min_u32 v31, 5, v1")
    a("v_lshlrev_b32 v31, 6, v31")
    a("s_lshl_b32 s20, s41, 7")
    a("v_add_u32 v31, s20, v31")
    a("v_and_b32 v31, 0x7ff, v31")
    TOUCH = os.environ.get("TOUCH", "0")
    def touch(tag):
        a("v_lshlrev_b32 v30, 20, v1")
        a("s_cmp_eq_u32 s30, 0")
        a(f"s_cbranch_scc0 g_t1{tag}")
        a("s_mov_b64 exec, 0xffff")
        a("buffer_load_dword v23, v30, s[12:15], 0 offen")
        a("s_mov_b64 exec, -1")
        a.label(f"g_t1{tag}")
        a("s_cmp_eq_u32 s30, 1")
        a(f"s_cbranch_scc0 g_t2{tag}")
        a("s_mov_b64 exec, 3")
        a("buffer_load_dword v23, v30, s[4:7], 0 offen")
        a("buffer_load_dword v23, v30, s[8:11], 0 offen")
        a("s_mov_b64 exec, -1")
        a.label(f"g_t2{tag}")
        a("s_cmp_eq_u32 s30, 2")
        a(f"s_cbranch_scc0 g_t3{tag}")
        a("s_mov_b64 exec, 3")
        a("buffer_load_dword v23, v30, s[16:19], 0 offen")
        a("buffer_load_dword v23, v30, s[80:83], 0 offen")
        a("s_mov_b64 exec, -1")
        a.label(f"g_t3{tag}")
    srd(a, 4, P_W2, 1835008)
    srd(a, 8, P_WO, 524288)
    srd(a, 16, P_B2, 1024)
    srd(a, 80, P_OUT, 2097152)
    srd(a, 84, P_W1, 1835008)
    a("v_lshrrev_b32 v19, 2, v1")
    a("v_and_b32 v20, 3, v1")
    a("v_mul_u32_u24 v30, 3584, v19")
    a("v_lshl_add_u32 v21, v20, 6, v30")
    a("v_lshl_add_u32 v30, v20, 4, v30")
    a(f"s_mul_i32 s39, s30, {16*3584}")
    a("s_lshl_b32 s20, s32, 8")
    a("s_add_u32 s39, s39, s20")
    a("s_lshl_b32 s88, s30, 10")
    a("s_and_b32 s89, s29, 7")
    a(f"s_mul_i32 s89, s89, {64*3584}")
    a("s_add_u32 s89, s89, s39")
    def w1touch(tag):
        a("s_cmp_ge_u32 s32, 14")
        a(f"s_cbranch_scc1 g_w1t{tag}")
        a("buffer_load_dword v23, v21, s[84:87], s89 offen")
        a.label(f"g_w1t{tag}")
    if W1T == -1:
        w1touch("s")
    if TOUCH == "1":
        touch("a")
    if TOUCH == "3":
        srd(a, 84, P_B1, 3584)
        a("s_cmp_eq_u32 s30, 3")
        a("s_cbranch_scc0 g_t4")
        a("s_mov_b64 exec, 1")
        a("buffer_load_dword v23, v16, s[84:87], 0 offen")
        a("buffer_load_dword v23, v16, s[24:27], 0 offen offset:128")
        a("s_mov_b64 exec, -1")
        a.label("g_t4")
    a(f"v_mov_b32 v17, {L_FLAGS}")
    a("s_waitcnt lgkmcnt(0)")
    bars = {n: 2 + n for n in range(8)}
    def thook(tag):
        def h(n, s, c):
            if (n, s, c) == (SENT, 2, 0):
                sentinel()
            if (n, s, c) == (W1T, 0, 0):
                w1touch(tag)
            if TOUCH == "2" and (n, s, c) == (1, 0, 0):
                touch(tag)
            if (n, s, c) == (0, 1, 0):
                a("s_cmp_ge_u32 s2, 8")
                a(f"s_cbranch_scc1 g_nocnt{tag}")
                a("s_waitcnt vmcnt(0)")
                a("s_mov_b64 exec, 1")
                a("buffer_atomic_add v22, v16, s[24:27], 0 offen sc1")
                a("s_mov_b64 exec, -1")
                a.label(f"g_nocnt{tag}")
        return h
    a("s_bitcmp1_b32 s32, 0")
    a("s_cbranch_scc1 g_vpath")
    stream(0, 7, 3, 6, lambda c: False, bars, thook("k"))
    stamp(a, 3)
    stamp(a, 2, 5)
    if not KVFIRST: a("s_nop 7")
    for c in range(2):
        bk = ACC + 16 * c
        pack(bk)
        for u in range(2):
            a(f"s_add_u32 s20, s38, {(2*c + u) * 131072}")
            a(f"buffer_store_dwordx4 {vr(bk+4*u, 4)}, v3, s[12:15], s20 offen{STKV}")
    a("s_branch g_qpath")
    a.label("g_vpath")
    lk.clear()
    stream(0, 7, 3, 6, lambda c: c < 2, bars, thook("v"))
    stamp(a, 3)
    stamp(a, 2, 5)
    if not KVFIRST: a("s_nop 7")
    a("v_bfe_u32 v20, v1, 4, 1")
    a("v_lshlrev_b32 v20, 17, v20")
    a("v_lshl_add_u32 v20, v6, 8, v20")
    a("v_and_b32 v21, 15, v1")
    a("v_lshl_add_u32 v20, v21, 4, v20")
    for c in range(2):
        bv = ACC + 16 * c
        pack(bv)
        a(f"s_add_u32 s20, s38, {65536 + 2*c*131072}")
        a(f"buffer_store_dwordx4 {vr(bv, 4)}, v20, s[12:15], s20 offen{STKV}")
        a(f"buffer_store_dwordx4 {vr(bv+4, 4)}, v20, s[12:15], s20 offen offset:512{STKV}")
    a.label("g_qpath")
    stamp(a, 3, 5)
    bq = ACC + 32
    a(f"s_mov_b32 s36, {f32(QSCALE)}")
    for r in range(16):
        a(f"v_mul_f32 v{bq+r}, s36, v{bq+r}")
    pack(bq)
    a("s_lshl_b32 s20, s32, 7")
    a("s_add_u32 s20, s20, s34")
    a("s_lshl_b32 s20, s20, 10")
    a(f"s_add_u32 s20, s20, {WS_QF}")
    a(f"s_add_u32 s21, s20, 65536")
    a(f"buffer_store_dwordx4 {vr(bq, 4)}, v3, s[12:15], s20 offen{STKV}")
    a(f"buffer_store_dwordx4 {vr(bq+4, 4)}, v3, s[12:15], s21 offen{STKV}")
    a("s_lshl_b32 s36, s31, 4")
    a("s_add_u32 s36, s36, s32")
    a("s_lshl_b32 s36, s36, 6")
    a(f"s_add_u32 s36, s36, {WS_FH}               ; FH[rg][j]")
    a("s_lshl_b32 s35, s35, 2                   ; quad*16")
    a("s_add_u32 s35, s35, s31")
    a("s_lshl_b32 s35, s35, 1")
    a("s_and_b32 s20, s32, 1")
    a("s_add_u32 s35, s35, s20")
    a("s_lshl_b32 s35, s35, 6")
    a(f"s_add_u32 s35, s35, {WS_FKV}              ; FKV[quad][rg][par]")
    stamp(a, 4)
    stamp(a, 2, 4)
    stamp(a, 4, 5)

    def send_flag(sreg, younger=0):
        a(f"s_waitcnt vmcnt({younger})")
        a("s_mov_b64 exec, 1")
        a(f"ds_add_rtn_u32 v18, v17, v22 offset:{F_ST}")
        a("s_waitcnt lgkmcnt(0)")
        a("v_cmp_eq_u32 vcc, 3, v18")
        a("s_nop 4")
        a("s_and_b64 exec, exec, vcc")
        lab = f"g_pub{len(a.lines)}"
        a(f"s_cbranch_execz {lab}")
        a(f"buffer_store_dword v22, v16, s[12:15], {sreg} offen{STKV}")
        a.label(lab)
        a("s_mov_b64 exec, -1")

    a("s_cmp_ge_u32 s32, 14")
    a("s_cbranch_scc1 g_noffn1")
    a("s_barrier                                ; B8")
    stamp(a, 10, 2)
    stamp(a, 3, 4)
    stamp(a, 5, 5)
    bias_reads()
    a("s_waitcnt lgkmcnt(0)                     ; bias")
    stamp(a, 6, 5)
    for c in range(4):
        for q in range(4):
            d = BI + 2 * (c * 4 + q)
            r = ACC + 16 * c + 4 * q
            a(f"v_lshlrev_b32 v{r}, 16, v{d}")
            a(f"v_and_b32 v{r+1}, 0xffff0000, v{d}")
            a(f"v_lshlrev_b32 v{r+2}, 16, v{d+1}")
            a(f"v_and_b32 v{r+3}, 0xffff0000, v{d+1}")
        stamp(a, 7 + c, 5)
    a("s_mov_b32 s37, 0")
    if LATE8:
        send_flag("s35")
        stamp(a, 5)
        a(f"v_mov_b32 v19, {L_FLAGS + F_W1Z}")
        poll_lds(a, "g_w1z", 19, 20, "s_cmp_ge_u32 s20, 4", sleep=1)
    a(f"s_setprio {GP0}")
    lk.clear()
    def lds_signal(off):
        a("s_mov_b64 exec, 1")
        a(f"ds_add_u32 v17, v22 offset:{off}")
        a("s_mov_b64 exec, -1")
        lk.op("sig")
    dma = {45: (15, 3)}
    if GW1:
        for q in range(15):
            dma[q * GSTEP] = (12 + q // 4, q % 4)
        assert 14 * GSTEP < 44
    nl = [0]
    def hook(n, s, c):
        k = (n - 8) * 16 + s * 4 + c
        if k in dma:
            m, i = dma[k]
            if i in (0, 3) or not GW1:
                a(f"s_add_u32 s21, s33, {m & 7}")
                a("s_and_b32 s21, s21, 7")
                a(f"s_mul_i32 s89, s21, {64*3584}")
                a("s_add_u32 s89, s89, s39")
            a(f"s_add_u32 m0, s88, {W1_PAGES[m][i]*4096}")
            a(f"s_add_u32 s20, s89, {i*64}")
            a("buffer_load_dwordx4 v30, s[84:87], s20 offen lds")
            nl[0] += 1
        if k == 104:
            a(f"buffer_load_dword v23, v31, s[12:15], s23 offen{PLKV}")
            nl[0] += 1
        if k <= PUBK and k % 4 == 3 and not LATE8:
            lab = f"g_fl{k}"
            a("s_cmp_eq_u32 s37, 0")
            a(f"s_cbranch_scc0 {lab}")
            if k < PUBK:
                a("s_getreg_b32 s20, hwreg(HW_REG_IB_STS)")
                a("s_lshr_b32 s21, s20, 18")
                a("s_and_b32 s21, s21, 0x30")
                a("s_and_b32 s20, s20, 15")
                a("s_or_b32 s20, s20, s21")
                a(f"s_cmp_le_u32 s20, {nl[0]}")
                a(f"s_cbranch_scc0 {lab}")
            send_flag("s35", nl[0])
            a("s_mov_b32 s37, 1")
            stamp(a, 5)
            a.label(lab)
        if GW1:
            chk = ((-1, 24, F_W1, 0), (15, 44, F_C8, 0), (46, 56, F_W1B, 8), (78, 88, F_W1C, 16))
        else:
            chk = ((-1, 24, F_W1, 0), (15, 44, F_C8, 0), (-1, 72, F_W1B, 0), (84, 100, F_W1C, 1))
        for ks, kc, off, cnt in (((-1, 8, F_W1A, 0),) if LATE9 else ()) + chk:
            if k == ks:
                if cnt:
                    a(f"s_waitcnt vmcnt({nl[0] - cnt})")
                lds_signal(off)
            if k == kc - 3:
                a(f"ds_read_b32 v20, v17 offset:{off}")
                lk.op("w1")
            if k == kc:
                lk.wait(a, "w1")
                a("v_readfirstlane_b32 s20, v20")
                a("s_nop 3")
                a("s_cmp_ge_u32 s20, 4")
                a(f"s_cbranch_scc1 g_w1ok{kc}")
                a(f"v_mov_b32 v19, {L_FLAGS + off}")
                poll_lds(a, f"g_w1{kc}", 19, 20, "s_cmp_ge_u32 s20, 4", sleep=1)
                a.label(f"g_w1ok{kc}")
        if PROF == 5 and k in (0, 12):
            stamp(a, 11 + (k > 0), 5)
            lk.clear()
        if PROF == 4 and k in P4:
            stamp(a, 4 + P4.index(k), 4)
            lk.clear()
    P4 = (0, 12, 23, 24, 48, 71, 72, 100, 127)
    PUBK = 43
    FD = 6
    assert 32 - FD > 24 and 80 - FD > 72 and 112 - FD > 100
    assert 64 - FD > 56 and 96 - FD > 88
    stream(8, 15, 4, FD, lambda c: False, {}, hook)
    stamp(a, 6)
    a(f"s_setprio {GP1}")
    lds_signal(F_F7)
    a("s_mul_i32 s90, s34, 112")
    a("s_lshl_b32 s21, s32, 3")
    a("s_add_u32 s90, s90, s21")
    a("s_lshl_b32 s90, s90, 10")
    a(f"s_add_u32 s90, s90, {WS_HF}")
    a("s_add_u32 s91, s90, 4096")
    def epi(c, st=True):
        b = ACC + 16 * c
        for r in range(16):
            a(f"v_max_f32 v{b+r}, 0, v{b+r}")
        for r in range(0, 16, 2):
            a(f"v_pk_mul_f32 {vr(b+r, 2)}, {vr(b+r, 2)}, {vr(b+r, 2)}")
        pack(b)
        if st:
            hst(c)
    def hst(c):
        b = ACC + 16 * c
        for u in range(2):
            a(f"buffer_store_dwordx4 {vr(b+4*u, 4)}, v3, s[12:15], s{90 + (c >> 1)} offen offset:{((c & 1)*2 + u)*1024} sc1")
    for c in range(EPI0):
        epi(c, False)
    a("s_waitcnt vmcnt(0)")
    a("s_branch g_chk")
    a.label("g_noffn1")
    a("s_waitcnt lgkmcnt(0)")
    a("s_barrier                                ; B8")
    send_flag("s35")
    a("s_cmp_eq_u32 s32, 15")
    a("s_cbranch_scc1 g_p1done")
    srd(a, 16, P_GATE, 1024)
    for r in range(16):
        a(f"v_mov_b32 v{ACC+r}, 0")
    a("v_lshlrev_b32 v15, 4, v6                 ; hh*16")
    for n in range(8):
        a(f"s_add_u32 s21, s33, {n}")
        a("s_and_b32 s21, s21, 7")
        a("s_lshl_b32 s21, s21, 7")
        for s in range(4):
            a(f"buffer_load_dwordx4 {vr(WA + 4*s, 4)}, v15, s[16:19], s21 offen offset:{s*32}")
        a("s_waitcnt vmcnt(0)")
        for s in range(4):
            a(f"{MFMA} {vr(ACC, 16)}, {vr(WA + 4*s, 4)}, {vr(X + 16*n + 4*s, 4)}, {vr(ACC, 16)}")
    a("s_nop 15")
    a("v_lshlrev_b32 v15, 2, v1")
    a("s_lshl_b32 s20, s34, 7")
    a(f"s_add_u32 s20, s20, {WS_G}")
    a("s_mov_b32 exec_hi, 0")
    a(f"buffer_store_dword v{ACC}, v15, s[12:15], s20 offen sc1")
    a("s_mov_b64 exec, -1")
    a.label("g_p1done")
    lds_signal(F_F7)
    a(f"buffer_load_dword v23, v31, s[12:15], s23 offen{PLKV}")
    a("s_waitcnt vmcnt(0)")
    a.label("g_chk")
    if ASW:
        a(f"v_mov_b32 v8, {L_FLAGS + F_AS}")
        poll_lds(a, "g_as", 8, 9, "s_cmp_ge_u32 s20, 4", sleep=4)
    a("v_cmp_ne_u32 vcc, 1, v23")
    a("s_nop 4")
    a("s_cbranch_vccz g_kv_ok")
    poll_global(a, "g_kv", 31, 12, "s23", 1, 23, KSLEEP, sc=PLKV)
    a(f"v_mov_b32 v8, {L_FLAGS + F_F7}")
    poll_lds(a, "g_f7", 8, 9, "s_cmp_ge_u32 s20, 4", sleep=2)
    for hs in range(3):
        a(f"s_add_u32 s21, s41, {hs}")
        a("s_and_b32 s21, s21, 15")
        a("s_lshl_b32 s21, s21, 12")
        a("s_add_u32 s21, s21, s22")
        for part in range(2):
            a(f"s_add_u32 m0, s40, {hs * 8192 + part * 4096}")
            a(f"s_add_u32 s20, s21, {part * 65536}")
            for i in range(4):
                a(f"buffer_load_dwordx4 v3, s[12:15], s20 offen offset:{i*1024}{LDKV} lds")
    a("s_cmp_ge_u32 s32, 14")
    a("s_cbranch_scc1 g_nohst")
    for c in range(4):
        if c < EPI0:
            hst(c)
        else:
            epi(c)
    a("s_waitcnt vmcnt(8)")
    lds_signal(F_KVS)
    a("s_waitcnt vmcnt(0)")
    a("s_branch g_hst")
    a.label("g_nohst")
    a("s_waitcnt vmcnt(0)")
    lds_signal(F_KVS)
    a.label("g_hst")
    a("s_mov_b64 exec, 1")
    a(f"ds_add_rtn_u32 v10, v17, v22 offset:{F_HS}")
    a("s_waitcnt lgkmcnt(0)")
    a("v_readfirstlane_b32 s20, v10")
    a("s_nop 3")
    a("s_cmp_lg_u32 s20, 3")
    a("s_cbranch_scc1 g_nohpub")
    a("buffer_store_dword v22, v16, s[12:15], s36 offen sc1")
    a.label("g_nohpub")
    a("s_mov_b64 exec, -1")
    stamp(a, 7)
    a(f"s_setprio {GP2}")
    if os.environ.get("GEXIT"):
        dump_stamps(a)
        a("s_endpgm")
    srd(a, 4, P_W2, 1835008)
    srd(a, 8, P_WO, 524288)
    srd(a, 16, P_B2, 1024)
    srd(a, 24, P_OUT, 2097152)
    a("s_lshl_b32 s31, s28, 2")
    a("s_lshr_b32 s20, s29, 3")
    a("s_add_u32 s31, s31, s20                  ; rb")
    a("s_and_b32 s32, s29, 7                    ; cp")
    a("s_and_b32 s38, s30, 1")
    a("s_lshr_b32 s39, s30, 1")
    a("s_lshl_b32 s41, s31, 1")
    a("s_add_u32 s41, s41, s38")
    a("s_xor_b32 s42, s41, 1")
    a("s_lshl_b32 s40, s32, 1")
    a("s_add_u32 s40, s40, s39")
    a("s_xor_b32 s43, s40, 1")
    a("s_mul_i32 s21, s30, 28")
    a("s_lshl_b32 s20, s21, 14")
    a("s_lshl_b32 s33, s40, 6")
    a("s_add_u32 s33, s33, s20")
    a("s_lshl_b32 s35, s43, 6")
    a("s_add_u32 s35, s35, s20")
    a("v_lshrrev_b32 v8, 2, v1")
    a("v_and_b32 v9, 3, v1")
    a("v_lshlrev_b32 v8, 10, v8")
    a("v_lshl_add_u32 v4, v9, 4, v8")
    AF = 16
    HB = 80
    WF = 112
    WO = 128
    ND = 7
    ST = lambda i: 128 + 16 * i
    vm = VM()
    def ldW(k):
        i = k % ND
        a(f"buffer_load_dwordx4 {vr(ST(i), 4)}, v4, s[4:7], s33 offen")
        a(f"buffer_load_dwordx4 {vr(ST(i)+4, 4)}, v4, s[4:7], s35 offen")
        a("s_add_u32 s33, s33, 16384")
        a("s_add_u32 s35, s35, 16384")
        vm.op(("w", k), 2)
    def ldH(k):
        i = k % ND
        a(f"buffer_load_dwordx4 {vr(ST(i)+8, 4)}, v3, s[12:15], s22 offen{LDH}")
        a(f"buffer_load_dwordx4 {vr(ST(i)+12, 4)}, v3, s[12:15], s23 offen{LDH}")
        a("s_add_u32 s22, s22, 1024")
        a("s_add_u32 s23, s23, 1024")
        vm.op(("h", k), 2)
    def ldWo(k):
        a(f"s_add_u32 s20, s98, {k*16384}")
        a(f"buffer_load_dwordx4 {vr(WO+8*k, 4)}, v4, s[8:11], s20 offen")
        a(f"s_add_u32 s20, s99, {k*16384}")
        a(f"buffer_load_dwordx4 {vr(WO+8*k+4, 4)}, v4, s[8:11], s20 offen")
        vm.op(("o", k), 2)
    for k in range(ND):
        ldW(k)
    a("s_lshl_b32 s20, s39, 18")
    a("s_lshl_b32 s98, s40, 6")
    a("s_add_u32 s98, s98, s20")
    a("s_lshl_b32 s99, s43, 6")
    a("s_add_u32 s99, s99, s20")
    ldWo(14)
    ldWo(15)
    for sd, st in ((22, 41), (23, 42)):
        a(f"s_mul_i32 s{sd}, s{st}, 112")
        a(f"s_add_u32 s{sd}, s{sd}, s21")
        a(f"s_lshl_b32 s{sd}, s{sd}, 10")
        a(f"s_add_u32 s{sd}, s{sd}, {WS_HF}")
    a("s_lshl_b32 s34, s30, 12")
    a(f"s_add_u32 s34, s34, {36*4096}")
    a("v_add_u32 v7, s34, v14")
    a("v_add_u32 v12, s34, v3")
    a("v_and_b32 v8, 3, v1")
    a("s_lshr_b32 s20, s21, 3")
    a("v_add_u32 v8, s20, v8")
    a("v_lshlrev_b32 v8, 6, v8")
    a("s_lshr_b32 s36, s31, 1")
    a("s_lshl_b32 s36, s36, 10")
    a(f"s_add_u32 s36, s36, {WS_FH}")
    poll_global(a, "g_hw", 8, 12, "s36", 1, 9, HSLEEP)
    vm.clear()
    stamp(a, 8)
    for k in range(ND):
        ldH(k)
    def prep(k):
        i = k % ND
        w = WF + 8 * (k & 1)
        vm.wait(a, ("w", k))
        a(f"ds_write_b128 v12, {vr(ST(i), 4)}")
        a(f"ds_write_b128 v12, {vr(ST(i)+4, 4)} offset:1024")
        for cl in range(2):
            a(f"ds_read_b64_tr_b16 {vr(w+4*cl, 2)}, v7 offset:{cl*1024}")
            a(f"ds_read_b64_tr_b16 {vr(w+4*cl+2, 2)}, v7 offset:{cl*1024+512}")
    prep(0)
    def mf(k, cl, tl):
        d = vr(AF + 16 * (tl + 2 * cl), 16)
        if not os.environ.get("NOF2"):
            a(f"{MFMA} {d}, {vr(WF + 8 * (k & 1) + 4*cl, 4)}, {vr(ST(k % ND) + 8 + 4*tl, 4)}, {d if k else 0}")
    for k in range(28):
        i = k % ND
        if F2I:
            i1, w1 = (k + 1) % ND, WF + 8 * ((k + 1) & 1)
            a("s_waitcnt lgkmcnt(0)")
            vm.wait(a, ("h", k))
            mf(k, 0, 0)
            if k + 1 < 28:
                vm.wait(a, ("w", k + 1))
                a(f"ds_write_b128 v12, {vr(ST(i1), 4)}")
                a(f"ds_write_b128 v12, {vr(ST(i1)+4, 4)} offset:1024")
            mf(k, 0, 1)
            if k + 1 < 28:
                for cl in range(2):
                    a(f"ds_read_b64_tr_b16 {vr(w1+4*cl, 2)}, v7 offset:{cl*1024}")
                    a(f"ds_read_b64_tr_b16 {vr(w1+4*cl+2, 2)}, v7 offset:{cl*1024+512}")
            mf(k, 1, 0)
            if k + ND < 28:
                ldW(k + ND)
            else:
                ldWo(2 * i)
            mf(k, 1, 1)
        else:
            if k + 1 < 28:
                prep(k + 1)
                a("s_waitcnt lgkmcnt(6)")
            else:
                a("s_waitcnt lgkmcnt(0)")
            if k + ND < 28:
                ldW(k + ND)
            else:
                ldWo(2 * i)
            vm.wait(a, ("h", k))
            for cl in range(2):
                for tl in range(2):
                    mf(k, cl, tl)
        if k + ND < 28:
            ldH(k + ND)
        else:
            ldWo(2 * i + 1)
    stamp(a, 9)
    a("v_and_b32 v15, 15, v1")
    a("v_lshlrev_b32 v15, 6, v15")
    a("buffer_load_dword v11, v15, s[12:15], s36 offen sc1")
    vm.op("fl")
    for n_, k in enumerate(list(range(14, 16)) + list(range(14))):
        o = (n_ & 1) * 2048 if WOP else 0
        vm.wait(a, ("o", k))
        if WOP and n_ >= 2:
            a("s_waitcnt lgkmcnt(6)")
        a(f"ds_write_b128 v12, {vr(WO+8*k, 4)} offset:{o}")
        a(f"ds_write_b128 v12, {vr(WO+8*k+4, 4)} offset:{o+1024}")
        for cl in range(2):
            a(f"ds_read_b64_tr_b16 {vr(WO+8*k+4*cl, 2)}, v7 offset:{o+cl*1024}")
            a(f"ds_read_b64_tr_b16 {vr(WO+8*k+4*cl+2, 2)}, v7 offset:{o+cl*1024+512}")
        if (k & 1) and not WOP:
            a("s_waitcnt lgkmcnt(0)")
    a("s_waitcnt lgkmcnt(0)")
    vm.wait(a, "fl")
    poll_global(a, "g_ha", 15, 12, "s36", 1, 11, HSLEEP, first_loaded=True)
    stamp(a, 10)
    a("v_lshlrev_b32 v8, 2, v5")
    a("s_lshl_b32 s20, s41, 7")
    a(f"s_add_u32 s20, s20, {WS_G}")
    a("buffer_load_dword v10, v8, s[12:15], s20 offen sc1")
    a("v_lshlrev_b32 v8, 3, v6")
    a("s_lshl_b32 s20, s40, 6")
    for q in range(4):
        a(f"buffer_load_dwordx2 {vr(WF+2*q, 2)}, v8, s[16:19], s20 offen offset:{q*16}")
    a("s_lshl_b32 s20, s30, 2")
    a(f"s_add_u32 s20, s20, {L_FLAGS + 16}")
    a("v_mov_b32 v13, s20")
    def partner(r):
        a(f"s_xor_b32 s36, s30, {r}")
        a("s_lshl_b32 s21, s36, 12")
        a(f"s_add_u32 s21, s21, {36*4096}")
        a("s_lshl_b32 s36, s36, 2")
        a(f"s_add_u32 s36, s36, {L_FLAGS + 16}")
    def xchg(r, seq, src, dst_tmp, tag, need_ack):
        if need_ack:
            a("v_add_u32 v8, 16, v13")
            poll_lds(a, f"{tag}a", 8, 9, f"s_cmp_ge_u32 s20, {seq-1}")
        for q in range(4):
            a(f"ds_write_b128 v12, {vr(src+4*q, 4)} offset:{q*1024}")
        partner(r)
        a(f"v_mov_b32 v9, {seq}")
        a("s_waitcnt lgkmcnt(0)")
        a("ds_write_b32 v13, v9")
        a("v_mov_b32 v8, s36")
        poll_lds(a, f"{tag}f", 8, 11, f"s_cmp_ge_u32 s20, {seq}")
        a("v_add_u32 v11, s21, v3")
        for q in range(4):
            a(f"ds_read_b128 {vr(dst_tmp+4*q, 4)}, v11 offset:{q*1024}")
        a("s_waitcnt lgkmcnt(0)")
        a("ds_write_b32 v8, v9 offset:16")
    a(f"s_setprio {GP3}")
    T0, T1 = AF, AF + 32
    for seq, (src, dst) in enumerate(((AF + 16, T0), (AF + 48, T1)), 1):
        xchg(1, seq, src, HB, f"g_r{seq}", seq > 1)
        vadd16(a, dst, HB, "a")
    a("s_waitcnt vmcnt(0)")
    a(f"v_max_f32 v10, {f32(-60.0)}, v10")
    a(f"v_mul_f32 v10, {f32(-LOG2E)}, v10")
    a("v_exp_f32 v14, v10                       ; e^-z")
    a("s_nop 0")
    a("v_add_f32 v10, 1.0, v14")
    a("v_rcp_f32 v10, v10                       ; g")
    for q in range(4):
        d = WF + 2 * q
        a(f"v_lshlrev_b32 v8, 16, v{d}")
        a(f"v_add_f32 v{AF+4*q}, v{AF+4*q}, v8")
        a(f"v_and_b32 v8, 0xffff0000, v{d}")
        a(f"v_add_f32 v{AF+4*q+1}, v{AF+4*q+1}, v8")
        a(f"v_lshlrev_b32 v8, 16, v{d+1}")
        a(f"v_add_f32 v{AF+4*q+2}, v{AF+4*q+2}, v8")
        a(f"v_and_b32 v8, 0xffff0000, v{d+1}")
        a(f"v_add_f32 v{AF+4*q+3}, v{AF+4*q+3}, v8")
    for T in (T0, T1):
        vscale16(a, T, 14, "b")
    OBF = AF + 48
    a("s_lshl_b32 s22, s41, 5")
    a("s_lshl_b32 s20, s39, 4")
    a("s_add_u32 s22, s22, s20")
    a("s_lshl_b32 s22, s22, 10")
    a(f"s_add_u32 s22, s22, {WS_OF}")
    for i in range(1, 4):
        a(f"s_add_u32 s{44+i}, s22, {i*4096}")
    a("s_mov_b32 s44, s22")
    a("v_add_u32 v8, 16, v13")
    poll_lds(a, "g_ak", 8, 9, "s_cmp_ge_u32 s20, 2", sleep=2)
    stamp(a, 11)
    a(f"v_mov_b32 v8, {L_FLAGS + F_AD}")
    poll_lds(a, "g_ad", 8, 9, f"s_cmp_ge_u32 s20, {ADN}", sleep=4)
    stamp(a, 12)
    stamp(a, 2, 3)
    ldO = lambda k: a(f"buffer_load_dwordx4 {vr(OBF+4*k, 4)}, v3, s[12:15], s{44 + k//4} offen offset:{(k%4)*1024} sc1")
    for k in range(16):
        ldO(k)
    a("s_mov_b32 s37, 0xffff")
    a("s_mov_b32 s96, 0")
    a.label("g_oround")
    if os.environ.get("OWAIT"): a("s_waitcnt vmcnt(0)")
    for k in range(16):
        b = OBF + 4 * k
        a(f"s_bitcmp1_b32 s37, {k}")
        a(f"s_cbranch_scc0 g_onext{k}")
        a(f"s_waitcnt vmcnt({15-k})")
        a(f"v_max3_u32 v8, v{b}, v{b+1}, v{b+2}")
        a(f"v_max_u32 v8, v8, v{b+3}")
        a("v_cmp_eq_u32 vcc, -1, v8")
        a("s_nop 4")
        a(f"s_cbranch_vccnz g_oretry{k}")
        for cl, T in enumerate((T0, T1)):
            d = vr(T, 16)
            a(f"{MFMA} {d}, {vr(WO + 8*k + 4*cl, 4)}, {vr(b, 4)}, {d}")
        a(f"s_bitset0_b32 s37, {k}")
        a.label(f"g_onext{k}")
    a("s_cmp_eq_u32 s37, 0")
    a("s_cbranch_scc1 g_odone")
    a("s_add_u32 s96, s96, 1")
    a(f"s_cmp_lt_u32 s96, {SPIN_MAX}")
    a("s_waitcnt vmcnt(0)")
    a("s_cbranch_scc1 g_oround")
    a("s_branch g_odone")
    for k in range(16):
        a.label(f"g_oretry{k}")
        ldO(k)
        a(f"s_branch g_onext{k}")
    a.label("g_odone")
    a("s_nop 15")
    stamp(a, 6, 3)
    xchg(2, 3, T1, AF + 16, "g_r4", False)
    stamp(a, 7, 3)
    vadd16(a, AF, AF + 16, "c")
    vscale16(a, AF, 10, "d")
    P = OBF
    for j in range(8):
        a(f"v_cvt_pk_bf16_f32 v{P+j}, v{AF+2*j}, v{AF+2*j+1}")
    a("v_lshlrev_b32 v8, 10, v5")
    a("v_lshl_add_u32 v8, v6, 4, v8")
    for pa in (0, 2):
        a(f"v_permlane32_swap_b32 v{P+2*pa}, v{P+2*pa+2}")
        a(f"v_permlane32_swap_b32 v{P+2*pa+1}, v{P+2*pa+3}")
    a("s_lshl_b32 s20, s41, 15")
    a("s_lshl_b32 s21, s40, 6")
    a("s_add_u32 s20, s20, s21")
    a(f"buffer_store_dwordx4 {vr(P, 4)}, v8, s[24:27], s20 offen")
    a(f"buffer_store_dwordx4 {vr(P+4, 4)}, v8, s[24:27], s20 offen offset:32")
    a("s_waitcnt lgkmcnt(0)")
    if PROF == 3:
        a("s_mul_i32 s73, s96, 100")
        a("s_add_u32 s73, s73, s64")
        stamp(a, 8, 3)
        a("s_waitcnt vmcnt(0)")
    dump_stamps(a)
    a("s_endpgm")


def main(path):
    a = Asm()
    hdr = f"""; gated_mix: MHA block + squared-relu FFN, gated mix.  Generated by gen/gen9.py
; @launch grid=(256,1,1) block=(512,1,1) lds={LDS_BYTES}
.amdgcn_target "amdgcn-amd-amdhsa--gfx950"
.text
.globl {NAME}_kernel
.type {NAME}_kernel,@function
"""
    gen(a)
    tail = f""".section .rodata,"a"
.p2align 6
.amdhsa_kernel {NAME}_kernel
  .amdhsa_next_free_vgpr 256
  .amdhsa_next_free_sgpr 102
  .amdhsa_accum_offset 256
  .amdhsa_group_segment_fixed_size 0
  .amdhsa_kernarg_size 96
  .amdhsa_user_sgpr_count 2
  .amdhsa_user_sgpr_kernarg_segment_ptr 1
  .amdhsa_system_sgpr_workgroup_id_x 1
.end_amdhsa_kernel
"""
    open(path, "w").write(hdr + a.text() + tail)


if __name__ == "__main__":
    main(sys.argv[1] if len(sys.argv) > 1 else f"cdna_kernels/{NAME}.s")
```
